```python
import torch

def _softmax(x, axis=-1):
    return torch.softmax(x, dim=axis)
def _gelu(x):
    return torch.nn.functional.gelu(x, approximate="tanh")
def _silu(x):
    return torch.nn.functional.silu(x)
def _sigmoid(x):
    return torch.sigmoid(x)
def _layernorm(x, axis=-1, eps=1e-5):
    m = x.mean(dim=axis, keepdim=True)
    v = x.var(dim=axis, keepdim=True, unbiased=False)
    return (x - m) / torch.sqrt(v + eps)
def _scatter_add(tgt, idx, src, axis=0):
    return tgt.clone().index_add_(axis, idx, src)
def _segment_sum(src, seg, n):
    out = torch.zeros((n,) + src.shape[1:], dtype=src.dtype)
    return out.index_add_(0, seg, src)
def _pad(x, pw):
    flat = tuple(v for pair in reversed(pw) for v in pair)
    return torch.nn.functional.pad(x, flat)

kernel_name = 'gated_mix__ssm_conv_h3__glu_gated_reglu__prompt'

def setup_inputs():

    _w = (lambda a: (lambda t: t.to(torch.bfloat16) if t.is_floating_point() else t)(torch.as_tensor(a)))
    def _A_setup():
        B, S, D = 1, 2048, 512
        ks = 4
        return {
            "q": _w((lambda *s: torch.randn(*s, dtype=torch.bfloat16) * 0.05)(B, S, D)),
            "k": _w((lambda *s: torch.randn(*s, dtype=torch.bfloat16) * 0.05)(B, S, D)),
            "v": _w((lambda *s: torch.randn(*s, dtype=torch.bfloat16) * 0.05)(B, S, D)),
            "shift_k": _w((lambda *s: torch.randn(*s, dtype=torch.bfloat16) * 0.05)(D, ks) * 0.5),
            "ssm_k": _w((lambda *s: torch.randn(*s, dtype=torch.bfloat16) * 0.05)(D, S) * (1.0 / S ** 0.5)),
            "ssm_D": _w((lambda *s: torch.randn(*s, dtype=torch.bfloat16) * 0.05)(D)),
        }
    _A_in = _A_setup()

    def _B_setup():
        B, S, D, F = 1, 2048, 512, 1792
        return {
            "x": _w((lambda *s: torch.randn(*s, dtype=torch.bfloat16) * 0.05)(B, S, D)),
            "W_gate": _w((lambda *s: torch.randn(*s, dtype=torch.bfloat16) * 0.05)(D, F) * (2.0 / D) ** 0.5),
            "W_up": _w((lambda *s: torch.randn(*s, dtype=torch.bfloat16) * 0.05)(D, F) * (2.0 / D) ** 0.5),
            "W_down": _w((lambda *s: torch.randn(*s, dtype=torch.bfloat16) * 0.05)(F, D) * (1.0 / F) ** 0.5),
        }
    _B_in = _B_setup()

    return {
        "A_q": _A_in["q"],
        "A_k": _A_in["k"],
        "A_v": _A_in["v"],
        "A_shift_k": _A_in["shift_k"],
        "A_ssm_k": _A_in["ssm_k"],
        "A_ssm_D": _A_in["ssm_D"],
        "B_x": _B_in["x"],
        "B_W_gate": _B_in["W_gate"],
        "B_W_up": _B_in["W_up"],
        "B_W_down": _B_in["W_down"],
        "gate_w": _w((lambda *s: torch.randn(*s, dtype=torch.bfloat16) * 0.05)(512) * 16.0),
    }

def reference(A_q, A_k, A_v, A_shift_k, A_ssm_k, A_ssm_D, B_x, B_W_gate, B_W_up, B_W_down, gate_w):
    def _A_ref(q, k, v, shift_k, ssm_k, ssm_D):
        B, S, D = q.shape
        ks = shift_k.shape[-1]
        k_pad = _pad(k, ((0, 0), (ks - 1, 0), (0, 0)))
        k_shift = torch.zeros_like(k)
        for t in range(ks):
            k_shift = k_shift + k_pad[:, t:t + S, :] * shift_k[:, ks - 1 - t][None, None, :]
        kv = k_shift * v
        L = 2 * S
        kv_pad = _pad(kv, ((0, 0), (0, S), (0, 0)))
        kf_pad = _pad(ssm_k, ((0, 0), (0, S)))
        kv_f = (lambda x, axes=(-2,-1): torch.fft.rfft2(x.float(), dim=axes))(kv_pad[:, None, :, :], axes=(1, 2))
        kf_f = (lambda x, axes=(-2,-1): torch.fft.rfft2(x.float(), dim=axes))(kf_pad[:, None, :], axes=(1, 2))
        kf_f = (lambda x, *d: x.permute(*d))(kf_f, 1, 2, 0)
        y_f = kv_f * kf_f[None, :, :, :]
        y = (lambda x, s, axes=(-2,-1): torch.fft.irfft2(x, s=s, dim=axes).to(torch.bfloat16))(y_f, (1, L), axes=(1, 2))[:, 0, :S, :]
        y = y + kv * ssm_D[None, None, :]
        return q * y

    def _B_ref(x, W_gate, W_up, W_down):
        gate = torch.einsum("bsd,df->bsf", x, W_gate)
        up = torch.einsum("bsd,df->bsf", x, W_up)
        gate = gate * (lambda x, dt: x.to(dt))(gate > 0, gate.dtype)
        h = gate * up
        return torch.einsum("bsf,fd->bsd", h, W_down)

    x = A_q
    g = _sigmoid((x * gate_w).sum(-1, keepdims=True))
    a = _A_ref(x, A_k, A_v, A_shift_k, A_ssm_k, A_ssm_D)
    b = _B_ref(x, B_W_gate, B_W_up, B_W_down)
    return g * a + (1 - g) * b
```

```python
import re

def _regs(tok):
    tok = tok.strip()
    tok = re.sub(r'^-', '', tok)
    tok = re.sub(r'^(abs|neg)\((.*)\)$', r'\2', tok)
    tok = tok.strip('|')
    m = re.fullmatch(r'([vas])(\d+)', tok)
    if m: return [(m.group(1), int(m.group(2)))]
    m = re.fullmatch(r'([vas])\[(\d+):(\d+)\]', tok)
    if m: return [(m.group(1), i) for i in range(int(m.group(2)), int(m.group(3)) + 1)]
    if tok in ('vcc', 'exec'): return [(tok + '_lo', 0), (tok + '_hi', 0)]
    if tok in ('vcc_lo', 'vcc_hi', 'exec_lo', 'exec_hi', 'm0', 'scc'): return [(tok, 0)]
    return []

TRANS = ('v_exp_f32', 'v_log_f32', 'v_rcp_f32', 'v_rsq_f32', 'v_sqrt_f32', 'v_sin_f32', 'v_cos_f32')

class Ins:
    __slots__ = ('text', 'op', 'kind', 'defs', 'uses', 'tag', 'expect', 'pseudo', 'arg', 'sgpr_const', 'dpp', 'wide_store', 'lds_dma', 'cost', 'note', 'stream')
    def __init__(self, text, tag=None, expect=None, pseudo=None, arg=None):
        self.text = text; self.tag = tag; self.expect = expect; self.pseudo = pseudo; self.arg = arg
        self.defs = []; self.uses = []; self.kind = 'pseudo' if pseudo else None
        self.dpp = False; self.wide_store = False; self.lds_dma = False; self.op = pseudo or ''
        self.cost = 0; self.note = None; self.stream = None
        if not pseudo: self._parse()
    def _parse(self):
        t = self.text.split(';')[0].strip()
        if t.endswith(':') or t.startswith('.'):
            self.kind = 'label'; self.op = t; return
        sp = t.split(None, 1)
        op = sp[0]; self.op = op
        rest = sp[1] if len(sp) > 1 else ''
        ops = [o.strip() for o in re.split(r',(?![^\[\(]*[\]\)])', rest)] if rest else []
        mods = ''
        if ops:
            last = ops[-1].split(None, 1)
            ops[-1] = last[0]
            mods = last[1] if len(last) > 1 else ''
        R = [_regs(o) for o in ops]
        flat = lambda L: [r for x in L for r in x]
        self.cost = 4
        if op.startswith('v_mfma'):
            self.kind = 'mfma'; self.defs = R[0]; self.uses = flat(R[1:]); self.cost = 8
            self.arg = (R[0], R[1], R[2], R[3])
        elif op.startswith('buffer_load') or op.startswith('global_load'):
            self.kind = 'vmem'; self.cost = 5
            if ' lds' in (' ' + mods) or op.startswith('global_load_lds'):
                self.lds_dma = True; self.uses = flat(R) + [('m0', 0)]
            else:
                self.defs = R[0]; self.uses = flat(R[1:])
        elif op.startswith('buffer_store') or op.startswith('global_store') or op.startswith('global_atomic'):
            self.kind = 'vmem'; self.uses = flat(R); self.cost = 5
            if op.endswith('x4') or op.endswith('x3'):
                self.wide_store = True
                self.arg = R[0] if op.startswith('buffer') else R[1]
        elif op.startswith('ds_read'):
            self.kind = 'ds'; self.defs = R[0]; self.uses = flat(R[1:]); self.cost = 5
        elif op.startswith('ds_write'):
            self.kind = 'ds'; self.uses = flat(R); self.cost = 5
        elif op.startswith('s_load') or op in ('s_memtime', 's_memrealtime'):
            self.kind = 'smem'; self.defs = R[0]; self.uses = flat(R[1:])
        elif op == 's_waitcnt': self.kind = 'wait'
        elif op == 's_nop': self.kind = 'nop'; self.arg = int(ops[0]) + 1
        elif op == 's_barrier': self.kind = 'barrier'
        elif op in ('s_endpgm', 's_setprio'): self.kind = 'salu'
        elif op.startswith('s_cbranch') or op == 's_branch':
            self.kind = 'branch'
            if 'scc' in op: self.uses = [('scc', 0)]
        elif op.startswith('s_cmp'):
            self.kind = 'salu'; self.uses = flat(R); self.defs = [('scc', 0)]
        elif op in ('s_setpc_b64',):
            self.kind = 'branch'; self.uses = flat(R)
        elif op in ('s_swappc_b64',):
            self.kind = 'branch'; self.defs = R[0]; self.uses = flat(R[1:])
        elif op.startswith('s_'):
            self.kind = 'salu'; self.defs = list(R[0]); self.uses = flat(R[1:])
            if op in ('s_addc_u32', 's_subb_u32') or op.startswith('s_cselect'): self.uses.append(('scc', 0))
            if not (op.startswith('s_mov') or op.startswith('s_cselect') or op.startswith('s_mul') or op.startswith('s_getpc') or op.startswith('s_getreg') or op.startswith('s_bfm')):
                self.defs.append(('scc', 0))
        elif op.startswith('v_'):
            self.kind = 'valu'
            self.defs = list(R[0]); self.uses = flat(R[1:])
            if op.startswith('v_permlane'):
                self.defs = R[0] + R[1]; self.uses = R[0] + R[1]
            if op.startswith('v_fmac') or op.startswith('v_dot2c') or op.startswith('v_writelane'): self.uses += R[0]
            if 'dpp' in op or 'row_' in mods or 'quad_perm' in mods or 'wave_' in mods:
                self.dpp = True; self.uses += R[0]
            if op in ('v_add_co_u32', 'v_addc_co_u32', 'v_sub_co_u32'):
                self.defs = R[0] + R[1]; self.uses = flat(R[2:])
            lit = any(re.fullmatch(r'0x[0-9a-fA-F]+|\d+', o) and int(o, 0) > 64 for o in ops[1:])
            vop3 = op in ('v_cvt_pk_bf16_f32', 'v_alignbyte_b32', 'v_alignbit_b32', 'v_fma_f32', 'v_add3_u32', 'v_lshl_add_u32', 'v_lshl_or_b32',
                          'v_and_or_b32', 'v_mad_u32_u24', 'v_perm_b32', 'v_dot2_f32_bf16', 'v_mul_lo_u32', 'v_accvgpr_read_b32', 'v_accvgpr_write_b32', 'v_bfe_u32') or op.startswith('v_pk_') or self.dpp
            self.cost = 5 if (lit or vop3) else 4
            if op in TRANS: self.cost = 8
        else:
            raise ValueError('cannot parse: ' + t)
        if self.kind in ('valu', 'vmem', 'ds', 'mfma'): self.uses = self.uses + [('exec_lo', 0), ('exec_hi', 0)]

def I(text, **kw): return Ins(text, **kw)
def WAITVM(tag): return Ins('', pseudo='waitvm', arg=tag)
def WAITLGKM0(): return Ins('', pseudo='waitlgkm0')
def DRAIN(): return Ins('', pseudo='drain')
def RAW(text, defs='', uses=''):
    x = Ins(text, pseudo='raw')
    x.defs = [r for t in defs.split() for r in _regs(t)]; x.uses = [r for t in uses.split() for r in _regs(t)]
    return x
def stream(name, items):
    for it in items:
        for x in (it if isinstance(it, list) else [it]):
            x.stream = name
    return items
def atomize(items):
    out = []
    for it in items:
        grp = list(it) if isinstance(it, list) else [it]
        need = set()
        d = set()
        for x in grp:
            need |= {r for r in x.uses if r[0] in ('scc', 'vcc_lo') and r not in d}
            d |= set(x.defs)
        while need and out:
            prev = out.pop(); grp = prev + grp
            need -= {r for x in prev for r in x.defs}
        out.append(grp)
    return out
def check_streams(ins, temps, allow=()):
    last = {}
    for x in ins:
        if x.pseudo == 'reset': last = {}
        for r in x.uses:
            if x.kind == 'label': break
            if r in temps and r in last and last[r].stream != x.stream and (last[r].stream, x.stream) not in allow and r not in x.defs[:0]:
                raise AssertionError(f'temp {r} used by "{x.text}" [{x.stream}] was last written by "{last[r].text}" [{last[r].stream}]')
        for r in x.defs:
            if r in temps: last[r] = x
def RESET(): return Ins('', pseudo='reset')

def insert_waits(ins):
    out = []
    vm = []
    lg = []
    sm = set()
    def emit_wait(v=None, l=None):
        parts = []
        if v is not None: parts.append(f'vmcnt({min(v, 63)})')
        if l is not None: parts.append(f'lgkmcnt({min(l, 15)})')
        out.append(Ins('s_waitcnt ' + ' '.join(parts)))
    for x in ins:
        if x.pseudo == 'waitvm':
            tags = x.arg if isinstance(x.arg, (list, tuple, set)) else [x.arg]
            idx = max((i for i, (d, t) in enumerate(vm) if t in tags), default=-1)
            if idx >= 0:
                emit_wait(v=len(vm) - 1 - idx); del vm[:idx + 1]
            continue
        if x.pseudo == 'waitlgkm0':
            if lg or sm: emit_wait(l=0); lg.clear(); sm.clear()
            continue
        if x.pseudo == 'drain':
            emit_wait(v=0, l=0); vm.clear(); lg.clear(); sm.clear(); continue
        if x.pseudo == 'reset':
            vm.clear(); lg.clear(); sm.clear(); out.append(x); continue
        if x.pseudo or x.kind == 'label':
            out.append(x); continue
        touched = set(x.uses) | set(x.defs)
        nv = nl = None
        idx = max((i for i, (d, t) in enumerate(vm) if d & touched), default=-1)
        if idx >= 0: nv = len(vm) - 1 - idx; del vm[:idx + 1]
        if sm & touched:
            nl = 0; lg.clear(); sm.clear()
        else:
            idx = max((i for i, d in enumerate(lg) if d & touched), default=-1)
            if idx >= 0: nl = len(lg) - 1 - idx; del lg[:idx + 1]
        if x.kind == 'ds' and len(lg) >= 15 and (nl is None):
            nl = 14; del lg[:len(lg) - 14]
        if x.kind == 'vmem' and len(vm) >= 62 and (nv is None):
            nv = 61; del vm[:len(vm) - 61]
        if nv is not None or nl is not None: emit_wait(nv, nl)
        out.append(x)
        if x.kind == 'vmem': vm.append((set(x.defs), x.tag))
        elif x.kind == 'ds': lg.append(set(x.defs))
        elif x.kind == 'smem' and not x.note == 'stamp': sm |= set(x.defs)
        elif x.kind == 'wait':
            m = re.search(r'vmcnt\((\d+)\)', x.text)
            if m:
                n = int(m.group(1))
                if len(vm) > n: del vm[:len(vm) - n]
            m = re.search(r'lgkmcnt\((\d+)\)', x.text)
            if m:
                n = int(m.group(1))
                if len(lg) > n: del lg[:len(lg) - n]
                if n == 0: sm.clear()
    return out

def states(x):
    if x.kind == 'nop': return x.arg
    if x.kind in ('label', 'pseudo'): return 0
    return 1

def isv(r): return r[0] in ('v', 'a')
def iss(r): return r[0] in ('s', 'vcc_lo', 'vcc_hi')

def insert_nops(ins):
    out = []
    hist = []
    pos = 0
    for x in ins:
        if x.pseudo == 'reset': hist = []; out.append(x); continue
        if x.pseudo or x.kind == 'label': out.append(x); continue
        need = 0
        U = set(x.uses); D = set(x.defs)
        for (p, pp) in reversed(hist):
            dist = pos - pp - 1
            if dist > 20: break
            req = 0
            PD = set(p.defs); PU = set(p.uses)
            if p.kind == 'valu':
                vd = {r for r in PD if isv(r)}; sd = {r for r in PD if iss(r)}
                if x.kind == 'mfma' and vd & U: req = max(req, 2)
                if x.kind == 'valu':
                    if x.op.startswith('v_permlane') and vd & U: req = max(req, 2)
                    if x.dpp and vd & U: req = max(req, 2)
                    if x.op.startswith('v_readfirstlane') or x.op.startswith('v_readlane'):
                        if vd & U: req = max(req, 1)
                        if x.op.startswith('v_readlane') and sd & U: req = max(req, 4)
                    if sd & U: req = max(req, 2)
                    if p.op in TRANS and vd & U: req = max(req, 1)
                if x.kind == 'vmem' and sd & U: req = max(req, 5)
                if x.kind in ('salu', 'branch') and sd & U: req = max(req, 1)
            if p.kind == 'salu' and ('m0', 0) in PD and x.lds_dma: req = max(req, 1)
            if p.kind == 'mfma':
                n = 12 if '32x32' in p.op else 8
                if x.kind == 'mfma':
                    d, a, b, c = x.arg
                    if PD & (set(a) | set(b)): req = max(req, n)
                    elif PD & set(c) and list(c) != list(p.defs): req = max(req, n - 2)
                    elif PD & set(d) and not (PD & set(c)): req = max(req, n)
                elif x.kind in ('valu', 'vmem', 'ds') and PD & (U | D): req = max(req, n)
                pc = set(p.arg[3])
                if x.kind == 'valu' and pc & D: req = max(req, n - 5)
            if p.wide_store and set(p.arg) & D: req = max(req, 2 if x.kind == 'valu' else 1)
            need = max(need, req - dist)
        while need > 0:
            k = min(need, 16); nop = Ins(f's_nop {k - 1}'); out.append(nop); hist.append((nop, pos)); pos += k; need -= k
        out.append(x); hist.append((x, pos)); pos += states(x)
        if len(hist) > 64: hist = hist[-40:]
    return out

def check_tags(ins):
    cur = {}
    for x in ins:
        if x.pseudo == 'reset': cur = {}
        if x.expect:
            for regs, tag in x.expect:
                for r in regs:
                    if cur.get(r) != tag:
                        raise AssertionError(f'tag mismatch at "{x.text}": {r} holds {cur.get(r)} expected {tag}')
        for r in x.defs:
            if x.kind == 'mfma' and x.tag is None and r in cur and list(x.arg[3]) == list(x.defs): continue
            cur[r] = x.tag

def render(ins):
    o = []
    for x in ins:
        if x.pseudo in ('reset',): continue
        if x.kind == 'label': o.append(x.text)
        else: o.append('    ' + x.text.replace('\n', '\n    '))
    return '\n'.join(o) + '\n'

class Weave:
    def __init__(self, budget=23):
        self.spine = []
        self.gaps = []
        self.budget = budget
    def mfma(self, ins, pre=None):
        self.spine.append((list(pre or []), ins)); self.gaps.append([]); return len(self.spine) - 1
    def used(self, g):
        c = sum(x.cost for x in self.gaps[g])
        if g + 1 < len(self.spine): c += sum(4 if (x.pseudo or x.kind == 'barrier') else x.cost for x in self.spine[g + 1][0])
        return c
    def place(self, items, start, end=None, per_gap=99, force=True):
        g = start; n = 0
        items = atomize(items)
        last = len(self.spine) - 1 if end is None else min(end, len(self.spine) - 1)
        for it in items:
            grp = it if isinstance(it, list) else [it]
            c = sum(4 if x.pseudo else x.cost for x in grp)
            big = c > 12
            while g < last and (n >= per_gap or (not big and self.used(g) + c > self.budget and self.used(g) > 0) or (big and self.used(g) > self.budget - 8)):
                g += 1; n = 0
            self.gaps[g].extend(grp); n += 1
        return g
    def flatten(self):
        o = []
        for (pre, m), gap in zip(self.spine, self.gaps):
            o.extend(pre); o.append(m); o.extend(gap)
        return o
```

```python
import sys, json
from asmlib import *

NAME = 'gated_mix__ssm_conv_h3__glu_gated_reglu__prompt'
WS_H   = 0
WS_WDF = 0x700000
WS_KVT = 0x900000
WS_YT  = 0xB00000
WS_G   = 0xD00000
FL_H   = 0xD10000
FL_KV  = 0xD14000
FL_WD  = 0xD15000
FL_G   = 0xD16000
FL_Y   = 0xD18000
WS_PROF= 0xD20000
WS_SIZE= 0xE00000
L_W = 0
L_X = 49152
L_C = 81920
L_Q = 147456
L_Y = 155648
LDS_BYTES = 163840
CSTR = 2368
UOFF = 9280

P_Q, P_K, P_V, P_SK, P_SSM, P_D, P_BX, P_WG, P_WU, P_WD, P_GW, P_OUT, P_DBG, P_WS = [16 + 2 * i for i in range(14)]
SX, SA, SB, SWS, SHS, SSM, SOUT = 44, 48, 52, 56, 60, 64, 68
sN = 72
sG = 74
sW, sW4K, sC0, sXb, sWb, sWo, sXo, sHo0, sHo1, sTB, sDB, sMASK, sSPIN, sD = range(88, 102)
STAMPS = [16, 18, 20, 24, 26, 28, 30, 32, 38]
def srd(n): return f's[{n}:{n+3}]'
def sp(n): return f's[{n}:{n+1}]'
def vr(n, k): return f'v[{n}:{n+k-1}]' if k > 1 else f'v{n}'
def ar(n, k): return f'a[{n}:{n+k-1}]'
def regs(t, n, k): return [(t, i) for i in range(n, n + k)]
vL, vL16 = 0, 1
vX, vW, vA, vB = 2, 6, 10, 14
vCA, vCB, vG0, vG1, vHl, vFl, vP, vN = 18, 19, 20, 21, 22, 23, 24, 26
vT = 28
FA = [32, 56]; FB = [48, 72]
vD = 80; vCT = 98; vU0 = 110; vU1 = 111; vKV = 112
ACC1 = 128
CA = 32; CBR = 56
ACC2 = 32
HR = 160; NHR = 24
vBS = 128; vGA = 136; vGG = 152; vE = 154
vXR = 96
aWD = 0; aCV = 224

DEF = dict(prof=0, lw=2, dma_gap=1, p_nonce=8, p_ssm=11, p_kv=12, p_wdpoll=14, epi_start=0, hflag_delay=11, hpoll=44, hcheck=54,
           ypoll=40, ycheck=64, gpoll=8, ldx='', ldw='', ldkv='nt', ldwd='nt', ldssm='nt', codepf=1, spin=200000, nohelp=0)

class Gen:
    def __init__(self, **kw):
        self.o = dict(DEF); self.o.update(kw)
        self.nlab = 0
        self.nstamp = 0
    def lab(self, base):
        self.nlab += 1; return f'L_{base}_{self.nlab}'
    def stamp(self, k):
        if not self.o['prof']: return []
        x = I(f's_memtime {sp(STAMPS[k])}'); x.note = 'stamp'; return [x]
    def mk_srd(self, d, p, size, bias=0):
        o = []
        if bias:
            o += [I(f's_sub_u32 s{d}, s{p}, {bias}'), I(f's_subb_u32 s{d+1}, s{p+1}, 0')]
        else:
            o += [I(f's_mov_b64 {sp(d)}, {sp(p)}')]
        o += [I(f's_mov_b32 s{d+2}, {size + bias}'), I(f's_mov_b32 s{d+3}, 0x20000')]
        return o
    def poll_issue(self, soff_reg, tag):
        return I(f'buffer_load_dwordx2 {vr(vP,2)}, v{vFl}, {srd(SWS)}, s{soff_reg} offen sc1', tag=tag)
    def poll_check(self, soff_reg):
        ok = self.lab('ok'); lp = self.lab('lp')
        return [I(f'v_cmp_eq_u64 vcc, {sp(sN)}, {vr(vP,2)}'), I('s_cmp_eq_u64 vcc, exec'), I(f's_cbranch_scc1 {ok}'),
                RAW(f's_mov_b32 s{sSPIN}, 0\n{lp}:\nbuffer_load_dwordx2 {vr(vP,2)}, v{vFl}, {srd(SWS)}, s{soff_reg} offen sc1\ns_waitcnt vmcnt(0)\n'
                    f'v_cmp_eq_u64 vcc, {sp(sN)}, {vr(vP,2)}\ns_add_u32 s{sSPIN}, s{sSPIN}, 1\ns_nop 1\ns_cmp_eq_u64 vcc, exec\ns_cbranch_scc1 {ok}\n'
                    f's_cmp_lt_u32 s{sSPIN}, {self.o["spin"]}\ns_cbranch_scc1 {lp}', defs=f'vcc scc', uses=f's{soff_reg} v{vFl}'),
                I(f'{ok}:')]
    def nonce_issue(self):
        return [I(f'v_mov_b32 v{vT}, 0'), I(f'global_load_dwordx2 {vr(vN,2)}, v{vT}, {sp(P_DBG)} sc1', tag='nonce')]
    def nonce_check(self):
        ok = self.lab('nok'); lp = self.lab('nlp')
        return [I(f'v_cmp_ne_u32 vcc, 0, v{vN}'), I('s_cmp_eq_u64 vcc, exec'), I(f's_cbranch_scc1 {ok}'),
                RAW(f's_mov_b32 s{sSPIN}, 0\nv_mov_b32 v{vT}, 0\n{lp}:\nglobal_load_dwordx2 {vr(vN,2)}, v{vT}, {sp(P_DBG)} sc1\ns_waitcnt vmcnt(0)\n'
                    f'v_cmp_ne_u32 vcc, 0, v{vN}\ns_add_u32 s{sSPIN}, s{sSPIN}, 1\ns_nop 1\ns_cmp_eq_u64 vcc, exec\ns_cbranch_scc1 {ok}\n'
                    f's_cmp_lt_u32 s{sSPIN}, {self.o["spin"]}\ns_cbranch_scc1 {lp}', defs=f'vcc scc v{vT}'),
                I(f'{ok}:'), I(f'v_readfirstlane_b32 s{sN}, v{vN}'), I(f'v_readfirstlane_b32 s{sN+1}, v{vN+1}')]
    def flag_store(self, tag, soff_reg, srdn=SWS):
        return [I(f'v_mov_b32 v{vT}, 0'), WAITVM(tag), I('s_mov_b64 exec, 1'),
                I(f'buffer_store_dwordx2 {vr(vN,2)}, v{vT}, {srd(srdn)}, s{soff_reg} offen sc1'), I('s_mov_b64 exec, -1')]

    def prologue(self):
        o = []; A = lambda t, **k: o.append(I(t, **k))
        A('s_cmp_ge_u32 s2, 256'); A('s_cbranch_scc1 L_end')
        A('s_load_dwordx16 s[16:31], s[0:1], 0'); A('s_load_dwordx8 s[32:39], s[0:1], 64'); A('s_load_dwordx4 s[40:43], s[0:1], 96')
        A(f'v_lshrrev_b32 v1, 6, v0'); A(f'v_and_b32 v{vL}, 63, v0'); A(f'v_readfirstlane_b32 s{sW}, v1')
        A(f'v_lshlrev_b32 v{vL16}, 4, v{vL}')
        A(f's_lshl_b32 s{sW4K}, s{sW}, 12')
        A(f's_mov_b32 s{sMASK}, 0xffff0000')
        A(f'v_lshrrev_b32 v28, 3, v{vL}'); A('v_lshlrev_b32 v28, 10, v28')
        A(f'v_and_b32 v29, 7, v{vL}'); A(f'v_lshrrev_b32 v30, 4, v{vL}')
        A('v_xor_b32 v29, v29, v30')
        A(f'v_lshl_add_u32 v{vX}, v29, 4, v28')
        A(f'v_xor_b32 v{vX+1}, 64, v{vX}'); A(f'v_add_u32 v{vX+1}, 7168, v{vX+1}')
        A('s_and_b32 s3, s2, 7'); A('s_lshr_b32 s4, s2, 3')
        A('s_and_b32 s5, s3, 3'); A('s_lshr_b32 s6, s3, 2')
        A('s_lshl_b32 s7, s5, 3'); A('s_lshl_b32 s8, s6, 2'); A('s_add_u32 s7, s7, s8'); A('s_and_b32 s8, s4, 3')
        A(f's_add_u32 s{sTB}, s7, s8'); A(f's_lshr_b32 s{sDB}, s4, 2')
        A('s_cmp_lt_u32 s2, 32'); A('s_cbranch_scc1 L_helper')
        return o

    def gemm_prologue(self):
        o = []; A = lambda t, **k: o.append(I(t, **k))
        A('s_sub_u32 s4, s4, 4'); A('s_and_b32 s7, s4, 3'); A('s_lshr_b32 s8, s4, 2')
        A('s_lshl_b32 s9, s5, 2'); A('s_add_u32 s9, s9, s7')
        A('s_mul_i32 s10, s6, 7'); A('s_add_u32 s10, s10, s8')
        A('s_lshl_b32 s11, s7, 1'); A('s_add_u32 s11, s11, s8'); A('s_and_b32 s12, s5, 1'); A('s_add_u32 s11, s11, s12')
        if self.o.get('norot'): A(f's_mov_b32 s{sC0}, 0')
        else: A(f's_and_b32 s{sC0}, s11, 7')
        A(f's_lshl_b32 s{sXb}, s9, 17'); A(f's_lshl_b32 s11, s{sW}, 15'); A(f's_add_u32 s{sXb}, s{sXb}, s11')
        A(f's_mul_i32 s{sWb}, s{sW}, {8*3584}'); A('s_lshl_b32 s11, s10, 8'); A(f's_add_u32 s{sWb}, s{sWb}, s11')
        A(f's_and_b32 s11, s{sW}, 1'); A(f's_lshr_b32 s12, s{sW}, 1')
        A('s_lshl_b32 s13, s9, 1'); A('s_add_u32 s13, s13, s11')
        A('s_mul_i32 s14, s13, 112'); A('s_lshl_b32 s15, s10, 3'); A('s_add_u32 s14, s14, s15'); A('s_lshl_b32 s15, s12, 2'); A('s_add_u32 s14, s14, s15')
        A(f's_lshl_b32 s{sHo0}, s14, 11'); A(f's_add_u32 s{sHo1}, s{sHo0}, 4096')
        A('s_lshl_b32 s13, s13, 8'); A('s_lshl_b32 s14, s10, 4'); A('s_add_u32 s13, s13, s14'); A('s_lshl_b32 s14, s12, 3'); A('s_add_u32 s13, s13, s14')
        A(f's_add_u32 s13, s13, {FL_H}')
        A(f'v_add_u32 v{vX+2}, 14336, v{vX}'); A(f'v_add_u32 v{vX+3}, 14336, v{vX+1}')
        A(f'v_lshrrev_b32 v28, 4, v{vL}')
        A(f'v_mul_u32_u24 v29, 3584, v28')
        A(f'v_bfe_u32 v30, v{vL}, 1, 3'); A('v_lshlrev_b32 v28, 1, v28'); A('v_xor_b32 v30, v30, v28')
        A(f'v_and_b32 v31, 1, v{vL}'); A('v_lshlrev_b32 v31, 4, v31'); A('v_lshl_or_b32 v30, v30, 5, v31')
        A(f'v_add_u32 v{vW}, v29, v30'); A('v_xor_b32 v30, 32, v30'); A(f'v_add_u32 v{vW+1}, v29, v30')
        A(f'v_add_u32 v{vW+2}, {4*3584 - 2048 + 4096}, v{vW}'); A(f'v_add_u32 v{vW+3}, {4*3584 - 3072 + 4096}, v{vW+1}')
        A(f'v_add_u32 v{vW}, 4096, v{vW}'); A(f'v_add_u32 v{vW+1}, {4096-1024}, v{vW+1}')
        A(f's_lshl_b32 s{sXo}, s{sC0}, 7'); A(f's_add_u32 s{sXo}, s{sXo}, s{sXb}')
        A(f's_mul_i32 s{sWo}, s{sC0}, {64*3584}'); A(f's_add_u32 s{sWo}, s{sWo}, s{sWb}')
        o.append(WAITLGKM0())
        o += self.mk_srd(SX, P_Q, 0x200000) + self.mk_srd(SA, P_WG, 512*3584, 4096) + self.mk_srd(SB, P_WU, 512*3584, 4096)
        return o

    def dma_x(self, c):
        o = [I(f's_add_u32 m0, s{sW4K}, {L_X + (c & 1) * 16384}')]
        fl = self.o['ldx']
        L = [I(f'buffer_load_dwordx4 v{vX+n}, {srd(SX)}, s{sXo} offen offset:{1024*n} {fl} lds', tag=f'x{c}') for n in range(4)]
        return [o + [L[0]]] + L[1:]
    def dma_w(self, H):
        fl = self.o['ldw']
        o = [I(f's_add_u32 m0, s{sW4K}, {L_W + (H % 3) * 16384}')]
        L = [I(f'buffer_load_dwordx4 v{vW+i}, {srd(SB if i & 1 else SA)}, s{sWo} offen offset:{1024*i} {fl} lds', tag=f'w{H}') for i in range(4)]
        return [o + [L[0]]] + L[1:]
    def adv_w(self, H):
        if H & 1: return [I(f's_add_u32 s{sWo}, s{sWo}, {32*3584}')]
        return [I(f's_add_u32 s3, s{sC0}, {H>>1}'), I('s_and_b32 s3, s3, 7'), I(f's_mul_i32 s3, s3, {64*3584}'), I(f's_add_u32 s{sWo}, s3, s{sWb}')]
    def adv_x(self, c):
        return [I(f's_add_u32 s4, s{sC0}, {c}'), I('s_and_b32 s4, s4, 7'), I('s_lshl_b32 s4, s4, 7'), I(f's_add_u32 s{sXo}, s4, s{sXb}')]

    def gemm_addr(self):
        o = []; A = lambda t, **k: o.append(I(t, **k))
        A(f's_lshr_b32 s3, s{sW}, 1'); A('s_lshl_b32 s3, s3, 2')
        A(f'v_bfe_u32 v28, v{vL}, 2, 2')
        A(f'v_bfe_u32 v29, v{vL}, 1, 1')
        A('v_lshl_or_b32 v30, v28, 1, v29')
        A('v_lshlrev_b32 v28, 8, v28'); A('v_lshl_or_b32 v28, v29, 10, v28')
        A(f'v_lshrrev_b32 v29, 5, v{vL}'); A('v_lshl_or_b32 v28, v29, 12, v28')
        A(f'v_bfe_u32 v29, v{vL}, 4, 1'); A('v_lshl_or_b32 v28, v29, 4, v28')
        A(f'v_and_b32 v29, 1, v{vL}'); A('v_lshl_or_b32 v28, v29, 3, v28')
        A('v_xor_b32 v30, s3, v30')
        for a in range(4):
            A(f'v_xor_b32 v29, {a}, v30'); A(f'v_lshl_or_b32 v{vA+a}, v29, 5, v28')
        A(f's_and_b32 s3, s{sW}, 1'); A('s_lshl_b32 s3, s3, 13'); A(f's_add_u32 s3, s3, {L_X}')
        A(f'v_and_b32 v28, 31, v{vL}'); A('v_lshlrev_b32 v28, 7, v28'); A('v_add_u32 v28, s3, v28')
        A(f'v_bfe_u32 v29, v{vL}, 1, 3'); A(f'v_lshrrev_b32 v30, 5, v{vL}'); A('v_xor_b32 v29, v29, v30')
        for s in range(4):
            A(f'v_xor_b32 v30, {2*s}, v29'); A(f'v_lshl_add_u32 v{vB+s}, v30, 4, v28')
        return o

    def frag_reads(self, S):
        st = S & 1; H = S >> 1; c = S >> 2
        fa, fb = FA[st], FB[st]
        wo = L_W + (H % 3) * 16384 + st * 8192
        xo = (c & 1) * 16384
        def rb(b): return I(f'ds_read_b128 {vr(fb+4*b,4)}, v{vB+(S&3)} offset:{xo + 4096*b}', tag=f'B{S}_{b}')
        def ra(a): return [I(f'ds_read_b64_tr_b16 {vr(fa+4*a+2*j,2)}, v{vA+a} offset:{wo + 2048*j}', tag=f'A{S}_{a}') for j in range(2)]
        return [rb(0)] + ra(0) + [rb(1)] + ra(1) + ra(2) + ra(3)

    def late_setup(self):
        o = []; A = lambda t, **k: o.append(I(t, **k))
        o += self.mk_srd(SWS, P_WS, WS_SIZE) + self.mk_srd(SOUT, P_OUT, 0x200000)
        A(f's_lshr_b32 s5, s{sW}, 1'); A('s_lshl_b32 s6, s2, 1'); A('s_add_u32 s5, s5, s6')
        A('s_lshl_b32 s6, s5, 12')
        A(f's_add_u32 s{SSM}, s{P_SSM}, s6'); A(f's_addc_u32 s{SSM+1}, s{P_SSM+1}, 0'); A(f's_mov_b32 s{SSM+2}, 4096'); A(f's_mov_b32 s{SSM+3}, 0x20000')
        A('s_lshl_b32 s6, s2, 2'); A(f'v_mov_b32 v{vT}, s6')
        A(f'global_load_dword v{vT+1}, v{vT}, {sp(P_D)}', tag='dval')
        A(f's_lshl_b32 s6, s{sW}, 14'); A(f's_add_u32 s6, s6, {L_C}')
        A(f'v_and_b32 v30, 3, v{vL}'); A(f'v_mul_u32_u24 v30, {CSTR}, v30')
        A(f'v_and_b32 v31, 28, v{vL}'); A('v_lshl_add_u32 v30, v31, 1, v30')
        A(f'v_lshrrev_b32 v31, 5, v{vL}'); A('v_lshlrev_b32 v31, 4, v31')
        A('v_sub_u32 v30, v30, v31'); A('s_add_u32 s7, s6, 16'); A(f'v_add_u32 v{vCA}, s7, v30')
        A(f'v_and_b32 v30, 31, v{vL}'); A('v_mul_u32_u24 v30, 144, v30'); A(f's_add_u32 s7, s6, {UOFF}'); A(f'v_add3_u32 v{vCB}, v30, v31, s7')
        A(f's_and_b32 s7, s{sW}, 1'); A('s_lshl_b32 s7, s7, 10'); A(f's_lshr_b32 s8, s{sW}, 1'); A('s_lshl_b32 s8, s8, 8')
        A(f's_mul_i32 s9, s{sDB}, {112*2048}'); A(f's_add_u32 s9, s9, {WS_WDF}')
        A(f'v_xor_b32 v30, s8, v{vL16}'); A('s_add_u32 s10, s9, s7'); A(f'v_add_u32 v{vG0}, s10, v30')
        A('s_xor_b32 s7, s7, 1024'); A('s_add_u32 s10, s9, s7'); A(f'v_add_u32 v{vG1}, s10, v30')
        A(f's_mul_i32 s9, s{sTB}, {112*2048}'); A(f'v_add_u32 v{vHl}, s9, v{vL16}')
        A(f's_and_b32 s7, s{sTB}, 3'); A('s_mul_i32 s7, s7, 7'); A('s_add_u32 s7, s7, 1'); A('s_lshr_b32 s7, s7, 1')
        A(f's_mul_i32 s8, s{sDB}, 7'); A('s_add_u32 s8, s8, 2'); A('s_lshr_b32 s8, s8, 2'); A('s_add_u32 s7, s7, s8')
        if self.o.get('norot2'): A('s_mov_b32 s7, 0')
        A('s_sub_u32 s8, s7, 14'); A('s_cmp_ge_u32 s7, 14'); A('s_cselect_b32 s7, s8, s7')
        A(f's_mul_i32 s8, s{sW}, {28*2048}'); A('s_lshl_b32 s7, s7, 12')
        A(f's_add_u32 s9, s8, {14*4096}')
        A(f's_add_u32 s{sG}, s7, s8')
        for g in range(1, 14):
            A(f's_add_u32 s{sG+g}, s{sG+g-1}, 4096'); A(f's_cmp_eq_u32 s{sG+g}, s9'); A(f's_cselect_b32 s{sG+g}, s8, s{sG+g}')
        A(f'v_readfirstlane_b32 s{sD}, v{vT+1}'); A(f's_lshr_b32 s7, s{sW}, 1'); A('s_lshl_b32 s7, s7, 4'); A(f's_lshr_b32 s{sD}, s{sD}, s7'); A(f's_lshl_b32 s{sD}, s{sD}, 16')
        return o

    def zero_fill(self):
        o = []; A = lambda t, **k: o.append(I(t, **k))
        A(f's_lshl_b32 s6, s{sW}, 14'); A(f's_add_u32 s6, s6, {L_C + UOFF}'); A(f'v_add_u32 v{vU0}, s6, v{vL16}')
        for i in range(4): A(f'v_mov_b32 v{vCT+i}, 0')
        for i in range(5): A(f'ds_write_b128 v{vU0}, {vr(vCT,4)} offset:{1024*i}')
        return o
    def ssm_loads(self):
        o = []; A = lambda t, **k: o.append(I(t, **k))
        fl = self.o['ldssm']
        A(f's_and_b32 s6, s{sW}, 1'); A('s_mul_i32 s6, s6, 2048'); A('s_sub_u32 s6, s6, 128')
        A(f'v_add_u32 v30, s6, v{vL16}')
        A('v_add_u32 v31, 16, v30'); A('v_add_u32 v29, 1024, v30')
        A(f'v_cmp_gt_i32 vcc, 0, v30'); A('v_bfrev_b32 v28, 1'); A('v_cndmask_b32 v30, v30, v28, vcc')
        A(f'v_cmp_gt_i32 vcc, 0, v31'); A('v_cndmask_b32 v31, v31, v28, vcc')
        A(f'buffer_load_dwordx4 {vr(vD,4)}, v30, {srd(SSM)}, 0 offen {fl}')
        A(f'buffer_load_dwordx2 {vr(vD+4,2)}, v31, {srd(SSM)}, 0 offen {fl}')
        A(f'buffer_load_dwordx4 {vr(vD+6,4)}, v29, {srd(SSM)}, 0 offen {fl}')
        A(f'buffer_load_dwordx2 {vr(vD+10,2)}, v29, {srd(SSM)}, 0 offen offset:16 {fl}')
        A(f'buffer_load_dwordx4 {vr(vD+12,4)}, v29, {srd(SSM)}, 0 offen offset:1024 {fl}')
        A(f'buffer_load_dwordx2 {vr(vD+16,2)}, v29, {srd(SSM)}, 0 offen offset:1040 {fl}')
        return o
    def copies_build(self):
        o = []; A = lambda t, **k: o.append(I(t, **k))
        A(f's_lshl_b32 s6, s{sW}, 14'); A(f's_add_u32 s6, s6, {L_C}'); A(f'v_add_u32 v{vU1}, s6, v{vL16}')
        for p in range(3):
            d = vD + 6 * p
            for i in range(4): A(f'v_alignbyte_b32 v{vCT+i}, v{d+i+1}, v{d+i}, 2')
            for i in range(4): A(f'v_mov_b32 v{vCT+4+i}, v{d+i+1}')
            for i in range(4): A(f'v_alignbyte_b32 v{vCT+8+i}, v{d+i+2}, v{d+i+1}, 2')
            w = [I(f'ds_write_b128 v{vU1}, {vr(vCT+4*c,4)} offset:{c*CSTR + 1024*p}') for c in range(3)]
            w.append(I(f'ds_write_b128 v{vU1}, {vr(d+2,4)} offset:{3*CSTR + 1024*p}'))
            if p < 2: o += w
            else: o.append([I('s_mov_b64 exec, 0xff')] + w + [I('s_mov_b64 exec, -1')])
        return o
    def kv_poll_addr(self):
        return [I(f'v_and_b32 v{vFl}, 15, v{vL}'), I(f'v_lshlrev_b32 v{vFl}, 3, v{vFl}'),
                I('s_lshr_b32 s14, s2, 5'), I('s_lshl_b32 s14, s14, 7'), I(f's_add_u32 s14, s14, {FL_KV}')]
    def kv_loads(self):
        o = []; A = lambda t, **k: o.append(I(t, **k))
        A(f's_lshr_b32 s5, s{sW}, 1'); A('s_lshl_b32 s6, s2, 1'); A('s_add_u32 s5, s5, s6'); A('s_lshl_b32 s5, s5, 12'); A(f's_add_u32 s5, s5, {WS_KVT}')
        for i in range(4): A(f'buffer_load_dwordx4 {vr(vKV+4*i,4)}, v{vL16}, {srd(SWS)}, s5 offen offset:{1024*i} sc1')
        return o
    def u_writes(self):
        o = []; A = lambda t, **k: o.append(I(t, **k))
        A(f's_and_b32 s5, s{sW}, 1'); A('s_mul_i32 s7, s5, 2304')
        A(f's_lshl_b32 s6, s{sW}, 14'); A(f's_add_u32 s6, s6, {L_C + UOFF + 15*144}'); A('s_add_u32 s6, s6, s7')
        A(f'v_lshrrev_b32 v30, 3, v{vL}'); A('v_mul_u32_u24 v30, 144, v30'); A(f'v_and_b32 v31, 7, v{vL}'); A('v_lshl_add_u32 v30, v31, 4, v30')
        A(f'v_add_u32 v{vU0}, s6, v30'); A('s_sub_u32 s7, 2304, s7'); A(f'v_add_u32 v{vU1}, s7, v{vU0}')
        for i in (2, 3): A(f'ds_write_b128 v{vU1}, {vr(vKV+4*i,4)} offset:{1152*(i-2)}')
        for i in (0, 1): A(f'ds_write_b128 v{vU0}, {vr(vKV+4*i,4)} offset:{1152*i}')
        return o
    def wd_poll_addr(self):
        return [I(f'v_and_b32 v{vFl}, 3, v{vL}'), I(f'v_lshlrev_b32 v{vFl}, 3, v{vFl}'),
                I(f's_lshl_b32 s14, s{sDB}, 7'), I(f's_lshl_b32 s15, s{sW}, 5'), I('s_add_u32 s14, s14, s15'), I(f's_add_u32 s14, s14, {FL_WD}')]

    def gemm1(self):
        O = self.o
        o = self.gemm_prologue()
        flat = lambda L: [y for x in L for y in (x if isinstance(x, list) else [x])]
        o += flat(self.dma_x(0)) + flat(self.dma_w(0)) + self.adv_w(1) + flat(self.dma_w(1))
        if O['codepf']:
            o += self.code_prefetch()
        o += self.stamp(0)
        o += self.gemm_addr()
        o += self.mk_srd(SHS, P_WS, WS_SIZE)
        o += [WAITVM(['x0', 'w0']), I('s_barrier')] + self.stamp(1) + self.frag_reads(0)
        W = Weave()
        for S in range(32):
            st = S & 1
            for i in range(8):
                a, b = i >> 1, i & 1
                acc = ACC1 + 32 * a + 16 * b
                c = '0' if S == 0 else vr(acc, 16)
                m = I(f'v_mfma_f32_32x32x16_bf16 {vr(acc,16)}, {vr(FA[st]+4*a,4)}, {vr(FB[st]+4*b,4)}, {c}',
                      expect=[(regs('v', FA[st]+4*a, 4), f'A{S}_{a}'), (regs('v', FB[st]+4*b, 4), f'B{S}_{b}')])
                pre = []
                if i == 0 and st == 1 and S < 31:
                    H = (S + 1) >> 1
                    pre = [WAITLGKM0(), WAITVM([f'w{H}', f'x{H>>1}']), I('s_barrier')]
                W.mfma(m, pre)
        for S in range(31): W.place(self.frag_reads(S + 1), 8 * S, per_gap=2)
        pstart = lambda H: max(0, 8 * (2 * H - 1))
        g = 0
        for H in range(14):
            items = []
            if H % 2 == 0 and H // 2 + 1 < 8:
                items += [[x] for x in self.adv_x(H // 2 + 1)] + self.dma_x(H // 2 + 1)
            items += [[x] for x in self.adv_w(H + 2)] + self.dma_w(H + 2)
            stream('dma', items)
            g = max(g, pstart(H))
            for it in items:
                isd = any(x.kind == 'vmem' for x in it) if isinstance(it, list) else it.kind == 'vmem'
                g = W.place([it], g)
                if isd and H > 0: g += O['dma_gap']
            assert g <= pstart(H + 2), (H, g)
        g = W.place(stream('late', self.late_setup()), pstart(1) + 8)
        g = W.place(stream('zero', self.zero_fill()), g)
        assert g < pstart(O['p_nonce']), g
        W.place(stream('nonce', [self.nonce_issue()]), pstart(O['p_nonce']) + 9)
        W.place(stream('nonce', [self.nonce_check()]), pstart(O['p_nonce'] + 2) + 5)
        W.place(stream('ssm', self.ssm_loads()), pstart(O['p_ssm']) + 7)
        g = W.place(stream('kvp', self.kv_poll_addr() + [self.poll_issue(14, 'kvp')]), pstart(O['p_kv']) + 9)
        g = W.place(stream('kvp', [self.poll_check(14)] + self.kv_loads()), pstart(O['p_kv'] + 1) + 8)
        g = W.place(stream('wdp', self.wd_poll_addr() + [self.poll_issue(14, 'wdp')]), max(g, pstart(O['p_wdpoll'])))
        g = W.place(stream('cop', self.copies_build()), max(g, pstart(14) + 4))
        g = W.place(stream('uw', self.u_writes()), max(g, 8 * 31))
        o += W.flatten()
        o += self.stamp(2)
        o += stream('wdp', self.poll_check(14))
        return o

    def code_prefetch(self):
        o = []; A = lambda t, **k: o.append(I(t, **k))
        sk = self.lab('pf'); pc = self.lab('pc')
        A(f's_cmp_lg_u32 s{sW}, 3'); A(f's_cbranch_scc1 {sk}')
        A('s_getpc_b64 s[6:7]'); A(f'{pc}:')
        A(f's_sub_u32 s6, s6, {pc}-{NAME}_kernel'); A('s_subb_u32 s7, s7, 0')
        A('s_lshr_b32 s3, s2, 3'); A('s_and_b32 s3, s3, 7'); A('s_mul_i32 s3, s3, 5120')
        A(f'v_min_u32 v28, 39, v{vL}'); A('v_lshlrev_b32 v28, 7, v28'); A('v_add_u32 v28, s3, v28')
        A(f'v_min_u32 v28, L_codeend-{NAME}_kernel-4, v28')
        o.append(RAW('global_load_dword v127, v28, s[6:7]'))
        A(f'{sk}:')
        return o

    def conv(self, W):
        O = self.o
        pre = []
        def ra(sg):
            d = CA + 4 * (sg % 6)
            return [I(f'ds_read_b64 {vr(d+2*j,2)}, v{vCA} offset:{32*sg + 8*j}', tag=f'cA{sg}') for j in range(2)]
        def rb(st):
            d = CBR + 4 * (st % 4)
            return I(f'ds_read_b128 {vr(d,4)}, v{vCB} offset:{(15-(st>>2))*144 + 32*(3-(st&3))}', tag=f'cB{st}')
        pre += ra(0) + [rb(0)] + ra(2) + ra(1) + [rb(1)] + ra(3)
        base = len(W.spine)
        for st in range(64):
            for m in range(2):
                sg = st + 2 * m
                acc = aCV + 16 * m
                c = '0' if st == 0 else ar(acc, 16)
                W.mfma(I(f'v_mfma_f32_32x32x16_bf16 {ar(acc,16)}, {vr(CA+4*(sg%6),4)}, {vr(CBR+4*(st%4),4)}, {c}',
                         expect=[(regs('v', CA+4*(sg%6), 4), f'cA{sg}'), (regs('v', CBR+4*(st%4), 4), f'cB{st}')]), pre if (st == 0 and m == 0) else None)
        for st in range(64):
            it = []
            if st + 2 < 64: it.append(rb(st + 2))
            if st + 4 < 66: it += ra(st + 4)
            W.place(it[:2], base + 2 * st); W.place(it[2:], base + 2 * st + 1)
        return base

    def h_epilogue(self):
        o = []
        for a in range(4):
            for b in range(2):
                R = ACC1 + 32 * a + 16 * b
                for h in (0, 8):
                    for i in range(4): o.append(I(f'v_max_f32 v{R+h+i}, 0, v{R+h+i}'))
                    for i in range(4): o.append(I(f'v_mul_f32 v{R+h+i}, v{R+h+i}, v{R+h+4+i}'))
                for q, src in enumerate((0, 2, 8, 10)): o.append(I(f'v_cvt_pk_bf16_f32 v{R+4+q}, v{R+src}, v{R+src+1}'))
                so = sHo0 if a < 2 else sHo1
                o.append(I(f'buffer_store_dwordx4 {vr(R+4,4)}, v{vL16}, {srd(SHS)}, s{so} offen offset:{(a&1)*2048 + b*1024} sc1', tag='hst'))
        return o
    def wd_loads(self):
        o = []
        for s in range(28):
            for dt in range(2):
                o.append(I(f'buffer_load_dwordx4 {ar(aWD+8*s+4*dt,4)}, v{vG0+dt}, {srd(SWS)}, s{sG+(s>>1)} offen offset:{(s&1)*2048} sc1', tag=f'wd{s}_{dt}'))
        return o
    def h_load(self, i):
        p, s = divmod(i, 28)
        return I(f'buffer_load_dwordx4 {vr(HR+4*(i%NHR),4)}, v{vHl}, {srd(SWS)}, s{sG+(s>>1)} offen offset:{(s&1)*2048 + p*1024} sc1', tag=f'h{i}')
    def h_poll_addr(self):
        return [I(f'v_min_u32 v{vFl}, 6, v{vL}'), I(f'v_lshlrev_b32 v{vFl}, 3, v{vFl}'),
                I(f's_lshl_b32 s14, s{sTB}, 8'), I(f's_mul_i32 s15, s{sW}, 56'), I('s_add_u32 s14, s14, s15'), I(f's_add_u32 s14, s14, {FL_H}')]

    def conv_epilogue(self):
        a = []; A = lambda t, **k: a.append(I(t, **k))
        A(f's_lshl_b32 s6, s{sW}, 14'); A(f's_add_u32 s6, s6, {L_C}')
        A(f'v_and_b32 v30, 31, v{vL}'); A('v_mul_u32_u24 v30, 272, v30'); A(f'v_lshrrev_b32 v31, 5, v{vL}'); A('v_lshl_add_u32 v30, v31, 4, v30'); A('v_add_u32 v30, s6, v30')
        addr = a; a = []
        for m in range(2):
            for g in range(4): A(f'ds_write_b128 v30, {ar(aCV+16*m+4*g,4)} offset:{(32*m+8*g)*4}')
        wr = a; a = []
        A(f's_and_b32 s5, s{sW}, 2'); A('s_lshl_b32 s5, s5, 14'); A(f's_add_u32 s5, s5, {L_C}')
        A(f's_and_b32 s7, s{sW}, 1'); A('s_lshl_b32 s7, s7, 4')
        A(f'v_lshrrev_b32 v28, 3, v{vL}'); A('v_add_u32 v28, s7, v28'); A(f'v_and_b32 v29, 7, v{vL}')
        A('v_mul_u32_u24 v31, 272, v28'); A('v_lshl_add_u32 v31, v29, 5, v31'); A(f'v_add_u32 v{vGG}, s5, v31')
        A('v_mul_u32_u24 v31, 144, v28'); A('v_lshl_add_u32 v31, v29, 4, v31'); A(f's_add_u32 s5, s5, {UOFF + 15*144}'); A(f'v_add_u32 v{vGG+1}, s5, v31')
        A(f's_lshr_b32 s5, s{sW}, 1'); A('s_lshl_b32 s6, s2, 1'); A('s_add_u32 s5, s5, s6')
        A(f's_and_b32 s7, s{sW}, 1'); A('s_lshl_b32 s12, s5, 12'); A('s_lshl_b32 s8, s7, 11'); A('s_add_u32 s12, s12, s8'); A(f's_add_u32 s12, s12, {WS_YT}')
        A('s_lshr_b32 s8, s5, 6'); A('s_lshl_b32 s8, s8, 1'); A('s_add_u32 s8, s8, s7'); A('s_lshl_b32 s8, s8, 9'); A('s_and_b32 s11, s5, 63'); A('s_lshl_b32 s11, s11, 3')
        A('s_add_u32 s11, s11, s8'); A(f's_add_u32 s11, s11, {FL_Y}')
        addr2 = a; a = []
        P0 = vXR; P1 = vXR + 8; U = vXR + 16; T = vXR + 20; Y = vXR + 24
        for rho in range(2):
            for x in range(2): A(f'ds_read_b128 {vr(P0+4*x,4)}, v{vGG} offset:{rho*2176 + 16*x}')
            for x in range(2): A(f'ds_read_b128 {vr(P1+4*x,4)}, v{vGG} offset:{16384 + rho*2176 + 16*x}')
            A(f'ds_read_b128 {vr(U,4)}, v{vGG+1} offset:{rho*1152}')
            for e in range(8): A(f'v_add_f32 v{P0+e}, v{P0+e}, v{P1+e}')
            for q in range(4):
                A(f'v_lshlrev_b32 v{T}, 16, v{U+q}'); A(f'v_and_b32 v{T+1}, s{sMASK}, v{U+q}')
                A(f'v_fmac_f32 v{P0+7-2*q}, s{sD}, v{T}'); A(f'v_fmac_f32 v{P0+6-2*q}, s{sD}, v{T+1}')
            for q in range(4): A(f'v_cvt_pk_bf16_f32 v{Y+4*rho+q}, v{P0+2*q}, v{P0+2*q+1}')
            A(f'buffer_store_dwordx4 {vr(Y+4*rho,4)}, v{vL16}, {srd(SWS)}, s12 offen offset:{1024*rho} sc1', tag='yst')
        return addr, wr, addr2, a

    def exch_write(self, p):
        o = []
        for j, (dt, gp, m) in enumerate(((0, 1, 2), (1, 0, 1), (1, 1, 3))):
            R = ACC2 + 32 * p + 16 * dt + 8 * gp
            for x in range(2): o.append(I(f'ds_write_b128 v{vE+j}, {vr(R+4*x,4)} offset:{p*24576 + j*2048 + 1024*x}'))
        return o
    def exch_read(self, p):
        return [I(f'ds_read_b128 {vr(vXR+8*j+4*x,4)}, v{vE+3} offset:{p*24576 + j*2048 + 1024*x}') for j in range(3) for x in range(2)]
    def exch_sum(self, p, dst):
        o = []; R = ACC2 + 32 * p
        for e in range(8): o.append(I(f'v_add_f32 v{vXR+e}, v{vXR+e}, v{vXR+8+e}'))
        for e in range(8): o.append(I(f'v_add_f32 v{dst+e}, v{R+e}, v{vXR+16+e}'))
        for e in range(8): o.append(I(f'v_add_f32 v{dst+e}, v{dst+e}, v{vXR+e}'))
        return o
    def final_addr(self):
        o = []; A = lambda t, **k: o.append(I(t, **k))
        for j, m in enumerate((2, 1, 3)):
            A(f's_xor_b32 s5, s{sW}, {m}'); A('s_mul_i32 s5, s5, 6144'); A(f'v_add_u32 v{vE+j}, s5, v{vL16}')
        A(f's_mul_i32 s5, s{sW}, 6144'); A(f'v_add_u32 v{vE+3}, s5, v{vL16}')
        return o
    def q_dma(self):
        o = []; A = lambda t, **k: o.append(I(t, **k))
        A(f's_lshl_b32 s5, s{sTB}, 16'); A(f's_lshl_b32 s6, s{sW}, 14'); A('s_add_u32 s5, s5, s6'); A(f's_lshl_b32 s6, s{sDB}, 7'); A('s_add_u32 s5, s5, s6')
        A(f's_lshr_b32 s6, s{sW4K}, 1'); A(f's_add_u32 m0, s6, {L_Q}')
        for n in range(2): A(f'buffer_load_dwordx4 v{vX+n}, {srd(SX)}, s5 offen offset:{1024*n} lds', tag='q')
        return o
    def y_poll_addr(self):
        o = []; A = lambda t, **k: o.append(I(t, **k))
        A(f's_and_b32 s10, s{sW}, 1'); A('s_lshl_b32 s10, s10, 1'); A(f's_lshr_b32 s15, s{sW}, 1'); A('s_add_u32 s10, s10, s15')
        A(f'v_and_b32 v{vFl}, 15, v{vL}'); A(f'v_lshlrev_b32 v{vFl}, 3, v{vFl}')
        A(f's_lshl_b32 s14, s{sDB}, 1'); A(f's_lshr_b32 s15, s{sTB}, 4'); A('s_add_u32 s14, s14, s15'); A('s_lshl_b32 s14, s14, 9')
        A('s_lshl_b32 s15, s10, 7'); A('s_add_u32 s14, s14, s15'); A(f's_add_u32 s14, s14, {FL_Y}')
        return o
    def y_dma(self):
        o = []; A = lambda t, **k: o.append(I(t, **k))
        A(f'v_lshrrev_b32 v28, 3, v{vL}'); A('v_lshlrev_b32 v28, 12, v28'); A(f'v_and_b32 v29, 7, v{vL}'); A('v_lshl_add_u32 v28, v29, 4, v28')
        A(f'v_add_u32 v29, {8*4096 - 1024}, v28')
        A(f's_lshl_b32 s5, s{sDB}, 18'); A('s_lshl_b32 s6, s10, 16'); A('s_add_u32 s5, s5, s6'); A(f's_lshl_b32 s6, s{sTB}, 7'); A('s_add_u32 s5, s5, s6'); A(f's_add_u32 s5, s5, {WS_YT}')
        A('s_lshl_b32 s6, s10, 11'); A(f's_add_u32 m0, s6, {L_Y}')
        for n in range(2): A(f'buffer_load_dwordx4 v{28+n}, {srd(SWS)}, s5 offen offset:{1024*n} sc1 lds', tag='y')
        return o
    def g_poll_addr(self):
        return [I(f'v_and_b32 v{vFl}, 3, v{vL}'), I(f'v_lshlrev_b32 v{vFl}, 3, v{vFl}'), I(f's_lshl_b32 s14, s{sTB}, 7'), I(f's_add_u32 s14, s14, {FL_G}')]
    def g_loads(self):
        o = []; A = lambda t, **k: o.append(I(t, **k))
        A(f'v_and_b32 v28, 31, v{vL}'); A('v_lshlrev_b32 v28, 2, v28'); A(f's_lshl_b32 s5, s{sTB}, 8'); A(f's_add_u32 s5, s5, {WS_G}')
        for p in range(2): A(f'buffer_load_dword v{vGG+p}, v28, {srd(SWS)}, s5 offen offset:{128*p} sc1')
        return o
    def a_part(self):
        o = []; A = lambda t, **k: o.append(I(t, **k))
        Q = vXR + 24; Yv = vXR + 28; T = vXR + 24
        A(f'v_lshrrev_b32 v28, 5, v{vL}'); A(f'v_bfe_u32 v29, v{vL}, 2, 2'); A('v_lshl_or_b32 v28, v28, 2, v29'); A('v_lshlrev_b32 v28, 7, v28')
        A(f'v_bfe_u32 v29, v{vL}, 4, 1'); A('v_lshl_or_b32 v28, v29, 5, v28'); A(f'v_and_b32 v29, 3, v{vL}'); A('v_lshl_or_b32 v28, v29, 3, v28')
        A('s_lshl_b32 s6, s10, 11'); A(f's_add_u32 s6, s6, {L_Y}'); A('v_add_u32 v28, s6, v28')
        A(f'v_bfe_u32 v29, v{vL}, 1, 3'); A('s_lshl_b32 s6, s10, 1'); A('v_xor_b32 v29, s6, v29')
        A(f'v_and_b32 v30, 31, v{vL}'); A('v_lshlrev_b32 v30, 7, v30'); A(f'v_lshrrev_b32 v31, 5, v{vL}'); A('v_lshl_or_b32 v30, v31, 3, v30'); A(f'v_add_u32 v30, {L_Q}, v30')
        A('v_xor_b32 v31, 1, v29'); A('v_lshl_add_u32 v29, v29, 4, v30'); A('v_lshl_add_u32 v30, v31, 4, v30')
        o.append(WAITVM('y'))
        QY = 120
        GF = 31
        for p in range(2):
            for gq in range(2):
                A(f'ds_read_b64 {vr(QY+2*gq,2)}, v{29+gq} offset:{4096*p}')
                A(f'ds_read_b64_tr_b16 {vr(QY+4+2*gq,2)}, v28 offset:{1024*gq + 64*p}')
            A(f'v_lshlrev_b32 v{GF}, 16, v{vGG+p}'); A(f'v_and_b32 v{vGG+p}, s{sMASK}, v{vGG+p}')
            for gq in range(2):
                for h in range(2):
                    d = vGA + 8 * p + 4 * gq + 2 * h
                    q, y = QY + 2 * gq + h, QY + 4 + 2 * gq + h
                    A(f'v_lshlrev_b32 v{d}, 16, v{q}'); A(f'v_and_b32 v{d+1}, s{sMASK}, v{q}')
                    A(f'v_lshlrev_b32 v{q}, 16, v{y}'); A(f'v_and_b32 v{y}, s{sMASK}, v{y}')
                    A(f'v_mul_f32 v{d}, v{d}, v{q}'); A(f'v_mul_f32 v{d+1}, v{d+1}, v{y}')
                    A(f'v_mul_f32 v{d}, v{d}, v{GF}'); A(f'v_mul_f32 v{d+1}, v{d+1}, v{GF}')
        return o
    def out_addr(self):
        o = []; A = lambda t, **k: o.append(I(t, **k))
        A(f'v_and_b32 v28, 31, v{vL}'); A('v_lshlrev_b32 v28, 10, v28'); A(f'v_lshrrev_b32 v29, 5, v{vL}'); A(f'v_lshl_or_b32 v{vE+4}, v29, 4, v28')
        A(f's_lshl_b32 s15, s{sTB}, 16'); A(f's_lshl_b32 s5, s{sDB}, 7'); A('s_add_u32 s15, s15, s5'); A('s_lshl_b32 s5, s10, 5'); A('s_add_u32 s15, s15, s5')
        A('s_add_u32 s9, s15, 32768')
        return o
    def out_store(self, p, B):
        o = []; A = lambda t, **k: o.append(I(t, **k))
        G = vGA + 8 * p
        for e in range(8): A(f'v_fmac_f32 v{G+e}, v{vGG+p}, v{B+e}')
        for q in range(4): A(f'v_cvt_pk_bf16_f32 v{B+q}, v{G+2*q}, v{G+2*q+1}')
        A(f'v_permlane32_swap_b32 v{B}, v{B+2}'); A(f'v_permlane32_swap_b32 v{B+1}, v{B+3}')
        A(f'buffer_store_dwordx4 {vr(B,4)}, v{vE+4}, {srd(SOUT)}, s{15 if p == 0 else 9} offen')
        return o

    def tail(self):
        O = self.o
        W = Weave()
        cb = self.conv(W)
        gb = len(W.spine)
        for i in range(56):
            p, s = divmod(i, 28)
            for dt in range(2):
                acc = ACC2 + 32 * p + 16 * dt
                c = '0' if s == 0 else vr(acc, 16)
                W.mfma(I(f'v_mfma_f32_32x32x16_bf16 {vr(acc,16)}, {ar(aWD+8*s+4*dt,4)}, {vr(HR+4*(i%NHR),4)}, {c}',
                         expect=[(regs('a', aWD+8*s+4*dt, 4), f'wd{s}_{dt}'), (regs('v', HR+4*(i%NHR), 4), f'h{i}')]))
        cg = lambda st: cb + 2 * st
        for k, x in enumerate(self.wd_loads()): W.place([x], cg(k) + 1)
        g = W.place(self.h_epilogue(), cg(O['epi_start']))
        g = W.place(stream('hfl', [self.flag_store('hst', 13, SHS)]), g + 2 * O['hflag_delay'])
        assert g < cg(O['hpoll']), g
        W.place(stream('fa', self.final_addr() + self.q_dma()), g + 1)
        W.place(stream('hp', self.h_poll_addr() + [self.poll_issue(14, 'hp')]), cg(O['hpoll']))
        g = W.place(stream('hp', [self.poll_check(14)]), cg(O['hcheck']))
        addr, wr, addr2, post = [stream('ce', z) for z in self.conv_epilogue()]
        g2 = W.place(addr + addr2, g + 1)
        assert g2 < gb
        npre = 0; g = max(g + 1, cg(56))
        while g < gb and npre < NHR:
            W.place([self.h_load(npre)], g); npre += 1; g += 1
        for i in range(npre, 56):
            earliest = gb + 2 * (i - NHR) + 1 if i >= NHR else gb
            pos = max(earliest, gb + 2 * (i - npre))
            W.place([self.h_load(i)], pos)
        g = W.place(wr, gb + 1)
        g = W.place([[WAITLGKM0(), I('s_barrier')]], g + 2)
        g = W.place(post, g)
        if O['prof']: W.place(self.stamp(5), g)
        g = W.place(stream('gp', self.g_poll_addr() + [self.poll_issue(14, 'gp')]), max(g, gb + O['gpoll']))
        g = W.place(stream('ce', [self.flag_store('yst', 11)]), g + 12)
        g = W.place(stream('gp', [self.poll_check(14)] + self.g_loads()), g + 1)
        g = W.place(stream('y', self.y_poll_addr() + [self.poll_issue(14, 'yp')]), max(g, gb + O['ypoll']))
        g = W.place(self.exch_write(0), max(g, gb + 56 + 3))
        g = W.place([[WAITLGKM0(), WAITVM('q'), I('s_barrier')]], g + 3)
        g = W.place(self.exch_read(0), g)
        g = W.place(self.exch_sum(0, vBS), g + 2)
        g = W.place(stream('y', [self.poll_check(14)] + self.y_dma()), max(g, gb + O['ycheck']))
        g = W.place(stream('y', self.out_addr()), g)
        g = W.place(stream('y', self.a_part()), max(g + 10, gb + 92))
        if O['prof']:
            W.gaps[cb].append(self.stamp(3)[0]); W.gaps[gb].append(self.stamp(4)[0])
        o = W.flatten()
        o += self.stamp(6)
        o += stream('y', self.out_store(0, vBS))
        o += self.exch_write(1) + [WAITLGKM0(), I('s_barrier')] + self.exch_read(1) + self.exch_sum(1, vBS) + stream('y', self.out_store(1, vBS))
        if O['prof']:
            o += self.stamp(7) + [DRAIN()] + self.stamp(8) + [I('s_waitcnt lgkmcnt(0)')]
            o += [I('s_lshl_b32 s5, s2, 2'), I(f's_add_u32 s5, s5, s{sW}'), I('s_lshl_b32 s5, s5, 6'), I(f's_add_u32 s5, s5, {WS_PROF}'), I('v_mov_b32 v28, 0'), I('s_mov_b64 exec, 1')]
            for k, r in enumerate(STAMPS):
                o += [I(f'v_mov_b32 v29, s{r}'), I(f'buffer_store_dword v29, v28, {srd(SWS)}, s5 offen offset:{4*k}')]
            o += [I('s_memrealtime s[6:7]'), I('s_waitcnt lgkmcnt(0)'), I('v_mov_b32 v29, s6'), I(f'buffer_store_dword v29, v28, {srd(SWS)}, s5 offen offset:40')]
        return o

    def helper(self):
        O = self.o
        o = []; A = lambda t, **k: o.append(I(t, **k))
        A('L_helper:')
        sHX, sHD, sHQ = 2, 8, 9
        A('s_and_b32 s8, s2, 7'); A('s_lshr_b32 s9, s2, 3')
        KB = 35904
        A(f's_mul_i32 s10, s{sW}, {KB}')
        A(f'v_lshrrev_b32 v28, 3, v{vL}'); A(f'v_and_b32 v29, 7, v{vL}'); A('v_lshlrev_b32 v30, 10, v28'); A('v_lshl_add_u32 v32, v29, 4, v30')
        A('s_lshl_b32 s11, s9, 2'); A(f's_add_u32 s11, s11, s{sW}')
        A('s_lshl_b32 s12, s11, 17'); A('s_lshl_b32 s13, s8, 7'); A('s_add_u32 s12, s12, s13')
        A('s_cmp_eq_u32 s11, 0'); A('s_cselect_b32 s13, 0x80000000, 0'); A('v_or_b32 v33, s13, v32')
        A('s_cselect_b32 s13, 0, 8192'); A('s_sub_u32 s13, s12, s13')
        A('s_waitcnt lgkmcnt(0)')
        o += self.mk_srd(SWS, P_WS, WS_SIZE)
        o += self.mk_srd(SA, P_K, 0x200000) + self.mk_srd(SB, P_V, 0x200000) + self.mk_srd(SX, P_Q, 0x200000)
        sk = self.lab('np')
        A(f's_or_b32 s3, s2, s{sW}'); A('s_cmp_lg_u32 s3, 0'); A(f's_cbranch_scc1 {sk}')
        o.append(RAW(f'v_mov_b32 v28, {FL_KV}\nbuffer_load_dwordx2 v[24:25], v28, {srd(SWS)}, 0 offen sc1'))
        A(f'{sk}:')
        fl = O['ldkv']
        A(f's_mov_b32 m0, s10')
        A(f'buffer_load_dwordx4 v33, {srd(SA)}, s13 offen {fl} lds', tag='np0')
        sk = self.lab('np')
        def blk(b):
            r = [I(f's_add_u32 m0, s10, {(b+1)*1088}'), I(f's_add_u32 s14, s12, {b*8192}'),
                 I(f'buffer_load_dwordx4 v32, {srd(SA)}, s14 offen {fl} lds', tag=f'kv{b>>3}'),
                 I(f's_add_u32 m0, s10, {(17+b)*1088}'), I('s_nop 0'),
                 I(f'buffer_load_dwordx4 v32, {srd(SB)}, s14 offen {fl} lds', tag=f'kv{b>>3}')]
            return r
        for b in range(8): o += blk(b)
        A('s_cmp_lg_u32 s3, 0'); A(f's_cbranch_scc1 {sk}')
        o.append(RAW('s_waitcnt vmcnt(17)\nv_add_u32 v24, 0x9E3779B8, v24\nv_or_b32 v24, 1, v24\nv_add_u32 v25, 0x7F4A7C15, v25\nv_mov_b32 v28, 0\n'
                     f's_mov_b64 exec, 1\nglobal_store_dwordx2 v28, v[24:25], {sp(P_DBG)} sc1\ns_mov_b64 exec, -1'))
        A(f'{sk}:')
        A(f'v_lshrrev_b32 v28, 3, v{vL}'); A('v_lshlrev_b32 v30, 6, v28'); A('s_lshl_b32 s15, s8, 9'); A('v_add_u32 v30, s15, v30')
        for i in range(4): A(f'global_load_dwordx4 {vr(64+4*i,4)}, v30, {sp(P_SK)} offset:{16*i}')
        for b in range(8, 16): o += blk(b)
        if O['codepf']: o += stream('pf', self.code_prefetch())
        o += self.stamp(0)
        o += stream('nonce', self.nonce_issue())
        S0 = 32
        A(f'v_lshrrev_b32 v28, 3, v{vL}')
        A(f'v_and_b32 v29, 7, v{vL}'); A('v_mul_u32_u24 v31, 1088, v29'); A('v_lshl_add_u32 v31, v28, 4, v31'); A('v_add_u32 v31, s10, v31')
        A('v_lshlrev_b32 v30, 15, v28'); A('v_lshl_add_u32 v30, v29, 4, v30')
        A('s_lshl_b32 s12, s8, 18'); A('s_lshl_b32 s13, s11, 8'); A('s_add_u32 s12, s12, s13'); A(f's_add_u32 s12, s12, {WS_KVT}')
        KR = 128; VR = 172; KF = 80; VF = 112; RS = 204; PO = 220
        for x in range(2):
            o.append(WAITVM(['np0', f'kv{x}']))
            for i in range(-3, 8):
                off = (8*x + 1) * 1088 + i * 128 if i >= 0 else 8*x * 1088 + (8 + i) * 128
                A(f'ds_read_b128 {vr(KR+4*(i+3),4)}, v31 offset:{off}')
                if i >= 0: A(f'ds_read_b128 {vr(VR+4*i,4)}, v31 offset:{(17+8*x)*1088 + i*128}')
            if x == 0:
                for e in range(8):
                    for j in range(4):
                        src = 64 + 2 * e + (j >> 1)
                        if j & 1: A(f'v_and_b32 v{S0+8*j+e}, s{sMASK}, v{src}')
                        else: A(f'v_lshlrev_b32 v{S0+8*j+e}, 16, v{src}')
            def unpackk(i):
                for m in range(4):
                    d = KF + 8 * ((i + 4) & 3) + 2 * m
                    A(f'v_lshlrev_b32 v{d}, 16, v{KR+4*(i+3)+m}'); A(f'v_and_b32 v{d+1}, s{sMASK}, v{KR+4*(i+3)+m}')
            for i in range(-3, 0): unpackk(i)
            for i in range(8):
                unpackk(i)
                for m in range(4):
                    A(f'v_lshlrev_b32 v{VF+2*m}, 16, v{VR+4*i+m}'); A(f'v_and_b32 v{VF+2*m+1}, s{sMASK}, v{VR+4*i+m}')
                R = RS + 8 * (i & 1)
                kf = lambda j, m: vr(KF + 8 * ((i - j + 4) & 3) + 2 * m, 2)
                for m in range(4): A(f'v_pk_mul_f32 {vr(R+2*m,2)}, {kf(3,m)}, {vr(S0+24+2*m,2)}')
                for j in (2, 1, 0):
                    for m in range(4): A(f'v_pk_fma_f32 {vr(R+2*m,2)}, {kf(j,m)}, {vr(S0+8*j+2*m,2)}, {vr(R+2*m,2)}')
                for m in range(4): A(f'v_pk_mul_f32 {vr(R+2*m,2)}, {vr(R+2*m,2)}, {vr(VF+2*m,2)}')
                if i & 1:
                    q = (7 - i) // 2
                    for e in range(8): A(f'v_cvt_pk_bf16_f32 v{PO+4*e+q}, v{RS+8+e}, v{RS+e}')
            for e in range(8):
                A(f's_add_u32 s14, s12, {e*4096 + 128*x}')
                A(f'buffer_store_dwordx4 {vr(PO+4*e,4)}, v30, {srd(SWS)}, s14 offen sc1', tag='kvst')
            if x == 0: o += stream('nonce', self.nonce_check())
        o += self.stamp(1)
        o += self.mk_srd(SA, P_WD, 1792*1024)
        A(f'v_lshrrev_b32 v28, 3, v{vL}'); A(f'v_bfe_u32 v29, v{vL}, 4, 1'); A('v_lshlrev_b32 v29, 2, v29'); A(f'v_and_b32 v32, 7, v{vL}'); A('v_xor_b32 v29, v29, v32')
        A('v_lshlrev_b32 v28, 10, v28'); A('v_lshl_add_u32 v32, v29, 4, v28')
        A('s_mul_i32 s12, s9, 448'); A(f's_mul_i32 s13, s{sW}, 112'); A('s_add_u32 s12, s12, s13'); A('s_lshl_b32 s12, s12, 10'); A('s_lshl_b32 s13, s8, 7'); A('s_add_u32 s12, s12, s13')
        fl = O['ldwd']
        for b in range(14):
            o += ([I(f's_add_u32 m0, s10, {b*1024}'), I(f's_add_u32 s14, s12, {b*8192}'), I(f'buffer_load_dwordx4 v32, {srd(SA)}, s14 offen {fl} lds', tag=f'wdl{b>>1}')])
        A('s_lshl_b32 s13, s8, 7'); A('s_lshl_b32 s14, s9, 5'); A('s_add_u32 s13, s13, s14'); A(f's_lshl_b32 s14, s{sW}, 3'); A('s_add_u32 s13, s13, s14')
        A(f's_add_u32 s15, s13, {FL_WD}'); A(f's_add_u32 s13, s13, {FL_KV}')
        o += stream('fl', self.flag_store('kvst', 13))
        A(f's_lshl_b32 s12, s2, 16'); A(f's_lshl_b32 s13, s{sW}, 14'); A('s_add_u32 s12, s12, s13')
        A(f'v_lshrrev_b32 v28, 5, v{vL}'); A(f'v_bfe_u32 v29, v{vL}, 2, 2'); A('v_lshl_or_b32 v28, v28, 2, v29'); A('v_lshlrev_b32 v28, 7, v28'); A('v_add_u32 v28, s10, v28')
        A(f'v_and_b32 v29, 1, v{vL}'); A('v_lshl_add_u32 v28, v29, 3, v28')
        A(f'v_bfe_u32 v29, v{vL}, 4, 1'); A(f'v_bfe_u32 v30, v{vL}, 1, 1'); A('v_lshl_or_b32 v29, v29, 1, v30')
        A(f'v_bfe_u32 v30, v{vL}, 3, 1'); A('v_lshl_or_b32 v29, v30, 2, v29')
        A('v_lshl_add_u32 v30, v29, 4, v28'); A('v_xor_b32 v29, 4, v29'); A('v_lshl_add_u32 v31, v29, 4, v28')
        A('s_mul_i32 s13, s8, 112'); A('s_mul_i32 s14, s9, 28'); A('s_add_u32 s13, s13, s14'); A(f's_mul_i32 s14, s{sW}, 7'); A('s_add_u32 s13, s13, s14')
        A('s_lshl_b32 s13, s13, 11'); A(f's_add_u32 s13, s13, {WS_WDF}')
        for fs in range(7):
            o.append(WAITVM(f'wdl{fs}'))
            for dt in range(2):
                for j in range(2): A(f'ds_read_b64_tr_b16 {vr(128+8*fs+4*dt+2*j,2)}, v{30+dt} offset:{(16*fs+8*j)*128}')
            if fs: A('s_add_u32 s13, s13, 2048')
            for dt in range(2): A(f'buffer_store_dwordx4 {vr(128+8*fs+4*dt,4)}, v{vL16}, {srd(SWS)}, s13 offen offset:{1024*dt} sc1', tag='wdst')
        A(f'global_load_dwordx4 {vr(32,4)}, v{vL16}, {sp(P_GW)}')
        for i in range(16):
            if i % 4 == 0 and i: A('s_add_u32 s12, s12, 4096')
            A(f'buffer_load_dwordx4 {vr(192+4*i,4)}, v{vL16}, {srd(SX)}, s12 offen offset:{1024*(i&3)}')
        o += stream('fl', self.flag_store('wdst', 15))
        o += self.stamp(2)
        Z = 36
        for i in range(16):
            R = 192 + 4 * i
            A(f'v_dot2_f32_bf16 v{Z+i}, v{R}, v32, 0')
            for m in range(1, 4): A(f'v_dot2_f32_bf16 v{Z+i}, v{R+m}, v{32+m}, v{Z+i}')
        for sh in (8, 4, 2, 1):
            for i in range(16): A(f'v_add_f32_dpp v{Z+i}, v{Z+i}, v{Z+i} row_ror:{sh} row_mask:0xf bank_mask:0xf')
        A('s_mov_b32 s4, 0x00010001'); A('s_mov_b32 s5, 0x00010001'); A(f'v_mov_b32 v52, v{Z}')
        for i in range(1, 16):
            A('s_lshl_b64 s[4:5], s[4:5], 1'); A(f'v_cndmask_b32 v52, v52, v{Z+i}, s[4:5]')
        A('v_mov_b32 v53, v52'); A('v_permlane32_swap_b32 v52, v53'); A('v_add_f32 v52, v52, v53')
        A('v_mov_b32 v53, v52'); A('v_permlane16_swap_b32 v52, v53'); A('v_add_f32 v52, v52, v53')
        A('v_cvt_pk_bf16_f32 v52, v52, v52'); A(f'v_and_b32 v52, s{sMASK}, v52')
        A('v_mul_f32 v52, 0xbfb8aa3b, v52'); A('v_exp_f32 v52, v52'); A('v_add_f32 v52, 1.0, v52'); A('v_rcp_f32 v52, v52')
        A('v_cvt_pk_bf16_f32 v52, v52, v52'); A(f'v_and_b32 v52, s{sMASK}, v52'); A('v_sub_f32 v53, 1.0, v52'); A('v_cvt_pk_bf16_f32 v52, v52, v53')
        A(f'v_lshlrev_b32 v28, 2, v{vL}'); A('s_lshl_b32 s12, s2, 8'); A(f's_lshl_b32 s13, s{sW}, 6'); A('s_add_u32 s12, s12, s13'); A(f's_add_u32 s12, s12, {WS_G}')
        o.append([I('s_mov_b64 exec, 0xffff'), I(f'buffer_store_dword v52, v28, {srd(SWS)}, s12 offen sc1', tag='gst'), I('s_mov_b64 exec, -1')])
        A('s_lshl_b32 s12, s2, 7'); A(f's_lshl_b32 s13, s{sW}, 3'); A('s_add_u32 s12, s12, s13'); A(f's_add_u32 s15, s12, {FL_G}')
        o += [WAITLGKM0(), I('s_barrier')]
        o += stream('late', self.late_setup()) + stream('ssm', self.ssm_loads()) + stream('kvp', self.kv_poll_addr() + [self.poll_issue(14, 'kvp')])
        o += stream('fl', self.flag_store('gst', 15))
        o += stream('zero', self.zero_fill()) + stream('kvp', self.poll_check(14) + self.kv_loads()) + stream('wdp', self.wd_poll_addr() + [self.poll_issue(14, 'wdp')])
        o += stream('cop', self.copies_build()) + stream('uw', self.u_writes()) + stream('wdp', self.poll_check(14))
        o += self.mk_srd(SHS, P_WS, 0)
        A(f's_mov_b32 s{sHo0}, 0'); A(f's_mov_b32 s{sHo1}, 0'); A('s_mov_b32 s13, 0')
        o += [DRAIN(), I('s_nop 7'), I('s_branch L_join')]
        flat = []
        for x in o:
            if isinstance(x, list): flat += x
            elif x is not None: flat.append(x)
        return flat

    def build(self):
        flat = lambda L: [y for x in L for y in (x if isinstance(x, list) else [x])]
        main = self.prologue() + flat(self.gemm1()) + [I('L_join:')] + self.tail() + [I('L_end:'), I('s_endpgm')]
        main = flat(main)
        hel = [RESET()] + self.helper()
        allc = main + hel
        check_tags(allc)
        temps = set(regs('s', 3, 13)) | set(regs('v', 28, 4)) | {('scc', 0), ('vcc_lo', 0), ('m0', 0), ('v', vFl), ('v', vP), ('v', vP+1), ('v', vU0), ('v', vU1)}
        check_streams(allc, temps, allow={(None, 'hfl'), (None, 'dma'), (None, 'fl')})
        allc = insert_nops(insert_waits(allc))
        self.ins = allc
        hdr = open('cdna_kernels/' + NAME + '.s.ref').read().split('\n')
        head = [l for l in hdr if l.startswith(';') and '@launch' not in l and 'Override launch' not in l and 'grid=ceil' not in l]
        txt = '\n'.join(head) + '\n' + f'; @launch grid=(256,1,1) block=(256,1,1) lds={LDS_BYTES}\n'
        txt += f'.amdgcn_target "amdgcn-amd-amdhsa--gfx950"\n.text\n.globl {NAME}_kernel\n.p2align 12\n.type {NAME}_kernel,@function\n{NAME}_kernel:\n'
        txt += render(allc) + 'L_codeend:\n'
        txt += f'''.section .rodata,"a"
.p2align 6
.amdhsa_kernel {NAME}_kernel
  .amdhsa_next_free_vgpr 512
  .amdhsa_next_free_sgpr 102
  .amdhsa_accum_offset 256
  .amdhsa_group_segment_fixed_size 0
  .amdhsa_kernarg_size 112
  .amdhsa_user_sgpr_count 2
  .amdhsa_user_sgpr_kernarg_segment_ptr 1
  .amdhsa_system_sgpr_workgroup_id_x 1
  .amdhsa_float_denorm_mode_32 3
.end_amdhsa_kernel
'''
        return txt

if __name__ == '__main__':
    out = sys.argv[1]
    kw = {}
    for a in sys.argv[2:]:
        k, v = a.split('=')
        try: v = int(v)
        except ValueError: pass
        kw[k] = v
    open(out, 'w').write(Gen(**kw).build())
```

```python
import sys, json
from asmlib import *

NAME = 'gated_mix__ssm_conv_h3__glu_gated_reglu__prompt'
WS_H   = 0
WS_WDF = 0x700000
WS_KVT = 0x900000
WS_YT  = 0xB00000
WS_G   = 0xD00000
FL_H   = 0xD10000
FL_KV  = 0xD14000
FL_WD  = 0xD15000
FL_G   = 0xD16000
FL_Y   = 0xD18000
WS_PROF= 0xD20000
WS_SIZE= 0xE00000
L_W = 0
L_X = 49152
L_C = 81920
L_Q = 147456
L_Y = 155648
LDS_BYTES = 163840
CSTR = 2368
UOFF = 9280

P_Q, P_K, P_V, P_SK, P_SSM, P_D, P_BX, P_WG, P_WU, P_WD, P_GW, P_OUT, P_DBG, P_WS = [16 + 2 * i for i in range(14)]
SX, SA, SB, SWS, SHS, SSM, SOUT = 44, 48, 52, 56, 60, 64, 68
sN = 72
sG = 74
sW, sW4K, sC0, sXb, sWb, sWo, sXo, sHo0, sHo1, sTB, sDB, sMASK, sSPIN, sD = range(88, 102)
STAMPS = [16, 18, 20, 24, 26, 28, 30, 32, 38]
def srd(n): return f's[{n}:{n+3}]'
def sp(n): return f's[{n}:{n+1}]'
def vr(n, k): return f'v[{n}:{n+k-1}]' if k > 1 else f'v{n}'
def ar(n, k): return f'a[{n}:{n+k-1}]'
def regs(t, n, k): return [(t, i) for i in range(n, n + k)]
vL, vL16 = 0, 1
vX, vW, vA, vB = 2, 6, 10, 14
vCA, vCB, vG0, vG1, vHl, vFl, vP, vN = 18, 19, 20, 21, 22, 23, 24, 26
vT = 28
FA = [32, 56]; FB = [48, 72]
vD = 80; vCT = 98; vU0 = 110; vU1 = 111; vKV = 112
ACC1 = 128
CA = 32; CBR = 56
ACC2 = 32
HR = 160; NHR = 24
vBS = 128; vGA = 136; vGG = 152; vE = 154
vXR = 96
aWD = 0; aCV = 224

DEF = dict(prof=0, lw=2, dma_gap=1, p_nonce=8, p_ssm=11, p_kv=12, p_wdpoll=14, epi_start=0, hflag_delay=11, hpoll=44, hcheck=54,
           ypoll=40, ycheck=64, gpoll=8, ldx='', ldw='', ldkv='nt', ldwd='nt', ldssm='nt', codepf=1, spin=200000, nohelp=0)

class Gen:
    def __init__(self, **kw):
        self.o = dict(DEF); self.o.update(kw)
        self.nlab = 0
        self.nstamp = 0
    def lab(self, base):
        self.nlab += 1; return f'L_{base}_{self.nlab}'
    def stamp(self, k, st='std'):
        if not self.o['prof'] or (self.o.get('stampset', 'std') != st and k < 8): return []
        x = I(f's_memtime {sp(STAMPS[k])}'); x.note = 'stamp'; return [x]
    def mk_srd(self, d, p, size, bias=0):
        o = []
        if bias:
            o += [I(f's_sub_u32 s{d}, s{p}, {bias}'), I(f's_subb_u32 s{d+1}, s{p+1}, 0')]
        else:
            o += [I(f's_mov_b64 {sp(d)}, {sp(p)}')]
        o += [I(f's_mov_b32 s{d+2}, {size + bias}'), I(f's_mov_b32 s{d+3}, 0x20000')]
        return o
    def ws_base(self):
        b = self.o.get('wsbase', 0) << 20
        return [I(f's_add_u32 s{P_WS}, s{P_WS}, {b}'), I(f's_addc_u32 s{P_WS+1}, s{P_WS+1}, 0')] if b else []
    def poll_issue(self, soff_reg, tag):
        return I(f'buffer_load_dwordx2 {vr(vP,2)}, v{vFl}, {srd(SWS)}, s{soff_reg} offen sc1', tag=tag)
    def poll_check(self, soff_reg):
        ok = self.lab('ok'); lp = self.lab('lp')
        return [I(f'v_cmp_eq_u64 vcc, {sp(sN)}, {vr(vP,2)}'), I('s_cmp_eq_u64 vcc, exec'), I(f's_cbranch_scc1 {ok}'),
                RAW(f's_mov_b32 s{sSPIN}, 0\n{lp}:\nbuffer_load_dwordx2 {vr(vP,2)}, v{vFl}, {srd(SWS)}, s{soff_reg} offen sc1\ns_waitcnt vmcnt(0)\n'
                    f'v_cmp_eq_u64 vcc, {sp(sN)}, {vr(vP,2)}\ns_add_u32 s{sSPIN}, s{sSPIN}, 1\ns_nop 1\ns_cmp_eq_u64 vcc, exec\ns_cbranch_scc1 {ok}\n'
                    f's_cmp_lt_u32 s{sSPIN}, {self.o["spin"]}\ns_cbranch_scc1 {lp}', defs=f'vcc scc', uses=f's{soff_reg} v{vFl}'),
                I(f'{ok}:')]
    def nonce_issue(self):
        return [I(f'v_mov_b32 v{vT}, 0'), I(f'global_load_dwordx2 {vr(vN,2)}, v{vT}, {sp(P_DBG)} sc1', tag='nonce')]
    def nonce_check(self):
        ok = self.lab('nok'); lp = self.lab('nlp')
        return [I(f'v_cmp_ne_u32 vcc, 0, v{vN}'), I('s_cmp_eq_u64 vcc, exec'), I(f's_cbranch_scc1 {ok}'),
                RAW(f's_mov_b32 s{sSPIN}, 0\nv_mov_b32 v{vT}, 0\n{lp}:\nglobal_load_dwordx2 {vr(vN,2)}, v{vT}, {sp(P_DBG)} sc1\ns_waitcnt vmcnt(0)\n'
                    f'v_cmp_ne_u32 vcc, 0, v{vN}\ns_add_u32 s{sSPIN}, s{sSPIN}, 1\ns_nop 1\ns_cmp_eq_u64 vcc, exec\ns_cbranch_scc1 {ok}\n'
                    f's_cmp_lt_u32 s{sSPIN}, {self.o["spin"]}\ns_cbranch_scc1 {lp}', defs=f'vcc scc v{vT}'),
                I(f'{ok}:'), I(f'v_readfirstlane_b32 s{sN}, v{vN}'), I(f'v_readfirstlane_b32 s{sN+1}, v{vN+1}')]
    def flag_store(self, tag, soff_reg, srdn=SWS):
        return [I(f'v_mov_b32 v{vT}, 0'), WAITVM(tag), I('s_mov_b64 exec, 1'),
                I(f'buffer_store_dwordx2 {vr(vN,2)}, v{vT}, {srd(srdn)}, s{soff_reg} offen sc1'), I('s_mov_b64 exec, -1')]

    def prologue(self):
        o = []; A = lambda t, **k: o.append(I(t, **k))
        A('s_cmp_ge_u32 s2, 256'); A('s_cbranch_scc1 L_end')
        if self.o['prof']: A('s_memrealtime s[74:75]'); A('s_memtime s[76:77]')
        A('s_load_dwordx16 s[16:31], s[0:1], 0'); A('s_load_dwordx8 s[32:39], s[0:1], 64'); A('s_load_dwordx4 s[40:43], s[0:1], 96')
        A(f'v_lshrrev_b32 v1, 6, v0'); A(f'v_and_b32 v{vL}, 63, v0'); A(f'v_readfirstlane_b32 s{sW}, v1')
        A(f'v_lshlrev_b32 v{vL16}, 4, v{vL}')
        A(f's_lshl_b32 s{sW4K}, s{sW}, 12')
        A(f's_mov_b32 s{sMASK}, 0xffff0000')
        A(f'v_lshrrev_b32 v28, 3, v{vL}'); A('v_lshlrev_b32 v28, 10, v28')
        A(f'v_and_b32 v29, 7, v{vL}'); A(f'v_lshrrev_b32 v30, 4, v{vL}')
        A('v_xor_b32 v29, v29, v30')
        A(f'v_lshl_add_u32 v{vX}, v29, 4, v28')
        A(f'v_xor_b32 v{vX+1}, 64, v{vX}'); A(f'v_add_u32 v{vX+1}, 7168, v{vX+1}')
        A('s_and_b32 s3, s2, 7'); A('s_lshr_b32 s4, s2, 3')
        A('s_and_b32 s5, s3, 3'); A('s_lshr_b32 s6, s3, 2')
        A('s_lshl_b32 s7, s5, 3'); A('s_lshl_b32 s8, s6, 2'); A('s_add_u32 s7, s7, s8'); A('s_and_b32 s8, s4, 3')
        A(f's_add_u32 s{sTB}, s7, s8'); A(f's_lshr_b32 s{sDB}, s4, 2')
        A('s_cmp_lt_u32 s2, 32'); A('s_cbranch_scc1 L_helper')
        return o

    def gemm_prologue(self):
        o = []; A = lambda t, **k: o.append(I(t, **k))
        A('s_sub_u32 s4, s4, 4'); A('s_and_b32 s7, s4, 3'); A('s_lshr_b32 s8, s4, 2')
        A('s_lshl_b32 s9, s5, 2'); A('s_add_u32 s9, s9, s7')
        A('s_mul_i32 s10, s6, 7'); A('s_add_u32 s10, s10, s8')
        A('s_lshl_b32 s11, s7, 1'); A('s_add_u32 s11, s11, s8'); A('s_and_b32 s12, s5, 1'); A('s_add_u32 s11, s11, s12')
        if self.o.get('norot'): A(f's_mov_b32 s{sC0}, 0')
        else: A(f's_and_b32 s{sC0}, s11, 7')
        A(f's_lshl_b32 s{sXb}, s9, 17'); A(f's_lshl_b32 s11, s{sW}, 15'); A(f's_add_u32 s{sXb}, s{sXb}, s11')
        A(f's_mul_i32 s{sWb}, s{sW}, {8*3584}'); A('s_lshl_b32 s11, s10, 8'); A(f's_add_u32 s{sWb}, s{sWb}, s11')
        A(f's_and_b32 s11, s{sW}, 1'); A(f's_lshr_b32 s12, s{sW}, 1')
        A('s_lshl_b32 s13, s9, 1'); A('s_add_u32 s13, s13, s11')
        A('s_mul_i32 s14, s13, 112'); A('s_lshl_b32 s15, s10, 3'); A('s_add_u32 s14, s14, s15'); A('s_lshl_b32 s15, s12, 2'); A('s_add_u32 s14, s14, s15')
        A(f's_lshl_b32 s{sHo0}, s14, 11'); A(f's_add_u32 s{sHo1}, s{sHo0}, 4096')
        A('s_lshl_b32 s13, s13, 8'); A('s_lshl_b32 s14, s10, 4'); A('s_add_u32 s13, s13, s14'); A('s_lshl_b32 s14, s12, 3'); A('s_add_u32 s13, s13, s14')
        A(f's_add_u32 s13, s13, {FL_H}')
        A(f'v_add_u32 v{vX+2}, 14336, v{vX}'); A(f'v_add_u32 v{vX+3}, 14336, v{vX+1}')
        A(f'v_lshrrev_b32 v28, 4, v{vL}')
        A(f'v_mul_u32_u24 v29, 3584, v28')
        A(f'v_bfe_u32 v30, v{vL}, 1, 3'); A('v_lshlrev_b32 v28, 1, v28'); A('v_xor_b32 v30, v30, v28')
        A(f'v_and_b32 v31, 1, v{vL}'); A('v_lshlrev_b32 v31, 4, v31'); A('v_lshl_or_b32 v30, v30, 5, v31')
        A(f'v_add_u32 v{vW}, v29, v30'); A('v_xor_b32 v30, 32, v30'); A(f'v_add_u32 v{vW+1}, v29, v30')
        A(f'v_add_u32 v{vW+2}, {4*3584 - 2048 + 4096}, v{vW}'); A(f'v_add_u32 v{vW+3}, {4*3584 - 3072 + 4096}, v{vW+1}')
        A(f'v_add_u32 v{vW}, 4096, v{vW}'); A(f'v_add_u32 v{vW+1}, {4096-1024}, v{vW+1}')
        A(f's_lshl_b32 s{sXo}, s{sC0}, 7'); A(f's_add_u32 s{sXo}, s{sXo}, s{sXb}')
        A(f's_mul_i32 s{sWo}, s{sC0}, {64*3584}'); A(f's_add_u32 s{sWo}, s{sWo}, s{sWb}')
        o.append(WAITLGKM0())
        o += self.ws_base()
        if self.o['prof']: A('s_mov_b32 s0, s74'); A('s_mov_b32 s1, s76')
        o += self.mk_srd(SX, P_Q, 0x200000) + self.mk_srd(SA, P_WG, 512*3584, 4096) + self.mk_srd(SB, P_WU, 512*3584, 4096)
        return o

    def dma_x(self, c):
        o = [I(f's_add_u32 m0, s{sW4K}, {L_X + (c & 1) * 16384}')]
        fl = self.o['ldx']
        L = [I(f'buffer_load_dwordx4 v{vX+n}, {srd(SX)}, s{sXo} offen offset:{1024*n} {fl} lds', tag=f'x{c}') for n in range(4)]
        return [o + [L[0]]] + L[1:]
    def dma_w(self, H):
        fl = self.o['ldw']
        o = [I(f's_add_u32 m0, s{sW4K}, {L_W + (H % 3) * 16384}')]
        L = [I(f'buffer_load_dwordx4 v{vW+i}, {srd(SB if i & 1 else SA)}, s{sWo} offen offset:{1024*i} {fl} lds', tag=f'w{H}') for i in range(4)]
        return [o + [L[0]]] + L[1:]
    def adv_w(self, H):
        if H & 1: return [I(f's_add_u32 s{sWo}, s{sWo}, {32*3584}')]
        return [I(f's_add_u32 s3, s{sC0}, {H>>1}'), I('s_and_b32 s3, s3, 7'), I(f's_mul_i32 s3, s3, {64*3584}'), I(f's_add_u32 s{sWo}, s3, s{sWb}')]
    def adv_x(self, c):
        return [I(f's_add_u32 s4, s{sC0}, {c}'), I('s_and_b32 s4, s4, 7'), I('s_lshl_b32 s4, s4, 7'), I(f's_add_u32 s{sXo}, s4, s{sXb}')]

    def gemm_addr(self):
        o = []; A = lambda t, **k: o.append(I(t, **k))
        A(f's_lshr_b32 s3, s{sW}, 1'); A('s_lshl_b32 s3, s3, 2')
        A(f'v_bfe_u32 v28, v{vL}, 2, 2')
        A(f'v_bfe_u32 v29, v{vL}, 1, 1')
        A('v_lshl_or_b32 v30, v28, 1, v29')
        A('v_lshlrev_b32 v28, 8, v28'); A('v_lshl_or_b32 v28, v29, 10, v28')
        A(f'v_lshrrev_b32 v29, 5, v{vL}'); A('v_lshl_or_b32 v28, v29, 12, v28')
        A(f'v_bfe_u32 v29, v{vL}, 4, 1'); A('v_lshl_or_b32 v28, v29, 4, v28')
        A(f'v_and_b32 v29, 1, v{vL}'); A('v_lshl_or_b32 v28, v29, 3, v28')
        A('v_xor_b32 v30, s3, v30')
        for a in range(4):
            A(f'v_xor_b32 v29, {a}, v30'); A(f'v_lshl_or_b32 v{vA+a}, v29, 5, v28')
        A(f's_and_b32 s3, s{sW}, 1'); A('s_lshl_b32 s3, s3, 13'); A(f's_add_u32 s3, s3, {L_X}')
        A(f'v_and_b32 v28, 31, v{vL}'); A('v_lshlrev_b32 v28, 7, v28'); A('v_add_u32 v28, s3, v28')
        A(f'v_bfe_u32 v29, v{vL}, 1, 3'); A(f'v_lshrrev_b32 v30, 5, v{vL}'); A('v_xor_b32 v29, v29, v30')
        for s in range(4):
            A(f'v_xor_b32 v30, {2*s}, v29'); A(f'v_lshl_add_u32 v{vB+s}, v30, 4, v28')
        return o

    def frag_reads(self, S):
        st = S & 1; H = S >> 1; c = S >> 2
        fa, fb = FA[st], FB[st]
        wo = L_W + (H % 3) * 16384 + st * 8192
        xo = (c & 1) * 16384
        def rb(b): return I(f'ds_read_b128 {vr(fb+4*b,4)}, v{vB+(S&3)} offset:{xo + 4096*b}', tag=f'B{S}_{b}')
        def ra(a): return [I(f'ds_read_b64_tr_b16 {vr(fa+4*a+2*j,2)}, v{vA+a} offset:{wo + 2048*j}', tag=f'A{S}_{a}') for j in range(2)]
        return [rb(0)] + ra(0) + [rb(1)] + ra(1) + ra(2) + ra(3)

    def late_setup(self):
        o = []; A = lambda t, **k: o.append(I(t, **k))
        o += self.mk_srd(SWS, P_WS, WS_SIZE) + self.mk_srd(SOUT, P_OUT, 0x200000)
        A(f's_lshr_b32 s5, s{sW}, 1'); A('s_lshl_b32 s6, s2, 1'); A('s_add_u32 s5, s5, s6')
        A('s_lshl_b32 s6, s5, 12')
        A(f's_add_u32 s{SSM}, s{P_SSM}, s6'); A(f's_addc_u32 s{SSM+1}, s{P_SSM+1}, 0'); A(f's_mov_b32 s{SSM+2}, 4096'); A(f's_mov_b32 s{SSM+3}, 0x20000')
        A('s_lshl_b32 s6, s2, 2'); A(f'v_mov_b32 v{vT}, s6')
        A(f'global_load_dword v{vT+1}, v{vT}, {sp(P_D)}', tag='dval')
        A(f's_lshl_b32 s6, s{sW}, 14'); A(f's_add_u32 s6, s6, {L_C}')
        A(f'v_and_b32 v30, 3, v{vL}'); A(f'v_mul_u32_u24 v30, {CSTR}, v30')
        A(f'v_and_b32 v31, 28, v{vL}'); A('v_lshl_add_u32 v30, v31, 1, v30')
        A(f'v_lshrrev_b32 v31, 5, v{vL}'); A('v_lshlrev_b32 v31, 4, v31')
        A('v_sub_u32 v30, v30, v31'); A('s_add_u32 s7, s6, 16'); A(f'v_add_u32 v{vCA}, s7, v30')
        A(f'v_and_b32 v30, 31, v{vL}'); A('v_mul_u32_u24 v30, 144, v30'); A(f's_add_u32 s7, s6, {UOFF}'); A(f'v_add3_u32 v{vCB}, v30, v31, s7')
        A(f's_and_b32 s7, s{sW}, 1'); A('s_lshl_b32 s7, s7, 10'); A(f's_lshr_b32 s8, s{sW}, 1'); A('s_lshl_b32 s8, s8, 8')
        A(f's_mul_i32 s9, s{sDB}, {112*2048}'); A(f's_add_u32 s9, s9, {WS_WDF}')
        A(f'v_xor_b32 v30, s8, v{vL16}'); A('s_add_u32 s10, s9, s7'); A(f'v_add_u32 v{vG0}, s10, v30')
        A('s_xor_b32 s7, s7, 1024'); A('s_add_u32 s10, s9, s7'); A(f'v_add_u32 v{vG1}, s10, v30')
        A(f's_mul_i32 s9, s{sTB}, {112*2048}'); A(f'v_add_u32 v{vHl}, s9, v{vL16}')
        A(f's_and_b32 s7, s{sTB}, 3'); A('s_mul_i32 s7, s7, 7'); A('s_add_u32 s7, s7, 1'); A('s_lshr_b32 s7, s7, 1')
        A(f's_mul_i32 s8, s{sDB}, 7'); A('s_add_u32 s8, s8, 2'); A('s_lshr_b32 s8, s8, 2'); A('s_add_u32 s7, s7, s8')
        if self.o.get('norot2'): A('s_mov_b32 s7, 0')
        A('s_sub_u32 s8, s7, 14'); A('s_cmp_ge_u32 s7, 14'); A('s_cselect_b32 s7, s8, s7')
        A(f's_mul_i32 s8, s{sW}, {28*2048}'); A('s_lshl_b32 s7, s7, 12')
        A(f's_add_u32 s9, s8, {14*4096}')
        A(f's_add_u32 s{sG}, s7, s8')
        for g in range(1, 14):
            A(f's_add_u32 s{sG+g}, s{sG+g-1}, 4096'); A(f's_cmp_eq_u32 s{sG+g}, s9'); A(f's_cselect_b32 s{sG+g}, s8, s{sG+g}')
        A(f'v_readfirstlane_b32 s{sD}, v{vT+1}'); A(f's_lshr_b32 s7, s{sW}, 1'); A('s_lshl_b32 s7, s7, 4'); A(f's_lshr_b32 s{sD}, s{sD}, s7'); A(f's_lshl_b32 s{sD}, s{sD}, 16')
        return o

    def zero_fill(self):
        o = []; A = lambda t, **k: o.append(I(t, **k))
        A(f's_lshl_b32 s6, s{sW}, 14'); A(f's_add_u32 s6, s6, {L_C + UOFF}'); A(f'v_add_u32 v{vU0}, s6, v{vL16}')
        for i in range(4): A(f'v_mov_b32 v{vCT+i}, 0')
        for i in range(5): A(f'ds_write_b128 v{vU0}, {vr(vCT,4)} offset:{1024*i}')
        return o
    def ssm_loads(self):
        o = []; A = lambda t, **k: o.append(I(t, **k))
        fl = self.o['ldssm']
        A(f's_and_b32 s6, s{sW}, 1'); A('s_mul_i32 s6, s6, 2048'); A('s_sub_u32 s6, s6, 128')
        A(f'v_add_u32 v30, s6, v{vL16}')
        A('v_add_u32 v31, 16, v30'); A('v_add_u32 v29, 1024, v30')
        A(f'v_cmp_gt_i32 vcc, 0, v30'); A('v_bfrev_b32 v28, 1'); A('v_cndmask_b32 v30, v30, v28, vcc')
        A(f'v_cmp_gt_i32 vcc, 0, v31'); A('v_cndmask_b32 v31, v31, v28, vcc')
        A(f'buffer_load_dwordx4 {vr(vD,4)}, v30, {srd(SSM)}, 0 offen {fl}')
        A(f'buffer_load_dwordx2 {vr(vD+4,2)}, v31, {srd(SSM)}, 0 offen {fl}')
        A(f'buffer_load_dwordx4 {vr(vD+6,4)}, v29, {srd(SSM)}, 0 offen {fl}')
        A(f'buffer_load_dwordx2 {vr(vD+10,2)}, v29, {srd(SSM)}, 0 offen offset:16 {fl}')
        A(f'buffer_load_dwordx4 {vr(vD+12,4)}, v29, {srd(SSM)}, 0 offen offset:1024 {fl}')
        A(f'buffer_load_dwordx2 {vr(vD+16,2)}, v29, {srd(SSM)}, 0 offen offset:1040 {fl}')
        return o
    def copies_build(self):
        o = []; A = lambda t, **k: o.append(I(t, **k))
        A(f's_lshl_b32 s6, s{sW}, 14'); A(f's_add_u32 s6, s6, {L_C}'); A(f'v_add_u32 v{vU1}, s6, v{vL16}')
        for p in range(3):
            d = vD + 6 * p
            for i in range(4): A(f'v_alignbyte_b32 v{vCT+i}, v{d+i+1}, v{d+i}, 2')
            for i in range(4): A(f'v_mov_b32 v{vCT+4+i}, v{d+i+1}')
            for i in range(4): A(f'v_alignbyte_b32 v{vCT+8+i}, v{d+i+2}, v{d+i+1}, 2')
            w = [I(f'ds_write_b128 v{vU1}, {vr(vCT+4*c,4)} offset:{c*CSTR + 1024*p}') for c in range(3)]
            w.append(I(f'ds_write_b128 v{vU1}, {vr(d+2,4)} offset:{3*CSTR + 1024*p}'))
            if p < 2: o += w
            else: o.append([I('s_mov_b64 exec, 0xff')] + w + [I('s_mov_b64 exec, -1')])
        return o
    def kv_poll_addr(self):
        return [I(f'v_and_b32 v{vFl}, 15, v{vL}'), I(f'v_lshlrev_b32 v{vFl}, 3, v{vFl}'),
                I('s_lshr_b32 s14, s2, 5'), I('s_lshl_b32 s14, s14, 7'), I(f's_add_u32 s14, s14, {FL_KV}')]
    def kv_loads(self):
        o = []; A = lambda t, **k: o.append(I(t, **k))
        A(f's_lshr_b32 s5, s{sW}, 1'); A('s_lshl_b32 s6, s2, 1'); A('s_add_u32 s5, s5, s6'); A('s_lshl_b32 s5, s5, 12'); A(f's_add_u32 s5, s5, {WS_KVT}')
        for i in range(4): A(f'buffer_load_dwordx4 {vr(vKV+4*i,4)}, v{vL16}, {srd(SWS)}, s5 offen offset:{1024*i} sc1')
        return o
    def u_writes(self):
        o = []; A = lambda t, **k: o.append(I(t, **k))
        A(f's_and_b32 s5, s{sW}, 1'); A('s_mul_i32 s7, s5, 2304')
        A(f's_lshl_b32 s6, s{sW}, 14'); A(f's_add_u32 s6, s6, {L_C + UOFF + 15*144}'); A('s_add_u32 s6, s6, s7')
        A(f'v_lshrrev_b32 v30, 3, v{vL}'); A('v_mul_u32_u24 v30, 144, v30'); A(f'v_and_b32 v31, 7, v{vL}'); A('v_lshl_add_u32 v30, v31, 4, v30')
        A(f'v_add_u32 v{vU0}, s6, v30'); A('s_sub_u32 s7, 2304, s7'); A(f'v_add_u32 v{vU1}, s7, v{vU0}')
        for i in (2, 3): A(f'ds_write_b128 v{vU1}, {vr(vKV+4*i,4)} offset:{1152*(i-2)}')
        for i in (0, 1): A(f'ds_write_b128 v{vU0}, {vr(vKV+4*i,4)} offset:{1152*i}')
        return o
    def wd_poll_addr(self):
        return [I(f'v_and_b32 v{vFl}, 3, v{vL}'), I(f'v_lshlrev_b32 v{vFl}, 3, v{vFl}'),
                I(f's_lshl_b32 s14, s{sDB}, 7'), I(f's_lshl_b32 s15, s{sW}, 5'), I('s_add_u32 s14, s14, s15'), I(f's_add_u32 s14, s14, {FL_WD}')]

    def gemm1(self):
        O = self.o
        o = self.gemm_prologue()
        flat = lambda L: [y for x in L for y in (x if isinstance(x, list) else [x])]
        o += flat(self.dma_x(0)) + flat(self.dma_w(0)) + self.adv_w(1) + flat(self.dma_w(1))
        if O['codepf']:
            o += self.code_prefetch()
        o += self.stamp(0)
        o += self.gemm_addr()
        o += self.mk_srd(SHS, P_WS, WS_SIZE)
        o += [WAITVM(['x0', 'w0']), I('s_barrier')] + self.stamp(1) + self.frag_reads(0)
        W = Weave()
        for S in range(32):
            st = S & 1
            for i in range(8):
                a, b = i >> 1, i & 1
                acc = ACC1 + 32 * a + 16 * b
                c = '0' if S == 0 else vr(acc, 16)
                m = I(f'v_mfma_f32_32x32x16_bf16 {vr(acc,16)}, {vr(FA[st]+4*a,4)}, {vr(FB[st]+4*b,4)}, {c}',
                      expect=[(regs('v', FA[st]+4*a, 4), f'A{S}_{a}'), (regs('v', FB[st]+4*b, 4), f'B{S}_{b}')])
                pre = []
                if i == 0 and st == 1 and S < 31:
                    H = (S + 1) >> 1
                    pre = [WAITLGKM0(), WAITVM([f'w{H}', f'x{H>>1}']), I('s_barrier')]
                W.mfma(m, pre)
        for S in range(31): W.place(self.frag_reads(S + 1), 8 * S, per_gap=2)
        pstart = lambda H: max(0, 8 * (2 * H - 1))
        g = 0
        for H in range(14):
            items = []
            if H % 2 == 0 and H // 2 + 1 < 8:
                items += [[x] for x in self.adv_x(H // 2 + 1)] + self.dma_x(H // 2 + 1)
            items += [[x] for x in self.adv_w(H + 2)] + self.dma_w(H + 2)
            stream('dma', items)
            g = max(g, pstart(H))
            for it in items:
                isd = any(x.kind == 'vmem' for x in it) if isinstance(it, list) else it.kind == 'vmem'
                g = W.place([it], g)
                if isd and H > 0: g += O['dma_gap']
            assert g <= pstart(H + 2), (H, g)
        g = W.place(stream('late', self.late_setup()), pstart(1) + 8)
        g = W.place(stream('zero', self.zero_fill()), g)
        assert g < pstart(O['p_nonce']), g
        W.place(stream('nonce', [self.nonce_issue()]), pstart(O['p_nonce']) + 9)
        W.place(stream('nonce', [self.nonce_check()]), pstart(O['p_nonce'] + 2) + 5)
        W.place(stream('ssm', self.ssm_loads()), pstart(O['p_ssm']) + 7)
        g = W.place(stream('kvp', self.kv_poll_addr() + [self.poll_issue(14, 'kvp')]), pstart(O['p_kv']) + 9)
        g = W.place(stream('kvp', [self.poll_check(14)] + self.kv_loads()), pstart(O['p_kv'] + 1) + 8)
        g = W.place(stream('wdp', self.wd_poll_addr() + [self.poll_issue(14, 'wdp')]), max(g, pstart(O['p_wdpoll'])))
        g = W.place(stream('cop', self.copies_build()), max(g, pstart(14) + 4))
        g = W.place(stream('uw', self.u_writes()), max(g, 8 * 31))
        for k in range(8): W.gaps[32 * k] += self.stamp(k, 'g1')
        o += W.flatten()
        o += self.stamp(2)
        o += stream('wdp', self.poll_check(14))
        return o

    def code_prefetch(self):
        o = []; A = lambda t, **k: o.append(I(t, **k))
        sk = self.lab('pf'); pc = self.lab('pc')
        A(f's_cmp_lg_u32 s{sW}, 3'); A(f's_cbranch_scc1 {sk}')
        A('s_getpc_b64 s[6:7]'); A(f'{pc}:')
        A(f's_sub_u32 s6, s6, {pc}-{NAME}_kernel'); A('s_subb_u32 s7, s7, 0')
        A('s_lshr_b32 s3, s2, 3'); A('s_and_b32 s3, s3, 7'); A('s_mul_i32 s3, s3, 5120')
        A(f'v_min_u32 v28, 39, v{vL}'); A('v_lshlrev_b32 v28, 7, v28'); A('v_add_u32 v28, s3, v28')
        A(f'v_min_u32 v28, L_codeend-{NAME}_kernel-4, v28')
        o.append(RAW('global_load_dword v127, v28, s[6:7]'))
        A(f'{sk}:')
        return o

    def conv(self, W):
        O = self.o
        pre = []
        def ra(sg):
            d = CA + 4 * (sg % 6)
            return [I(f'ds_read_b64 {vr(d+2*j,2)}, v{vCA} offset:{32*sg + 8*j}', tag=f'cA{sg}') for j in range(2)]
        def rb(st):
            d = CBR + 4 * (st % 4)
            return I(f'ds_read_b128 {vr(d,4)}, v{vCB} offset:{(15-(st>>2))*144 + 32*(3-(st&3))}', tag=f'cB{st}')
        pre += ra(0) + [rb(0)] + ra(2) + ra(1) + [rb(1)] + ra(3)
        base = len(W.spine)
        for st in range(64):
            for m in range(2):
                sg = st + 2 * m
                acc = aCV + 16 * m
                c = '0' if st == 0 else ar(acc, 16)
                W.mfma(I(f'v_mfma_f32_32x32x16_bf16 {ar(acc,16)}, {vr(CA+4*(sg%6),4)}, {vr(CBR+4*(st%4),4)}, {c}',
                         expect=[(regs('v', CA+4*(sg%6), 4), f'cA{sg}'), (regs('v', CBR+4*(st%4), 4), f'cB{st}')]), pre if (st == 0 and m == 0) else None)
        for st in range(64):
            it = []
            if st + 2 < 64: it.append(rb(st + 2))
            if st + 4 < 66: it += ra(st + 4)
            W.place(it[:2], base + 2 * st); W.place(it[2:], base + 2 * st + 1)
        return base

    def h_epilogue(self):
        o = []
        for a in range(4):
            for b in range(2):
                R = ACC1 + 32 * a + 16 * b
                for h in (0, 8):
                    for i in range(4): o.append(I(f'v_max_f32 v{R+h+i}, 0, v{R+h+i}'))
                    for i in range(4): o.append(I(f'v_mul_f32 v{R+h+i}, v{R+h+i}, v{R+h+4+i}'))
                for q, src in enumerate((0, 2, 8, 10)): o.append(I(f'v_cvt_pk_bf16_f32 v{R+4+q}, v{R+src}, v{R+src+1}'))
                so = sHo0 if a < 2 else sHo1
                o.append(I(f'buffer_store_dwordx4 {vr(R+4,4)}, v{vL16}, {srd(SHS)}, s{so} offen offset:{(a&1)*2048 + b*1024} sc1', tag='hst'))
        return o
    def wd_loads(self):
        o = []
        for s in range(28):
            for dt in range(2):
                o.append(I(f'buffer_load_dwordx4 {ar(aWD+8*s+4*dt,4)}, v{vG0+dt}, {srd(SWS)}, s{sG+(s>>1)} offen offset:{(s&1)*2048} sc1', tag=f'wd{s}_{dt}'))
        return o
    def h_load(self, i):
        p, s = divmod(i, 28)
        return I(f'buffer_load_dwordx4 {vr(HR+4*(i%NHR),4)}, v{vHl}, {srd(SWS)}, s{sG+(s>>1)} offen offset:{(s&1)*2048 + p*1024} sc1', tag=f'h{i}')
    def h_poll_addr(self):
        return [I(f'v_min_u32 v{vFl}, 6, v{vL}'), I(f'v_lshlrev_b32 v{vFl}, 3, v{vFl}'),
                I(f's_lshl_b32 s14, s{sTB}, 8'), I(f's_mul_i32 s15, s{sW}, 56'), I('s_add_u32 s14, s14, s15'), I(f's_add_u32 s14, s14, {FL_H}')]

    def conv_epilogue(self):
        a = []; A = lambda t, **k: a.append(I(t, **k))
        A(f's_lshl_b32 s6, s{sW}, 14'); A(f's_add_u32 s6, s6, {L_C}')
        A(f'v_and_b32 v30, 31, v{vL}'); A('v_mul_u32_u24 v30, 272, v30'); A(f'v_lshrrev_b32 v31, 5, v{vL}'); A('v_lshl_add_u32 v30, v31, 4, v30'); A('v_add_u32 v30, s6, v30')
        addr = a; a = []
        for m in range(2):
            for g in range(4): A(f'ds_write_b128 v30, {ar(aCV+16*m+4*g,4)} offset:{(32*m+8*g)*4}')
        wr = a; a = []
        A(f's_and_b32 s5, s{sW}, 2'); A('s_lshl_b32 s5, s5, 14'); A(f's_add_u32 s5, s5, {L_C}')
        A(f's_and_b32 s7, s{sW}, 1'); A('s_lshl_b32 s7, s7, 4')
        A(f'v_lshrrev_b32 v28, 3, v{vL}'); A('v_add_u32 v28, s7, v28'); A(f'v_and_b32 v29, 7, v{vL}')
        A('v_mul_u32_u24 v31, 272, v28'); A('v_lshl_add_u32 v31, v29, 5, v31'); A(f'v_add_u32 v{vGG}, s5, v31')
        A('v_mul_u32_u24 v31, 144, v28'); A('v_lshl_add_u32 v31, v29, 4, v31'); A(f's_add_u32 s5, s5, {UOFF + 15*144}'); A(f'v_add_u32 v{vGG+1}, s5, v31')
        A(f's_lshr_b32 s5, s{sW}, 1'); A('s_lshl_b32 s6, s2, 1'); A('s_add_u32 s5, s5, s6')
        A(f's_and_b32 s7, s{sW}, 1'); A('s_lshl_b32 s12, s5, 12'); A('s_lshl_b32 s8, s7, 11'); A('s_add_u32 s12, s12, s8'); A(f's_add_u32 s12, s12, {WS_YT}')
        A('s_lshr_b32 s8, s5, 6'); A('s_lshl_b32 s8, s8, 1'); A('s_add_u32 s8, s8, s7'); A('s_lshl_b32 s8, s8, 9'); A('s_and_b32 s11, s5, 63'); A('s_lshl_b32 s11, s11, 3')
        A('s_add_u32 s11, s11, s8'); A(f's_add_u32 s11, s11, {FL_Y}')
        addr2 = a; a = []
        P0 = vXR; P1 = vXR + 8; U = vXR + 16; T = vXR + 20; Y = vXR + 24
        for rho in range(2):
            for x in range(2): A(f'ds_read_b128 {vr(P0+4*x,4)}, v{vGG} offset:{rho*2176 + 16*x}')
            for x in range(2): A(f'ds_read_b128 {vr(P1+4*x,4)}, v{vGG} offset:{16384 + rho*2176 + 16*x}')
            A(f'ds_read_b128 {vr(U,4)}, v{vGG+1} offset:{rho*1152}')
            for e in range(8): A(f'v_add_f32 v{P0+e}, v{P0+e}, v{P1+e}')
            for q in range(4):
                A(f'v_lshlrev_b32 v{T}, 16, v{U+q}'); A(f'v_and_b32 v{T+1}, s{sMASK}, v{U+q}')
                A(f'v_fmac_f32 v{P0+7-2*q}, s{sD}, v{T}'); A(f'v_fmac_f32 v{P0+6-2*q}, s{sD}, v{T+1}')
            for q in range(4): A(f'v_cvt_pk_bf16_f32 v{Y+4*rho+q}, v{P0+2*q}, v{P0+2*q+1}')
            A(f'buffer_store_dwordx4 {vr(Y+4*rho,4)}, v{vL16}, {srd(SWS)}, s12 offen offset:{1024*rho} sc1', tag='yst')
        return addr, wr, addr2, a

    def exch_write(self, p):
        o = []
        for j, (dt, gp, m) in enumerate(((0, 1, 2), (1, 0, 1), (1, 1, 3))):
            R = ACC2 + 32 * p + 16 * dt + 8 * gp
            for x in range(2): o.append(I(f'ds_write_b128 v{vE+j}, {vr(R+4*x,4)} offset:{p*24576 + j*2048 + 1024*x}'))
        return o
    def exch_read(self, p):
        return [I(f'ds_read_b128 {vr(vXR+8*j+4*x,4)}, v{vE+3} offset:{p*24576 + j*2048 + 1024*x}') for j in range(3) for x in range(2)]
    def exch_sum(self, p, dst):
        o = []; R = ACC2 + 32 * p
        for e in range(8): o.append(I(f'v_add_f32 v{vXR+e}, v{vXR+e}, v{vXR+8+e}'))
        for e in range(8): o.append(I(f'v_add_f32 v{dst+e}, v{R+e}, v{vXR+16+e}'))
        for e in range(8): o.append(I(f'v_add_f32 v{dst+e}, v{dst+e}, v{vXR+e}'))
        return o
    def final_addr(self):
        o = []; A = lambda t, **k: o.append(I(t, **k))
        for j, m in enumerate((2, 1, 3)):
            A(f's_xor_b32 s5, s{sW}, {m}'); A('s_mul_i32 s5, s5, 6144'); A(f'v_add_u32 v{vE+j}, s5, v{vL16}')
        A(f's_mul_i32 s5, s{sW}, 6144'); A(f'v_add_u32 v{vE+3}, s5, v{vL16}')
        return o
    def q_dma(self):
        o = []; A = lambda t, **k: o.append(I(t, **k))
        A(f's_lshl_b32 s5, s{sTB}, 16'); A(f's_lshl_b32 s6, s{sW}, 14'); A('s_add_u32 s5, s5, s6'); A(f's_lshl_b32 s6, s{sDB}, 7'); A('s_add_u32 s5, s5, s6')
        A(f's_lshr_b32 s6, s{sW4K}, 1'); A(f's_add_u32 m0, s6, {L_Q}')
        for n in range(2): A(f'buffer_load_dwordx4 v{vX+n}, {srd(SX)}, s5 offen offset:{1024*n} lds', tag='q')
        return o
    def y_poll_addr(self):
        o = []; A = lambda t, **k: o.append(I(t, **k))
        A(f's_and_b32 s10, s{sW}, 1'); A('s_lshl_b32 s10, s10, 1'); A(f's_lshr_b32 s15, s{sW}, 1'); A('s_add_u32 s10, s10, s15')
        A(f'v_and_b32 v{vFl}, 15, v{vL}'); A(f'v_lshlrev_b32 v{vFl}, 3, v{vFl}')
        A(f's_lshl_b32 s14, s{sDB}, 1'); A(f's_lshr_b32 s15, s{sTB}, 4'); A('s_add_u32 s14, s14, s15'); A('s_lshl_b32 s14, s14, 9')
        A('s_lshl_b32 s15, s10, 7'); A('s_add_u32 s14, s14, s15'); A(f's_add_u32 s14, s14, {FL_Y}')
        return o
    def y_dma(self):
        o = []; A = lambda t, **k: o.append(I(t, **k))
        A(f'v_lshrrev_b32 v28, 3, v{vL}'); A('v_lshlrev_b32 v28, 12, v28'); A(f'v_and_b32 v29, 7, v{vL}'); A('v_lshl_add_u32 v28, v29, 4, v28')
        A(f'v_add_u32 v29, {8*4096 - 1024}, v28')
        A(f's_lshl_b32 s5, s{sDB}, 18'); A('s_lshl_b32 s6, s10, 16'); A('s_add_u32 s5, s5, s6'); A(f's_lshl_b32 s6, s{sTB}, 7'); A('s_add_u32 s5, s5, s6'); A(f's_add_u32 s5, s5, {WS_YT}')
        A('s_lshl_b32 s6, s10, 11'); A(f's_add_u32 m0, s6, {L_Y}')
        for n in range(2): A(f'buffer_load_dwordx4 v{28+n}, {srd(SWS)}, s5 offen offset:{1024*n} sc1 lds', tag='y')
        return o
    def g_poll_addr(self):
        return [I(f'v_and_b32 v{vFl}, 3, v{vL}'), I(f'v_lshlrev_b32 v{vFl}, 3, v{vFl}'), I(f's_lshl_b32 s14, s{sTB}, 7'), I(f's_add_u32 s14, s14, {FL_G}')]
    def g_loads(self):
        o = []; A = lambda t, **k: o.append(I(t, **k))
        A(f'v_and_b32 v28, 31, v{vL}'); A('v_lshlrev_b32 v28, 2, v28'); A(f's_lshl_b32 s5, s{sTB}, 8'); A(f's_add_u32 s5, s5, {WS_G}')
        for p in range(2): A(f'buffer_load_dword v{vGG+p}, v28, {srd(SWS)}, s5 offen offset:{128*p} sc1')
        return o
    def a_part(self):
        o = []; A = lambda t, **k: o.append(I(t, **k))
        Q = vXR + 24; Yv = vXR + 28; T = vXR + 24
        A(f'v_lshrrev_b32 v28, 5, v{vL}'); A(f'v_bfe_u32 v29, v{vL}, 2, 2'); A('v_lshl_or_b32 v28, v28, 2, v29'); A('v_lshlrev_b32 v28, 7, v28')
        A(f'v_bfe_u32 v29, v{vL}, 4, 1'); A('v_lshl_or_b32 v28, v29, 5, v28'); A(f'v_and_b32 v29, 3, v{vL}'); A('v_lshl_or_b32 v28, v29, 3, v28')
        A('s_lshl_b32 s6, s10, 11'); A(f's_add_u32 s6, s6, {L_Y}'); A('v_add_u32 v28, s6, v28')
        A(f'v_bfe_u32 v29, v{vL}, 1, 3'); A('s_lshl_b32 s6, s10, 1'); A('v_xor_b32 v29, s6, v29')
        A(f'v_and_b32 v30, 31, v{vL}'); A('v_lshlrev_b32 v30, 7, v30'); A(f'v_lshrrev_b32 v31, 5, v{vL}'); A('v_lshl_or_b32 v30, v31, 3, v30'); A(f'v_add_u32 v30, {L_Q}, v30')
        A('v_xor_b32 v31, 1, v29'); A('v_lshl_add_u32 v29, v29, 4, v30'); A('v_lshl_add_u32 v30, v31, 4, v30')
        o.append(WAITVM('y'))
        QY = 120
        GF = 31
        for p in range(2):
            for gq in range(2):
                A(f'ds_read_b64 {vr(QY+2*gq,2)}, v{29+gq} offset:{4096*p}')
                A(f'ds_read_b64_tr_b16 {vr(QY+4+2*gq,2)}, v28 offset:{1024*gq + 64*p}')
            A(f'v_lshlrev_b32 v{GF}, 16, v{vGG+p}'); A(f'v_and_b32 v{vGG+p}, s{sMASK}, v{vGG+p}')
            for gq in range(2):
                for h in range(2):
                    d = vGA + 8 * p + 4 * gq + 2 * h
                    q, y = QY + 2 * gq + h, QY + 4 + 2 * gq + h
                    A(f'v_lshlrev_b32 v{d}, 16, v{q}'); A(f'v_and_b32 v{d+1}, s{sMASK}, v{q}')
                    A(f'v_lshlrev_b32 v{q}, 16, v{y}'); A(f'v_and_b32 v{y}, s{sMASK}, v{y}')
                    A(f'v_mul_f32 v{d}, v{d}, v{q}'); A(f'v_mul_f32 v{d+1}, v{d+1}, v{y}')
                    A(f'v_mul_f32 v{d}, v{d}, v{GF}'); A(f'v_mul_f32 v{d+1}, v{d+1}, v{GF}')
        return o
    def out_addr(self):
        o = []; A = lambda t, **k: o.append(I(t, **k))
        A(f'v_and_b32 v28, 31, v{vL}'); A('v_lshlrev_b32 v28, 10, v28'); A(f'v_lshrrev_b32 v29, 5, v{vL}'); A(f'v_lshl_or_b32 v{vE+4}, v29, 4, v28')
        A(f's_lshl_b32 s15, s{sTB}, 16'); A(f's_lshl_b32 s5, s{sDB}, 7'); A('s_add_u32 s15, s15, s5'); A('s_lshl_b32 s5, s10, 5'); A('s_add_u32 s15, s15, s5')
        A('s_add_u32 s9, s15, 32768')
        return o
    def out_store(self, p, B):
        o = []; A = lambda t, **k: o.append(I(t, **k))
        G = vGA + 8 * p
        for e in range(8): A(f'v_fmac_f32 v{G+e}, v{vGG+p}, v{B+e}')
        for q in range(4): A(f'v_cvt_pk_bf16_f32 v{B+q}, v{G+2*q}, v{G+2*q+1}')
        A(f'v_permlane32_swap_b32 v{B}, v{B+2}'); A(f'v_permlane32_swap_b32 v{B+1}, v{B+3}')
        A(f'buffer_store_dwordx4 {vr(B,4)}, v{vE+4}, {srd(SOUT)}, s{15 if p == 0 else 9} offen')
        return o

    def tail(self):
        O = self.o
        W = Weave()
        cb = self.conv(W)
        gb = len(W.spine)
        for i in range(56):
            p, s = divmod(i, 28)
            for dt in range(2):
                acc = ACC2 + 32 * p + 16 * dt
                c = '0' if s == 0 else vr(acc, 16)
                W.mfma(I(f'v_mfma_f32_32x32x16_bf16 {vr(acc,16)}, {ar(aWD+8*s+4*dt,4)}, {vr(HR+4*(i%NHR),4)}, {c}',
                         expect=[(regs('a', aWD+8*s+4*dt, 4), f'wd{s}_{dt}'), (regs('v', HR+4*(i%NHR), 4), f'h{i}')]))
        cg = lambda st: cb + 2 * st
        for k, x in enumerate(self.wd_loads()): W.place([x], cg(k) + 1)
        g = W.place(self.h_epilogue(), cg(O['epi_start']))
        g = W.place(stream('hfl', [self.flag_store('hst', 13, SHS)]), g + 2 * O['hflag_delay'])
        assert g < cg(O['hpoll']), g
        W.place(stream('fa', self.final_addr() + self.q_dma()), g + 1)
        W.place(stream('hp', self.h_poll_addr() + [self.poll_issue(14, 'hp')]), cg(O['hpoll']))
        g = W.place(stream('hp', [self.poll_check(14)]), cg(O['hcheck']))
        addr, wr, addr2, post = [stream('ce', z) for z in self.conv_epilogue()]
        g2 = W.place(addr + addr2, g + 1)
        assert g2 < gb
        npre = 0; g = max(g + 1, cg(56))
        while g < gb and npre < NHR:
            W.place([self.h_load(npre)], g); npre += 1; g += 1
        for i in range(npre, 56):
            earliest = gb + 2 * (i - NHR) + 1 if i >= NHR else gb
            pos = max(earliest, gb + 2 * (i - npre))
            W.place([self.h_load(i)], pos)
        g = W.place(wr, gb + 1)
        g = W.place([[WAITLGKM0(), I('s_barrier')]], g + 2)
        g = W.place(post, g)
        W.place(self.stamp(5), g)
        g = W.place(stream('gp', self.g_poll_addr() + [self.poll_issue(14, 'gp')]), max(g, gb + O['gpoll']))
        g = W.place(stream('ce', [self.flag_store('yst', 11)]), g + 12)
        g = W.place(stream('gp', [self.poll_check(14)] + self.g_loads()), g + 1)
        g = W.place(stream('y', self.y_poll_addr() + [self.poll_issue(14, 'yp')]), max(g, gb + O['ypoll']))
        g = W.place(self.exch_write(0), max(g, gb + 56 + 3))
        g = W.place([[WAITLGKM0(), WAITVM('q'), I('s_barrier')]], g + 3)
        g = W.place(self.exch_read(0), g)
        g = W.place(self.exch_sum(0, vBS), g + 2)
        g = W.place(stream('y', [self.poll_check(14)] + self.y_dma()), max(g, gb + O['ycheck']))
        g = W.place(stream('y', self.out_addr()), g)
        g = W.place(stream('y', self.a_part()), max(g + 10, gb + 92))
        W.gaps[cb] += self.stamp(3); W.gaps[gb] += self.stamp(4)
        for k in range(8):
            W.gaps[cb + 16 * k] += self.stamp(k, 'conv'); W.gaps[gb + 14 * k] += self.stamp(k, 'g2')
        o = W.flatten()
        o += self.stamp(6)
        o += stream('y', self.out_store(0, vBS))
        o += self.exch_write(1) + [WAITLGKM0(), I('s_barrier')] + self.exch_read(1) + self.exch_sum(1, vBS) + stream('y', self.out_store(1, vBS))
        if O['prof']:
            o += self.stamp(7) + [DRAIN()] + self.stamp(8) + [I('s_waitcnt lgkmcnt(0)')]
            o += [I('s_lshl_b32 s5, s2, 2'), I(f's_add_u32 s5, s5, s{sW}'), I('s_lshl_b32 s5, s5, 6'), I(f's_add_u32 s5, s5, {WS_PROF}'), I('v_mov_b32 v28, 0'), I('s_mov_b64 exec, 1')]
            for k, r in enumerate(STAMPS):
                o += [I(f'v_mov_b32 v29, s{r}'), I(f'buffer_store_dword v29, v28, {srd(SWS)}, s5 offen offset:{4*k}')]
            o += [I('s_memrealtime s[6:7]'), I('s_waitcnt lgkmcnt(0)'), I('v_mov_b32 v29, s6'), I(f'buffer_store_dword v29, v28, {srd(SWS)}, s5 offen offset:40')]
            o += [I('v_mov_b32 v30, s0'), I(f'buffer_store_dword v30, v28, {srd(SWS)}, s5 offen offset:36'), I('v_mov_b32 v31, s1'), I(f'buffer_store_dword v31, v28, {srd(SWS)}, s5 offen offset:44')]
        return o

    def helper(self):
        O = self.o
        o = []; A = lambda t, **k: o.append(I(t, **k))
        A('L_helper:')
        sHX, sHD, sHQ = 2, 8, 9
        A('s_and_b32 s8, s2, 7'); A('s_lshr_b32 s9, s2, 3')
        KB = 35904
        A(f's_mul_i32 s10, s{sW}, {KB}')
        A(f'v_lshrrev_b32 v28, 3, v{vL}'); A(f'v_and_b32 v29, 7, v{vL}'); A('v_lshlrev_b32 v30, 10, v28'); A('v_lshl_add_u32 v32, v29, 4, v30')
        A('s_lshl_b32 s11, s9, 2'); A(f's_add_u32 s11, s11, s{sW}')
        A('s_lshl_b32 s12, s11, 17'); A('s_lshl_b32 s13, s8, 7'); A('s_add_u32 s12, s12, s13')
        A('s_cmp_eq_u32 s11, 0'); A('s_cselect_b32 s13, 0x80000000, 0'); A('v_or_b32 v33, s13, v32')
        A('s_cselect_b32 s13, 0, 8192'); A('s_sub_u32 s13, s12, s13')
        A('s_waitcnt lgkmcnt(0)')
        o += self.ws_base()
        if self.o['prof']: A('s_mov_b32 s0, s74'); A('s_mov_b32 s1, s76')
        o += self.mk_srd(SWS, P_WS, WS_SIZE)
        o += self.mk_srd(SA, P_K, 0x200000) + self.mk_srd(SB, P_V, 0x200000) + self.mk_srd(SX, P_Q, 0x200000)
        sk = self.lab('np')
        A(f's_or_b32 s3, s2, s{sW}'); A('s_cmp_lg_u32 s3, 0'); A(f's_cbranch_scc1 {sk}')
        o.append(RAW(f'v_mov_b32 v28, {FL_KV}\nbuffer_load_dwordx2 v[24:25], v28, {srd(SWS)}, 0 offen sc1'))
        A(f'{sk}:')
        fl = O['ldkv']
        A(f's_mov_b32 m0, s10')
        A(f'buffer_load_dwordx4 v33, {srd(SA)}, s13 offen {fl} lds', tag='np0')
        sk = self.lab('np')
        def blk(b):
            r = [I(f's_add_u32 m0, s10, {(b+1)*1088}'), I(f's_add_u32 s14, s12, {b*8192}'),
                 I(f'buffer_load_dwordx4 v32, {srd(SA)}, s14 offen {fl} lds', tag=f'kv{b>>3}'),
                 I(f's_add_u32 m0, s10, {(17+b)*1088}'), I('s_nop 0'),
                 I(f'buffer_load_dwordx4 v32, {srd(SB)}, s14 offen {fl} lds', tag=f'kv{b>>3}')]
            return r
        for b in range(8): o += blk(b)
        A('s_cmp_lg_u32 s3, 0'); A(f's_cbranch_scc1 {sk}')
        o.append(RAW('s_waitcnt vmcnt(17)\nv_add_u32 v24, 0x9E3779B8, v24\nv_or_b32 v24, 1, v24\nv_add_u32 v25, 0x7F4A7C15, v25\nv_mov_b32 v28, 0\n'
                     f's_mov_b64 exec, 1\nglobal_store_dwordx2 v28, v[24:25], {sp(P_DBG)} sc1\ns_mov_b64 exec, -1'))
        A(f'{sk}:')
        A(f'v_lshrrev_b32 v28, 3, v{vL}'); A('v_lshlrev_b32 v30, 6, v28'); A('s_lshl_b32 s15, s8, 9'); A('v_add_u32 v30, s15, v30')
        for i in range(4): A(f'global_load_dwordx4 {vr(64+4*i,4)}, v30, {sp(P_SK)} offset:{16*i}')
        for b in range(8, 16): o += blk(b)
        if O['codepf']: o += stream('pf', self.code_prefetch())
        o += self.stamp(0)
        o += stream('nonce', self.nonce_issue())
        S0 = 32
        A(f'v_lshrrev_b32 v28, 3, v{vL}')
        A(f'v_and_b32 v29, 7, v{vL}'); A('v_mul_u32_u24 v31, 1088, v29'); A('v_lshl_add_u32 v31, v28, 4, v31'); A('v_add_u32 v31, s10, v31')
        A('v_lshlrev_b32 v30, 15, v28'); A('v_lshl_add_u32 v30, v29, 4, v30')
        A('s_lshl_b32 s12, s8, 18'); A('s_lshl_b32 s13, s11, 8'); A('s_add_u32 s12, s12, s13'); A(f's_add_u32 s12, s12, {WS_KVT}')
        KR = 128; VR = 172; KF = 80; VF = 112; RS = 204; PO = 220
        for x in range(2):
            o.append(WAITVM(['np0', f'kv{x}']))
            for i in range(-3, 8):
                off = (8*x + 1) * 1088 + i * 128 if i >= 0 else 8*x * 1088 + (8 + i) * 128
                A(f'ds_read_b128 {vr(KR+4*(i+3),4)}, v31 offset:{off}')
                if i >= 0: A(f'ds_read_b128 {vr(VR+4*i,4)}, v31 offset:{(17+8*x)*1088 + i*128}')
            if x == 0:
                for e in range(8):
                    for j in range(4):
                        src = 64 + 2 * e + (j >> 1)
                        if j & 1: A(f'v_and_b32 v{S0+8*j+e}, s{sMASK}, v{src}')
                        else: A(f'v_lshlrev_b32 v{S0+8*j+e}, 16, v{src}')
            def unpackk(i):
                for m in range(4):
                    d = KF + 8 * ((i + 4) & 3) + 2 * m
                    A(f'v_lshlrev_b32 v{d}, 16, v{KR+4*(i+3)+m}'); A(f'v_and_b32 v{d+1}, s{sMASK}, v{KR+4*(i+3)+m}')
            for i in range(-3, 0): unpackk(i)
            for i in range(8):
                unpackk(i)
                for m in range(4):
                    A(f'v_lshlrev_b32 v{VF+2*m}, 16, v{VR+4*i+m}'); A(f'v_and_b32 v{VF+2*m+1}, s{sMASK}, v{VR+4*i+m}')
                R = RS + 8 * (i & 1)
                kf = lambda j, m: vr(KF + 8 * ((i - j + 4) & 3) + 2 * m, 2)
                for m in range(4): A(f'v_pk_mul_f32 {vr(R+2*m,2)}, {kf(3,m)}, {vr(S0+24+2*m,2)}')
                for j in (2, 1, 0):
                    for m in range(4): A(f'v_pk_fma_f32 {vr(R+2*m,2)}, {kf(j,m)}, {vr(S0+8*j+2*m,2)}, {vr(R+2*m,2)}')
                for m in range(4): A(f'v_pk_mul_f32 {vr(R+2*m,2)}, {vr(R+2*m,2)}, {vr(VF+2*m,2)}')
                if i & 1:
                    q = (7 - i) // 2
                    for e in range(8): A(f'v_cvt_pk_bf16_f32 v{PO+4*e+q}, v{RS+8+e}, v{RS+e}')
            for e in range(8):
                A(f's_add_u32 s14, s12, {e*4096 + 128*x}')
                A(f'buffer_store_dwordx4 {vr(PO+4*e,4)}, v30, {srd(SWS)}, s14 offen sc1', tag='kvst')
            if x == 0: o += stream('nonce', self.nonce_check())
        o += self.stamp(1)
        o += self.mk_srd(SA, P_WD, 1792*1024)
        A(f'v_lshrrev_b32 v28, 3, v{vL}'); A(f'v_bfe_u32 v29, v{vL}, 4, 1'); A('v_lshlrev_b32 v29, 2, v29'); A(f'v_and_b32 v32, 7, v{vL}'); A('v_xor_b32 v29, v29, v32')
        A('v_lshlrev_b32 v28, 10, v28'); A('v_lshl_add_u32 v32, v29, 4, v28')
        A('s_mul_i32 s12, s9, 448'); A(f's_mul_i32 s13, s{sW}, 112'); A('s_add_u32 s12, s12, s13'); A('s_lshl_b32 s12, s12, 10'); A('s_lshl_b32 s13, s8, 7'); A('s_add_u32 s12, s12, s13')
        fl = O['ldwd']
        for b in range(14):
            o += ([I(f's_add_u32 m0, s10, {b*1024}'), I(f's_add_u32 s14, s12, {b*8192}'), I(f'buffer_load_dwordx4 v32, {srd(SA)}, s14 offen {fl} lds', tag=f'wdl{b>>1}')])
        A('s_lshl_b32 s13, s8, 7'); A('s_lshl_b32 s14, s9, 5'); A('s_add_u32 s13, s13, s14'); A(f's_lshl_b32 s14, s{sW}, 3'); A('s_add_u32 s13, s13, s14')
        A(f's_add_u32 s15, s13, {FL_WD}'); A(f's_add_u32 s13, s13, {FL_KV}')
        o += stream('fl', self.flag_store('kvst', 13))
        A(f's_lshl_b32 s12, s2, 16'); A(f's_lshl_b32 s13, s{sW}, 14'); A('s_add_u32 s12, s12, s13')
        A(f'v_lshrrev_b32 v28, 5, v{vL}'); A(f'v_bfe_u32 v29, v{vL}, 2, 2'); A('v_lshl_or_b32 v28, v28, 2, v29'); A('v_lshlrev_b32 v28, 7, v28'); A('v_add_u32 v28, s10, v28')
        A(f'v_and_b32 v29, 1, v{vL}'); A('v_lshl_add_u32 v28, v29, 3, v28')
        A(f'v_bfe_u32 v29, v{vL}, 4, 1'); A(f'v_bfe_u32 v30, v{vL}, 1, 1'); A('v_lshl_or_b32 v29, v29, 1, v30')
        A(f'v_bfe_u32 v30, v{vL}, 3, 1'); A('v_lshl_or_b32 v29, v30, 2, v29')
        A('v_lshl_add_u32 v30, v29, 4, v28'); A('v_xor_b32 v29, 4, v29'); A('v_lshl_add_u32 v31, v29, 4, v28')
        A('s_mul_i32 s13, s8, 112'); A('s_mul_i32 s14, s9, 28'); A('s_add_u32 s13, s13, s14'); A(f's_mul_i32 s14, s{sW}, 7'); A('s_add_u32 s13, s13, s14')
        A('s_lshl_b32 s13, s13, 11'); A(f's_add_u32 s13, s13, {WS_WDF}')
        for fs in range(7):
            o.append(WAITVM(f'wdl{fs}'))
            for dt in range(2):
                for j in range(2): A(f'ds_read_b64_tr_b16 {vr(128+8*fs+4*dt+2*j,2)}, v{30+dt} offset:{(16*fs+8*j)*128}')
            if fs: A('s_add_u32 s13, s13, 2048')
            for dt in range(2): A(f'buffer_store_dwordx4 {vr(128+8*fs+4*dt,4)}, v{vL16}, {srd(SWS)}, s13 offen offset:{1024*dt} sc1', tag='wdst')
        A(f'global_load_dwordx4 {vr(32,4)}, v{vL16}, {sp(P_GW)}')
        for i in range(16):
            if i % 4 == 0 and i: A('s_add_u32 s12, s12, 4096')
            A(f'buffer_load_dwordx4 {vr(192+4*i,4)}, v{vL16}, {srd(SX)}, s12 offen offset:{1024*(i&3)}')
        o += stream('fl', self.flag_store('wdst', 15))
        o += self.stamp(2)
        Z = 36
        for i in range(16):
            R = 192 + 4 * i
            A(f'v_dot2_f32_bf16 v{Z+i}, v{R}, v32, 0')
            for m in range(1, 4): A(f'v_dot2_f32_bf16 v{Z+i}, v{R+m}, v{32+m}, v{Z+i}')
        for sh in (8, 4, 2, 1):
            for i in range(16): A(f'v_add_f32_dpp v{Z+i}, v{Z+i}, v{Z+i} row_ror:{sh} row_mask:0xf bank_mask:0xf')
        A('s_mov_b32 s4, 0x00010001'); A('s_mov_b32 s5, 0x00010001'); A(f'v_mov_b32 v52, v{Z}')
        for i in range(1, 16):
            A('s_lshl_b64 s[4:5], s[4:5], 1'); A(f'v_cndmask_b32 v52, v52, v{Z+i}, s[4:5]')
        A('v_mov_b32 v53, v52'); A('v_permlane32_swap_b32 v52, v53'); A('v_add_f32 v52, v52, v53')
        A('v_mov_b32 v53, v52'); A('v_permlane16_swap_b32 v52, v53'); A('v_add_f32 v52, v52, v53')
        A('v_cvt_pk_bf16_f32 v52, v52, v52'); A(f'v_and_b32 v52, s{sMASK}, v52')
        A('v_mul_f32 v52, 0xbfb8aa3b, v52'); A('v_exp_f32 v52, v52'); A('v_add_f32 v52, 1.0, v52'); A('v_rcp_f32 v52, v52')
        A('v_cvt_pk_bf16_f32 v52, v52, v52'); A(f'v_and_b32 v52, s{sMASK}, v52'); A('v_sub_f32 v53, 1.0, v52'); A('v_cvt_pk_bf16_f32 v52, v52, v53')
        A(f'v_lshlrev_b32 v28, 2, v{vL}'); A('s_lshl_b32 s12, s2, 8'); A(f's_lshl_b32 s13, s{sW}, 6'); A('s_add_u32 s12, s12, s13'); A(f's_add_u32 s12, s12, {WS_G}')
        o.append([I('s_mov_b64 exec, 0xffff'), I(f'buffer_store_dword v52, v28, {srd(SWS)}, s12 offen sc1', tag='gst'), I('s_mov_b64 exec, -1')])
        A('s_lshl_b32 s12, s2, 7'); A(f's_lshl_b32 s13, s{sW}, 3'); A('s_add_u32 s12, s12, s13'); A(f's_add_u32 s15, s12, {FL_G}')
        o += [WAITLGKM0(), I('s_barrier')]
        o += stream('late', self.late_setup()) + stream('ssm', self.ssm_loads()) + stream('kvp', self.kv_poll_addr() + [self.poll_issue(14, 'kvp')])
        o += stream('fl', self.flag_store('gst', 15))
        o += stream('zero', self.zero_fill()) + stream('kvp', self.poll_check(14) + self.kv_loads()) + stream('wdp', self.wd_poll_addr() + [self.poll_issue(14, 'wdp')])
        o += stream('cop', self.copies_build()) + stream('uw', self.u_writes()) + stream('wdp', self.poll_check(14))
        o += self.mk_srd(SHS, P_WS, 0)
        A(f's_mov_b32 s{sHo0}, 0'); A(f's_mov_b32 s{sHo1}, 0'); A('s_mov_b32 s13, 0')
        o += [DRAIN(), I('s_nop 7'), I('s_branch L_join')]
        flat = []
        for x in o:
            if isinstance(x, list): flat += x
            elif x is not None: flat.append(x)
        return flat

    def build(self):
        flat = lambda L: [y for x in L for y in (x if isinstance(x, list) else [x])]
        main = self.prologue() + flat(self.gemm1()) + [I('L_join:')] + self.tail() + [I('L_end:'), I('s_endpgm')]
        main = flat(main)
        hel = [RESET()] + self.helper()
        allc = main + hel
        check_tags(allc)
        temps = set(regs('s', 3, 13)) | set(regs('v', 28, 4)) | {('scc', 0), ('vcc_lo', 0), ('m0', 0), ('v', vFl), ('v', vP), ('v', vP+1), ('v', vU0), ('v', vU1)}
        check_streams(allc, temps, allow={(None, 'hfl'), (None, 'dma'), (None, 'fl')})
        allc = insert_nops(insert_waits(allc))
        self.ins = allc
        hdr = open('cdna_kernels/' + NAME + '.s.ref').read().split('\n')
        head = [l for l in hdr if l.startswith(';') and '@launch' not in l and 'Override launch' not in l and 'grid=ceil' not in l]
        txt = '\n'.join(head) + '\n' + f'; @launch grid=(256,1,1) block=(256,1,1) lds={LDS_BYTES}\n'
        txt += f'.amdgcn_target "amdgcn-amd-amdhsa--gfx950"\n.text\n.globl {NAME}_kernel\n.p2align 12\n.type {NAME}_kernel,@function\n{NAME}_kernel:\n'
        txt += render(allc) + 'L_codeend:\n'
        txt += f'''.section .rodata,"a"
.p2align 6
.amdhsa_kernel {NAME}_kernel
  .amdhsa_next_free_vgpr 512
  .amdhsa_next_free_sgpr 102
  .amdhsa_accum_offset 256
  .amdhsa_group_segment_fixed_size 0
  .amdhsa_kernarg_size 112
  .amdhsa_user_sgpr_count 2
  .amdhsa_user_sgpr_kernarg_segment_ptr 1
  .amdhsa_system_sgpr_workgroup_id_x 1
  .amdhsa_float_denorm_mode_32 3
.end_amdhsa_kernel
'''
        return txt

if __name__ == '__main__':
    out = sys.argv[1]
    kw = {}
    for a in sys.argv[2:]:
        k, v = a.split('=')
        try: v = int(v)
        except ValueError: pass
        kw[k] = v
    open(out, 'w').write(Gen(**kw).build())
```

```python
import sys, json
from asmlib import *

NAME = 'gated_mix__ssm_conv_h3__glu_gated_reglu__prompt'
WS_H   = 0
WS_WDF = 0x700000
WS_KVT = 0x900000
WS_YT  = 0xB00000
WS_G   = 0xD00000
FL_H   = 0xD10000
FL_KV  = 0xD14000
FL_WD  = 0xD15000
FL_G   = 0xD16000
FL_Y   = 0xD18000
WS_PROF= 0xD20000
WS_SIZE= 0xE00000
L_W = 0
L_X = 49152
L_C = 81920
L_Q = 147456
L_Y = 155648
LDS_BYTES = 163840
CSTR = 2368
UOFF = 9280

P_Q, P_K, P_V, P_SK, P_SSM, P_D, P_BX, P_WG, P_WU, P_WD, P_GW, P_OUT, P_DBG, P_WS = [16 + 2 * i for i in range(14)]
SX, SA, SB, SWS, SHS, SSM, SOUT = 44, 48, 52, 56, 60, 64, 68
sN = 72
sG = 74
sW, sW4K, sC0, sXb, sWb, sWo, sXo, sHo0, sHo1, sTB, sDB, sMASK, sSPIN, sD = range(88, 102)
STAMPS = [16, 18, 20, 24, 26, 28, 30, 32, 38]
def srd(n): return f's[{n}:{n+3}]'
def sp(n): return f's[{n}:{n+1}]'
def vr(n, k): return f'v[{n}:{n+k-1}]' if k > 1 else f'v{n}'
def ar(n, k): return f'a[{n}:{n+k-1}]'
def regs(t, n, k): return [(t, i) for i in range(n, n + k)]
vL, vL16 = 0, 1
vX, vW, vA, vB = 2, 6, 10, 14
vCA, vCB, vG0, vG1, vHl, vFl, vP, vN = 18, 19, 20, 21, 22, 23, 24, 26
vT = 28
FA = [32, 56]; FB = [48, 72]
vD = 80; vCT = 98; vU0 = 110; vU1 = 111; vKV = 112
ACC1 = 128
CA = 32; CBR = 56
ACC2 = 32
HR = 160; NHR = 24
vBS = 128; vGA = 136; vGG = 152; vE = 154
vXR = 96
aWD = 0; aCV = 224

DEF = dict(prof=0, lw=2, dma_gap=1, p_nonce=8, p_ssm=11, p_kv=12, p_wdpoll=14, epi_start=0, hflag_delay=11, hpoll=44, hcheck=54,
           ypoll=40, ycheck=64, gpoll=8, ldx='', ldw='', ldkv='nt', ldwd='nt', ldssm='nt', codepf=1, spin=200000, nohelp=0)

class Gen:
    def __init__(self, **kw):
        self.o = dict(DEF); self.o.update(kw)
        self.nlab = 0
        self.nstamp = 0
    def lab(self, base):
        self.nlab += 1; return f'L_{base}_{self.nlab}'
    def stamp(self, k, st='std'):
        if not self.o['prof'] or (self.o.get('stampset', 'std') != st and k < 8): return []
        x = I(f's_memtime {sp(STAMPS[k])}'); x.note = 'stamp'; return [x]
    def mk_srd(self, d, p, size, bias=0):
        o = []
        if bias:
            o += [I(f's_sub_u32 s{d}, s{p}, {bias}'), I(f's_subb_u32 s{d+1}, s{p+1}, 0')]
        else:
            o += [I(f's_mov_b64 {sp(d)}, {sp(p)}')]
        o += [I(f's_mov_b32 s{d+2}, {size + bias}'), I(f's_mov_b32 s{d+3}, 0x20000')]
        return o
    def ws_base(self):
        b = self.o.get('wsbase', 0) << 20
        return [I(f's_add_u32 s{P_WS}, s{P_WS}, {b}'), I(f's_addc_u32 s{P_WS+1}, s{P_WS+1}, 0')] if b else []
    def poll_issue(self, soff_reg, tag):
        return I(f'buffer_load_dwordx2 {vr(vP,2)}, v{vFl}, {srd(SWS)}, s{soff_reg} offen sc1', tag=tag)
    def poll_check(self, soff_reg):
        ok = self.lab('ok'); lp = self.lab('lp')
        return [I(f'v_cmp_eq_u64 vcc, {sp(sN)}, {vr(vP,2)}'), I('s_cmp_eq_u64 vcc, exec'), I(f's_cbranch_scc1 {ok}'),
                RAW(f's_mov_b32 s{sSPIN}, 0\n{lp}:\nbuffer_load_dwordx2 {vr(vP,2)}, v{vFl}, {srd(SWS)}, s{soff_reg} offen sc1\ns_waitcnt vmcnt(0)\n'
                    f'v_cmp_eq_u64 vcc, {sp(sN)}, {vr(vP,2)}\ns_add_u32 s{sSPIN}, s{sSPIN}, 1\ns_nop 1\ns_cmp_eq_u64 vcc, exec\ns_cbranch_scc1 {ok}\n'
                    f's_cmp_lt_u32 s{sSPIN}, {self.o["spin"]}\ns_cbranch_scc1 {lp}', defs=f'vcc scc', uses=f's{soff_reg} v{vFl}'),
                I(f'{ok}:')]
    def nonce_issue(self):
        return [I(f'v_mov_b32 v{vT}, 0'), I(f'global_load_dwordx2 {vr(vN,2)}, v{vT}, {sp(P_DBG)} sc1', tag='nonce')]
    def nonce_check(self):
        ok = self.lab('nok'); lp = self.lab('nlp')
        return [I(f'v_cmp_ne_u32 vcc, 0, v{vN}'), I('s_cmp_eq_u64 vcc, exec'), I(f's_cbranch_scc1 {ok}'),
                RAW(f's_mov_b32 s{sSPIN}, 0\nv_mov_b32 v{vT}, 0\n{lp}:\nglobal_load_dwordx2 {vr(vN,2)}, v{vT}, {sp(P_DBG)} sc1\ns_waitcnt vmcnt(0)\n'
                    f'v_cmp_ne_u32 vcc, 0, v{vN}\ns_add_u32 s{sSPIN}, s{sSPIN}, 1\ns_nop 1\ns_cmp_eq_u64 vcc, exec\ns_cbranch_scc1 {ok}\n'
                    f's_cmp_lt_u32 s{sSPIN}, {self.o["spin"]}\ns_cbranch_scc1 {lp}', defs=f'vcc scc v{vT}'),
                I(f'{ok}:'), I(f'v_readfirstlane_b32 s{sN}, v{vN}'), I(f'v_readfirstlane_b32 s{sN+1}, v{vN+1}')]
    def flag_store(self, tag, soff_reg, srdn=SWS):
        return [I(f'v_mov_b32 v{vT}, 0'), WAITVM(tag), I('s_mov_b64 exec, 1'),
                I(f'buffer_store_dwordx2 {vr(vN,2)}, v{vT}, {srd(srdn)}, s{soff_reg} offen sc1'), I('s_mov_b64 exec, -1')]

    def prologue(self):
        o = []; A = lambda t, **k: o.append(I(t, **k))
        A('s_cmp_ge_u32 s2, 256'); A('s_cbranch_scc1 L_end')
        if self.o['prof']: A('s_memrealtime s[74:75]'); A('s_memtime s[76:77]')
        A('s_load_dwordx16 s[16:31], s[0:1], 0'); A('s_load_dwordx8 s[32:39], s[0:1], 64'); A('s_load_dwordx4 s[40:43], s[0:1], 96')
        A(f'v_lshrrev_b32 v1, 6, v0'); A(f'v_and_b32 v{vL}, 63, v0'); A(f'v_readfirstlane_b32 s{sW}, v1')
        A(f'v_lshlrev_b32 v{vL16}, 4, v{vL}')
        A(f's_lshl_b32 s{sW4K}, s{sW}, 12')
        A(f's_mov_b32 s{sMASK}, 0xffff0000')
        A(f'v_lshrrev_b32 v28, 3, v{vL}'); A('v_lshlrev_b32 v28, 10, v28')
        A(f'v_and_b32 v29, 7, v{vL}'); A(f'v_lshrrev_b32 v30, 4, v{vL}')
        A('v_xor_b32 v29, v29, v30')
        A(f'v_lshl_add_u32 v{vX}, v29, 4, v28')
        A(f'v_xor_b32 v{vX+1}, 64, v{vX}'); A(f'v_add_u32 v{vX+1}, 7168, v{vX+1}')
        A('s_and_b32 s3, s2, 7'); A('s_lshr_b32 s4, s2, 3')
        A('s_and_b32 s5, s3, 3'); A('s_lshr_b32 s6, s3, 2')
        A('s_lshl_b32 s7, s5, 3'); A('s_lshl_b32 s8, s6, 2'); A('s_add_u32 s7, s7, s8'); A('s_and_b32 s8, s4, 3')
        A(f's_add_u32 s{sTB}, s7, s8'); A(f's_lshr_b32 s{sDB}, s4, 2')
        A('s_cmp_lt_u32 s2, 32'); A('s_cbranch_scc1 L_helper')
        return o

    def gemm_prologue(self):
        o = []; A = lambda t, **k: o.append(I(t, **k))
        A('s_sub_u32 s4, s4, 4'); A('s_and_b32 s7, s4, 3'); A('s_lshr_b32 s8, s4, 2')
        A('s_lshl_b32 s9, s5, 2'); A('s_add_u32 s9, s9, s7')
        A('s_mul_i32 s10, s6, 7'); A('s_add_u32 s10, s10, s8')
        A('s_lshl_b32 s11, s7, 1'); A('s_add_u32 s11, s11, s8'); A('s_and_b32 s12, s5, 1'); A('s_add_u32 s11, s11, s12')
        if self.o.get('norot'): A(f's_mov_b32 s{sC0}, 0')
        else: A(f's_and_b32 s{sC0}, s11, 7')
        A(f's_lshl_b32 s{sXb}, s9, 17'); A(f's_lshl_b32 s11, s{sW}, 15'); A(f's_add_u32 s{sXb}, s{sXb}, s11')
        A(f's_mul_i32 s{sWb}, s{sW}, {8*3584}'); A('s_lshl_b32 s11, s10, 8'); A(f's_add_u32 s{sWb}, s{sWb}, s11')
        A(f's_and_b32 s11, s{sW}, 1'); A(f's_lshr_b32 s12, s{sW}, 1')
        A('s_lshl_b32 s13, s9, 1'); A('s_add_u32 s13, s13, s11')
        A('s_mul_i32 s14, s13, 112'); A('s_lshl_b32 s15, s10, 3'); A('s_add_u32 s14, s14, s15'); A('s_lshl_b32 s15, s12, 2'); A('s_add_u32 s14, s14, s15')
        A(f's_lshl_b32 s{sHo0}, s14, 11'); A(f's_add_u32 s{sHo1}, s{sHo0}, 4096')
        A('s_lshl_b32 s13, s13, 8'); A('s_lshl_b32 s14, s10, 4'); A('s_add_u32 s13, s13, s14'); A('s_lshl_b32 s14, s12, 3'); A('s_add_u32 s13, s13, s14')
        A(f's_add_u32 s13, s13, {FL_H}')
        A(f'v_add_u32 v{vX+2}, 14336, v{vX}'); A(f'v_add_u32 v{vX+3}, 14336, v{vX+1}')
        A(f'v_lshrrev_b32 v28, 4, v{vL}')
        A(f'v_mul_u32_u24 v29, 3584, v28')
        A(f'v_bfe_u32 v30, v{vL}, 1, 3'); A('v_lshlrev_b32 v28, 1, v28'); A('v_xor_b32 v30, v30, v28')
        A(f'v_and_b32 v31, 1, v{vL}'); A('v_lshlrev_b32 v31, 4, v31'); A('v_lshl_or_b32 v30, v30, 5, v31')
        A(f'v_add_u32 v{vW}, v29, v30'); A('v_xor_b32 v30, 32, v30'); A(f'v_add_u32 v{vW+1}, v29, v30')
        A(f'v_add_u32 v{vW+2}, {4*3584 - 2048 + 4096}, v{vW}'); A(f'v_add_u32 v{vW+3}, {4*3584 - 3072 + 4096}, v{vW+1}')
        A(f'v_add_u32 v{vW}, 4096, v{vW}'); A(f'v_add_u32 v{vW+1}, {4096-1024}, v{vW+1}')
        A(f's_lshl_b32 s{sXo}, s{sC0}, 7'); A(f's_add_u32 s{sXo}, s{sXo}, s{sXb}')
        A(f's_mul_i32 s{sWo}, s{sC0}, {64*3584}'); A(f's_add_u32 s{sWo}, s{sWo}, s{sWb}')
        o.append(WAITLGKM0())
        o += self.ws_base()
        if self.o['prof']: A('s_mov_b32 s0, s74'); A('s_mov_b32 s1, s76')
        o += self.mk_srd(SX, P_Q, 0x200000) + self.mk_srd(SA, P_WG, 512*3584, 4096) + self.mk_srd(SB, P_WU, 512*3584, 4096)
        return o

    def dma_x(self, c):
        o = [I(f's_add_u32 m0, s{sW4K}, {L_X + (c & 1) * 16384}')]
        fl = self.o['ldx']
        L = [I(f'buffer_load_dwordx4 v{vX+n}, {srd(SX)}, s{sXo} offen offset:{1024*n} {fl} lds', tag=f'x{c}') for n in range(4)]
        return [o + [L[0]]] + L[1:]
    def dma_w(self, H):
        fl = self.o['ldw']
        o = [I(f's_add_u32 m0, s{sW4K}, {L_W + (H % 3) * 16384}')]
        L = [I(f'buffer_load_dwordx4 v{vW+i}, {srd(SB if i & 1 else SA)}, s{sWo} offen offset:{1024*i} {fl} lds', tag=f'w{H}') for i in range(4)]
        return [o + [L[0]]] + L[1:]
    def adv_w(self, H):
        if H & 1: return [I(f's_add_u32 s{sWo}, s{sWo}, {32*3584}')]
        return [I(f's_add_u32 s3, s{sC0}, {H>>1}'), I('s_and_b32 s3, s3, 7'), I(f's_mul_i32 s3, s3, {64*3584}'), I(f's_add_u32 s{sWo}, s3, s{sWb}')]
    def adv_x(self, c):
        return [I(f's_add_u32 s4, s{sC0}, {c}'), I('s_and_b32 s4, s4, 7'), I('s_lshl_b32 s4, s4, 7'), I(f's_add_u32 s{sXo}, s4, s{sXb}')]

    def gemm_addr(self):
        o = []; A = lambda t, **k: o.append(I(t, **k))
        A(f's_lshr_b32 s3, s{sW}, 1'); A('s_lshl_b32 s3, s3, 2')
        A(f'v_bfe_u32 v28, v{vL}, 2, 2')
        A(f'v_bfe_u32 v29, v{vL}, 1, 1')
        A('v_lshl_or_b32 v30, v28, 1, v29')
        A('v_lshlrev_b32 v28, 8, v28'); A('v_lshl_or_b32 v28, v29, 10, v28')
        A(f'v_lshrrev_b32 v29, 5, v{vL}'); A('v_lshl_or_b32 v28, v29, 12, v28')
        A(f'v_bfe_u32 v29, v{vL}, 4, 1'); A('v_lshl_or_b32 v28, v29, 4, v28')
        A(f'v_and_b32 v29, 1, v{vL}'); A('v_lshl_or_b32 v28, v29, 3, v28')
        A('v_xor_b32 v30, s3, v30')
        for a in range(4):
            A(f'v_xor_b32 v29, {a}, v30'); A(f'v_lshl_or_b32 v{vA+a}, v29, 5, v28')
        A(f's_and_b32 s3, s{sW}, 1'); A('s_lshl_b32 s3, s3, 13'); A(f's_add_u32 s3, s3, {L_X}')
        A(f'v_and_b32 v28, 31, v{vL}'); A('v_lshlrev_b32 v28, 7, v28'); A('v_add_u32 v28, s3, v28')
        A(f'v_bfe_u32 v29, v{vL}, 1, 3'); A(f'v_lshrrev_b32 v30, 5, v{vL}'); A('v_xor_b32 v29, v29, v30')
        for s in range(4):
            A(f'v_xor_b32 v30, {2*s}, v29'); A(f'v_lshl_add_u32 v{vB+s}, v30, 4, v28')
        return o

    def frag_reads(self, S):
        st = S & 1; H = S >> 1; c = S >> 2
        fa, fb = FA[st], FB[st]
        wo = L_W + (H % 3) * 16384 + st * 8192
        xo = (c & 1) * 16384
        def rb(b): return I(f'ds_read_b128 {vr(fb+4*b,4)}, v{vB+(S&3)} offset:{xo + 4096*b}', tag=f'B{S}_{b}')
        def ra(a): return [I(f'ds_read_b64_tr_b16 {vr(fa+4*a+2*j,2)}, v{vA+a} offset:{wo + 2048*j}', tag=f'A{S}_{a}') for j in range(2)]
        return [rb(0)] + ra(0) + [rb(1)] + ra(1) + ra(2) + ra(3)

    def late_setup(self):
        o = []; A = lambda t, **k: o.append(I(t, **k))
        o += self.mk_srd(SWS, P_WS, WS_SIZE) + self.mk_srd(SOUT, P_OUT, 0x200000)
        A(f's_lshr_b32 s5, s{sW}, 1'); A('s_lshl_b32 s6, s2, 1'); A('s_add_u32 s5, s5, s6')
        A('s_lshl_b32 s6, s5, 12')
        A(f's_add_u32 s{SSM}, s{P_SSM}, s6'); A(f's_addc_u32 s{SSM+1}, s{P_SSM+1}, 0'); A(f's_mov_b32 s{SSM+2}, 4096'); A(f's_mov_b32 s{SSM+3}, 0x20000')
        A('s_lshl_b32 s6, s2, 2'); A(f'v_mov_b32 v{vT}, s6')
        A(f'global_load_dword v{vT+1}, v{vT}, {sp(P_D)}', tag='dval')
        A(f's_lshl_b32 s6, s{sW}, 14'); A(f's_add_u32 s6, s6, {L_C}')
        A(f'v_and_b32 v30, 3, v{vL}'); A(f'v_mul_u32_u24 v30, {CSTR}, v30')
        A(f'v_and_b32 v31, 28, v{vL}'); A('v_lshl_add_u32 v30, v31, 1, v30')
        A(f'v_lshrrev_b32 v31, 5, v{vL}'); A('v_lshlrev_b32 v31, 4, v31')
        A('v_sub_u32 v30, v30, v31'); A('s_add_u32 s7, s6, 16'); A(f'v_add_u32 v{vCA}, s7, v30')
        A(f'v_and_b32 v30, 31, v{vL}'); A('v_mul_u32_u24 v30, 144, v30'); A(f's_add_u32 s7, s6, {UOFF}'); A(f'v_add3_u32 v{vCB}, v30, v31, s7')
        A(f's_and_b32 s7, s{sW}, 1'); A('s_lshl_b32 s7, s7, 10'); A(f's_lshr_b32 s8, s{sW}, 1'); A('s_lshl_b32 s8, s8, 8')
        A(f's_mul_i32 s9, s{sDB}, {112*2048}'); A(f's_add_u32 s9, s9, {WS_WDF}')
        A(f'v_xor_b32 v30, s8, v{vL16}'); A('s_add_u32 s10, s9, s7'); A(f'v_add_u32 v{vG0}, s10, v30')
        A('s_xor_b32 s7, s7, 1024'); A('s_add_u32 s10, s9, s7'); A(f'v_add_u32 v{vG1}, s10, v30')
        A(f's_mul_i32 s9, s{sTB}, {112*2048}'); A(f'v_add_u32 v{vHl}, s9, v{vL16}')
        A(f's_and_b32 s7, s{sTB}, 3'); A('s_mul_i32 s7, s7, 7'); A('s_add_u32 s7, s7, 1'); A('s_lshr_b32 s7, s7, 1')
        A(f's_mul_i32 s8, s{sDB}, 7'); A('s_add_u32 s8, s8, 2'); A('s_lshr_b32 s8, s8, 2'); A('s_add_u32 s7, s7, s8')
        if self.o.get('norot2'): A('s_mov_b32 s7, 0')
        A('s_sub_u32 s8, s7, 14'); A('s_cmp_ge_u32 s7, 14'); A('s_cselect_b32 s7, s8, s7')
        A(f's_mul_i32 s8, s{sW}, {28*2048}'); A('s_lshl_b32 s7, s7, 12')
        A(f's_add_u32 s9, s8, {14*4096}')
        A(f's_add_u32 s{sG}, s7, s8')
        for g in range(1, 14):
            A(f's_add_u32 s{sG+g}, s{sG+g-1}, 4096'); A(f's_cmp_eq_u32 s{sG+g}, s9'); A(f's_cselect_b32 s{sG+g}, s8, s{sG+g}')
        A(f'v_readfirstlane_b32 s{sD}, v{vT+1}'); A(f's_lshr_b32 s7, s{sW}, 1'); A('s_lshl_b32 s7, s7, 4'); A(f's_lshr_b32 s{sD}, s{sD}, s7'); A(f's_lshl_b32 s{sD}, s{sD}, 16')
        return o

    def zero_fill(self):
        o = []; A = lambda t, **k: o.append(I(t, **k))
        A(f's_lshl_b32 s6, s{sW}, 14'); A(f's_add_u32 s6, s6, {L_C + UOFF}'); A(f'v_add_u32 v{vU0}, s6, v{vL16}')
        for i in range(4): A(f'v_mov_b32 v{vCT+i}, 0')
        for i in range(5): A(f'ds_write_b128 v{vU0}, {vr(vCT,4)} offset:{1024*i}')
        return o
    def ssm_loads(self):
        o = []; A = lambda t, **k: o.append(I(t, **k))
        fl = self.o['ldssm']
        A(f's_and_b32 s6, s{sW}, 1'); A('s_mul_i32 s6, s6, 2048'); A('s_sub_u32 s6, s6, 128')
        A(f'v_add_u32 v30, s6, v{vL16}')
        A('v_add_u32 v31, 16, v30'); A('v_add_u32 v29, 1024, v30')
        A(f'v_cmp_gt_i32 vcc, 0, v30'); A('v_bfrev_b32 v28, 1'); A('v_cndmask_b32 v30, v30, v28, vcc')
        A(f'v_cmp_gt_i32 vcc, 0, v31'); A('v_cndmask_b32 v31, v31, v28, vcc')
        A(f'buffer_load_dwordx4 {vr(vD,4)}, v30, {srd(SSM)}, 0 offen {fl}')
        A(f'buffer_load_dwordx2 {vr(vD+4,2)}, v31, {srd(SSM)}, 0 offen {fl}')
        A(f'buffer_load_dwordx4 {vr(vD+6,4)}, v29, {srd(SSM)}, 0 offen {fl}')
        A(f'buffer_load_dwordx2 {vr(vD+10,2)}, v29, {srd(SSM)}, 0 offen offset:16 {fl}')
        A(f'buffer_load_dwordx4 {vr(vD+12,4)}, v29, {srd(SSM)}, 0 offen offset:1024 {fl}')
        A(f'buffer_load_dwordx2 {vr(vD+16,2)}, v29, {srd(SSM)}, 0 offen offset:1040 {fl}')
        return o
    def copies_build(self):
        o = []; A = lambda t, **k: o.append(I(t, **k))
        A(f's_lshl_b32 s6, s{sW}, 14'); A(f's_add_u32 s6, s6, {L_C}'); A(f'v_add_u32 v{vU1}, s6, v{vL16}')
        for p in range(3):
            d = vD + 6 * p
            for i in range(4): A(f'v_alignbyte_b32 v{vCT+i}, v{d+i+1}, v{d+i}, 2')
            for i in range(4): A(f'v_mov_b32 v{vCT+4+i}, v{d+i+1}')
            for i in range(4): A(f'v_alignbyte_b32 v{vCT+8+i}, v{d+i+2}, v{d+i+1}, 2')
            w = [I(f'ds_write_b128 v{vU1}, {vr(vCT+4*c,4)} offset:{c*CSTR + 1024*p}') for c in range(3)]
            w.append(I(f'ds_write_b128 v{vU1}, {vr(d+2,4)} offset:{3*CSTR + 1024*p}'))
            if p < 2: o += w
            else: o.append([I('s_mov_b64 exec, 0xff')] + w + [I('s_mov_b64 exec, -1')])
        return o
    def kv_poll_addr(self):
        return [I(f'v_and_b32 v{vFl}, 15, v{vL}'), I(f'v_lshlrev_b32 v{vFl}, 3, v{vFl}'),
                I('s_lshr_b32 s14, s2, 5'), I('s_lshl_b32 s14, s14, 7'), I(f's_add_u32 s14, s14, {FL_KV}')]
    def kv_loads(self):
        o = []; A = lambda t, **k: o.append(I(t, **k))
        A(f's_lshr_b32 s5, s{sW}, 1'); A('s_lshl_b32 s6, s2, 1'); A('s_add_u32 s5, s5, s6'); A('s_lshl_b32 s5, s5, 12'); A(f's_add_u32 s5, s5, {WS_KVT}')
        for i in range(4): A(f'buffer_load_dwordx4 {vr(vKV+4*i,4)}, v{vL16}, {srd(SWS)}, s5 offen offset:{1024*i} sc1')
        return o
    def u_writes(self):
        o = []; A = lambda t, **k: o.append(I(t, **k))
        A(f's_and_b32 s5, s{sW}, 1'); A('s_mul_i32 s7, s5, 2304')
        A(f's_lshl_b32 s6, s{sW}, 14'); A(f's_add_u32 s6, s6, {L_C + UOFF + 15*144}'); A('s_add_u32 s6, s6, s7')
        A(f'v_lshrrev_b32 v30, 3, v{vL}'); A('v_mul_u32_u24 v30, 144, v30'); A(f'v_and_b32 v31, 7, v{vL}'); A('v_lshl_add_u32 v30, v31, 4, v30')
        A(f'v_add_u32 v{vU0}, s6, v30'); A('s_sub_u32 s7, 2304, s7'); A(f'v_add_u32 v{vU1}, s7, v{vU0}')
        for i in (2, 3): A(f'ds_write_b128 v{vU1}, {vr(vKV+4*i,4)} offset:{1152*(i-2)}')
        for i in (0, 1): A(f'ds_write_b128 v{vU0}, {vr(vKV+4*i,4)} offset:{1152*i}')
        return o
    def wd_poll_addr(self):
        return [I(f'v_and_b32 v{vFl}, 3, v{vL}'), I(f'v_lshlrev_b32 v{vFl}, 3, v{vFl}'),
                I(f's_lshl_b32 s14, s{sDB}, 7'), I(f's_lshl_b32 s15, s{sW}, 5'), I('s_add_u32 s14, s14, s15'), I(f's_add_u32 s14, s14, {FL_WD}')]

    def gemm1(self):
        O = self.o
        o = self.gemm_prologue()
        flat = lambda L: [y for x in L for y in (x if isinstance(x, list) else [x])]
        o += flat(self.dma_x(0)) + flat(self.dma_w(0)) + self.adv_w(1) + flat(self.dma_w(1))
        if O['codepf']:
            o += self.code_prefetch()
        o += self.stamp(0)
        o += self.gemm_addr()
        o += self.mk_srd(SHS, P_WS, WS_SIZE)
        o += [WAITVM(['x0', 'w0']), I('s_barrier')] + self.stamp(1) + self.frag_reads(0)
        W = Weave()
        for S in range(32):
            st = S & 1
            for i in range(8):
                a, b = i >> 1, i & 1
                acc = ACC1 + 32 * a + 16 * b
                c = '0' if S == 0 else vr(acc, 16)
                m = I(f'v_mfma_f32_32x32x16_bf16 {vr(acc,16)}, {vr(FA[st]+4*a,4)}, {vr(FB[st]+4*b,4)}, {c}',
                      expect=[(regs('v', FA[st]+4*a, 4), f'A{S}_{a}'), (regs('v', FB[st]+4*b, 4), f'B{S}_{b}')])
                pre = []
                if i == 0 and st == 1 and S < 31:
                    H = (S + 1) >> 1
                    pre = [WAITLGKM0(), WAITVM([f'w{H}', f'x{H>>1}']), I('s_barrier')]
                W.mfma(m, pre)
        for S in range(31): W.place(self.frag_reads(S + 1), 8 * S, per_gap=2)
        pstart = lambda H: max(0, 8 * (2 * H - 1))
        g = 0
        for H in range(14):
            items = []
            if H % 2 == 0 and H // 2 + 1 < 8:
                items += [[x] for x in self.adv_x(H // 2 + 1)] + self.dma_x(H // 2 + 1)
            items += [[x] for x in self.adv_w(H + 2)] + self.dma_w(H + 2)
            stream('dma', items)
            g = max(g, pstart(H))
            for it in items:
                isd = any(x.kind == 'vmem' for x in it) if isinstance(it, list) else it.kind == 'vmem'
                g = W.place([it], g)
                if isd and H > 0: g += O['dma_gap']
            assert g <= pstart(H + 2), (H, g)
        g = W.place(stream('late', self.late_setup()), pstart(1) + 8)
        g = W.place(stream('zero', self.zero_fill()), g)
        assert g < pstart(O['p_nonce']), g
        W.place(stream('nonce', [self.nonce_issue()]), pstart(O['p_nonce']) + 9)
        W.place(stream('nonce', [self.nonce_check()]), pstart(O['p_nonce'] + 2) + 5)
        W.place(stream('ssm', self.ssm_loads()), pstart(O['p_ssm']) + 7)
        g = W.place(stream('kvp', self.kv_poll_addr() + [self.poll_issue(14, 'kvp')]), pstart(O['p_kv']) + 9)
        g = W.place(stream('kvp', [self.poll_check(14)] + self.kv_loads()), pstart(O['p_kv'] + 1) + 8)
        g = W.place(stream('wdp', self.wd_poll_addr() + [self.poll_issue(14, 'wdp')]), max(g, pstart(O['p_wdpoll'])))
        g = W.place(stream('cop', self.copies_build()), max(g, pstart(14) + 4))
        g = W.place(stream('uw', self.u_writes()), max(g, 8 * 31))
        for k in range(8): W.gaps[32 * k] += self.stamp(k, 'g1')
        o += W.flatten()
        o += self.stamp(2)
        o += stream('wdp', self.poll_check(14))
        return o

    def code_prefetch(self):
        o = []; A = lambda t, **k: o.append(I(t, **k))
        sk = self.lab('pf'); pc = self.lab('pc')
        A(f's_cmp_lg_u32 s{sW}, 3'); A(f's_cbranch_scc1 {sk}')
        A('s_getpc_b64 s[6:7]'); A(f'{pc}:')
        A(f's_sub_u32 s6, s6, {pc}-{NAME}_kernel'); A('s_subb_u32 s7, s7, 0')
        A('s_lshr_b32 s3, s2, 3'); A('s_and_b32 s3, s3, 7'); A('s_mul_i32 s3, s3, 5120')
        A(f'v_min_u32 v28, 39, v{vL}'); A('v_lshlrev_b32 v28, 7, v28'); A('v_add_u32 v28, s3, v28')
        A(f'v_min_u32 v28, L_codeend-{NAME}_kernel-4, v28')
        o.append(RAW('global_load_dword v127, v28, s[6:7]'))
        A(f'{sk}:')
        return o

    def conv(self, W):
        O = self.o
        pre = []
        def ra(sg):
            d = CA + 4 * (sg % 6)
            return [I(f'ds_read_b64 {vr(d+2*j,2)}, v{vCA} offset:{32*sg + 8*j}', tag=f'cA{sg}') for j in range(2)]
        def rb(st):
            d = CBR + 4 * (st % 4)
            return I(f'ds_read_b128 {vr(d,4)}, v{vCB} offset:{(15-(st>>2))*144 + 32*(3-(st&3))}', tag=f'cB{st}')
        pre += ra(0) + [rb(0)] + ra(2) + ra(1) + [rb(1)] + ra(3)
        base = len(W.spine)
        for st in range(64):
            for m in range(2):
                sg = st + 2 * m
                acc = aCV + 16 * m
                c = '0' if st == 0 else ar(acc, 16)
                W.mfma(I(f'v_mfma_f32_32x32x16_bf16 {ar(acc,16)}, {vr(CA+4*(sg%6),4)}, {vr(CBR+4*(st%4),4)}, {c}',
                         expect=[(regs('v', CA+4*(sg%6), 4), f'cA{sg}'), (regs('v', CBR+4*(st%4), 4), f'cB{st}')]), pre if (st == 0 and m == 0) else None)
        for st in range(64):
            it = []
            if st + 2 < 64: it.append(rb(st + 2))
            if st + 4 < 66: it += ra(st + 4)
            W.place(it[:2], base + 2 * st); W.place(it[2:], base + 2 * st + 1)
        return base

    def h_epilogue(self):
        o = []
        for a in range(4):
            for b in range(2):
                R = ACC1 + 32 * a + 16 * b
                for h in (0, 8):
                    for i in range(4): o.append(I(f'v_max_f32 v{R+h+i}, 0, v{R+h+i}'))
                    for i in range(4): o.append(I(f'v_mul_f32 v{R+h+i}, v{R+h+i}, v{R+h+4+i}'))
                for q, src in enumerate((0, 2, 8, 10)): o.append(I(f'v_cvt_pk_bf16_f32 v{R+4+q}, v{R+src}, v{R+src+1}'))
                so = sHo0 if a < 2 else sHo1
                o.append(I(f'buffer_store_dwordx4 {vr(R+4,4)}, v{vL16}, {srd(SHS)}, s{so} offen offset:{(a&1)*2048 + b*1024} sc1', tag='hst'))
        return o
    def wd_loads(self):
        o = []
        for s in range(28):
            for dt in range(2):
                o.append(I(f'buffer_load_dwordx4 {ar(aWD+8*s+4*dt,4)}, v{vG0+dt}, {srd(SWS)}, s{sG+(s>>1)} offen offset:{(s&1)*2048} sc1', tag=f'wd{s}_{dt}'))
        return o
    def h_load(self, i):
        p, s = divmod(i, 28)
        return I(f'buffer_load_dwordx4 {vr(HR+4*(i%NHR),4)}, v{vHl}, {srd(SWS)}, s{sG+(s>>1)} offen offset:{(s&1)*2048 + p*1024} sc1', tag=f'h{i}')
    def h_poll_addr(self):
        return [I(f'v_min_u32 v{vFl}, 6, v{vL}'), I(f'v_lshlrev_b32 v{vFl}, 3, v{vFl}'),
                I(f's_lshl_b32 s14, s{sTB}, 8'), I(f's_mul_i32 s15, s{sW}, 56'), I('s_add_u32 s14, s14, s15'), I(f's_add_u32 s14, s14, {FL_H}')]

    def conv_epilogue(self):
        a = []; A = lambda t, **k: a.append(I(t, **k))
        A(f's_lshl_b32 s6, s{sW}, 14'); A(f's_add_u32 s6, s6, {L_C}')
        A(f'v_and_b32 v30, 31, v{vL}'); A('v_mul_u32_u24 v30, 272, v30'); A(f'v_lshrrev_b32 v31, 5, v{vL}'); A('v_lshl_add_u32 v30, v31, 4, v30'); A('v_add_u32 v30, s6, v30')
        addr = a; a = []
        for m in range(2):
            for g in range(4): A(f'ds_write_b128 v30, {ar(aCV+16*m+4*g,4)} offset:{(32*m+8*g)*4}')
        wr = a; a = []
        A(f's_and_b32 s5, s{sW}, 2'); A('s_lshl_b32 s5, s5, 14'); A(f's_add_u32 s5, s5, {L_C}')
        A(f's_and_b32 s7, s{sW}, 1'); A('s_lshl_b32 s7, s7, 4')
        A(f'v_lshrrev_b32 v28, 3, v{vL}'); A('v_add_u32 v28, s7, v28'); A(f'v_and_b32 v29, 7, v{vL}')
        A('v_mul_u32_u24 v31, 272, v28'); A('v_lshl_add_u32 v31, v29, 5, v31'); A(f'v_add_u32 v{vGG}, s5, v31')
        A('v_mul_u32_u24 v31, 144, v28'); A('v_lshl_add_u32 v31, v29, 4, v31'); A(f's_add_u32 s5, s5, {UOFF + 15*144}'); A(f'v_add_u32 v{vGG+1}, s5, v31')
        A(f's_lshr_b32 s5, s{sW}, 1'); A('s_lshl_b32 s6, s2, 1'); A('s_add_u32 s5, s5, s6')
        A(f's_and_b32 s7, s{sW}, 1'); A('s_lshl_b32 s12, s5, 12'); A('s_lshl_b32 s8, s7, 11'); A('s_add_u32 s12, s12, s8'); A(f's_add_u32 s12, s12, {WS_YT}')
        A('s_lshr_b32 s8, s5, 6'); A('s_lshl_b32 s8, s8, 1'); A('s_add_u32 s8, s8, s7'); A('s_lshl_b32 s8, s8, 9'); A('s_and_b32 s11, s5, 63'); A('s_lshl_b32 s11, s11, 3')
        A('s_add_u32 s11, s11, s8'); A(f's_add_u32 s11, s11, {FL_Y}')
        addr2 = a; a = []
        P0 = vXR; P1 = vXR + 8; U = vXR + 16; T = vXR + 20; Y = vXR + 24
        for rho in range(2):
            for x in range(2): A(f'ds_read_b128 {vr(P0+4*x,4)}, v{vGG} offset:{rho*2176 + 16*x}')
            for x in range(2): A(f'ds_read_b128 {vr(P1+4*x,4)}, v{vGG} offset:{16384 + rho*2176 + 16*x}')
            A(f'ds_read_b128 {vr(U,4)}, v{vGG+1} offset:{rho*1152}')
            for e in range(8): A(f'v_add_f32 v{P0+e}, v{P0+e}, v{P1+e}')
            for q in range(4):
                A(f'v_lshlrev_b32 v{T}, 16, v{U+q}'); A(f'v_and_b32 v{T+1}, s{sMASK}, v{U+q}')
                A(f'v_fmac_f32 v{P0+7-2*q}, s{sD}, v{T}'); A(f'v_fmac_f32 v{P0+6-2*q}, s{sD}, v{T+1}')
            for q in range(4): A(f'v_cvt_pk_bf16_f32 v{Y+4*rho+q}, v{P0+2*q}, v{P0+2*q+1}')
            A(f'buffer_store_dwordx4 {vr(Y+4*rho,4)}, v{vL16}, {srd(SWS)}, s12 offen offset:{1024*rho} sc1', tag='yst')
        return addr, wr, addr2, a

    def exch_write(self, p):
        o = []
        for j, (dt, gp, m) in enumerate(((0, 1, 2), (1, 0, 1), (1, 1, 3))):
            R = ACC2 + 32 * p + 16 * dt + 8 * gp
            for x in range(2): o.append(I(f'ds_write_b128 v{vE+j}, {vr(R+4*x,4)} offset:{p*24576 + j*2048 + 1024*x}'))
        return o
    def exch_read(self, p):
        return [I(f'ds_read_b128 {vr(vXR+8*j+4*x,4)}, v{vE+3} offset:{p*24576 + j*2048 + 1024*x}') for j in range(3) for x in range(2)]
    def exch_sum(self, p, dst):
        o = []; R = ACC2 + 32 * p
        for e in range(8): o.append(I(f'v_add_f32 v{vXR+e}, v{vXR+e}, v{vXR+8+e}'))
        for e in range(8): o.append(I(f'v_add_f32 v{dst+e}, v{R+e}, v{vXR+16+e}'))
        for e in range(8): o.append(I(f'v_add_f32 v{dst+e}, v{dst+e}, v{vXR+e}'))
        return o
    def final_addr(self):
        o = []; A = lambda t, **k: o.append(I(t, **k))
        for j, m in enumerate((2, 1, 3)):
            A(f's_xor_b32 s5, s{sW}, {m}'); A('s_mul_i32 s5, s5, 6144'); A(f'v_add_u32 v{vE+j}, s5, v{vL16}')
        A(f's_mul_i32 s5, s{sW}, 6144'); A(f'v_add_u32 v{vE+3}, s5, v{vL16}')
        return o
    def q_dma(self):
        o = []; A = lambda t, **k: o.append(I(t, **k))
        A(f's_lshl_b32 s5, s{sTB}, 16'); A(f's_lshl_b32 s6, s{sW}, 14'); A('s_add_u32 s5, s5, s6'); A(f's_lshl_b32 s6, s{sDB}, 7'); A('s_add_u32 s5, s5, s6')
        A(f's_lshr_b32 s6, s{sW4K}, 1'); A(f's_add_u32 m0, s6, {L_Q}')
        for n in range(2): A(f'buffer_load_dwordx4 v{vX+n}, {srd(SX)}, s5 offen offset:{1024*n} lds', tag='q')
        return o
    def y_poll_addr(self):
        o = []; A = lambda t, **k: o.append(I(t, **k))
        A(f's_and_b32 s10, s{sW}, 1'); A('s_lshl_b32 s10, s10, 1'); A(f's_lshr_b32 s15, s{sW}, 1'); A('s_add_u32 s10, s10, s15')
        A(f'v_and_b32 v{vFl}, 15, v{vL}'); A(f'v_lshlrev_b32 v{vFl}, 3, v{vFl}')
        A(f's_lshl_b32 s14, s{sDB}, 1'); A(f's_lshr_b32 s15, s{sTB}, 4'); A('s_add_u32 s14, s14, s15'); A('s_lshl_b32 s14, s14, 9')
        A('s_lshl_b32 s15, s10, 7'); A('s_add_u32 s14, s14, s15'); A(f's_add_u32 s14, s14, {FL_Y}')
        return o
    def y_dma(self):
        o = []; A = lambda t, **k: o.append(I(t, **k))
        A(f'v_lshrrev_b32 v28, 3, v{vL}'); A('v_lshlrev_b32 v28, 12, v28'); A(f'v_and_b32 v29, 7, v{vL}'); A('v_lshl_add_u32 v28, v29, 4, v28')
        A(f'v_add_u32 v29, {8*4096 - 1024}, v28')
        A(f's_lshl_b32 s5, s{sDB}, 18'); A('s_lshl_b32 s6, s10, 16'); A('s_add_u32 s5, s5, s6'); A(f's_lshl_b32 s6, s{sTB}, 7'); A('s_add_u32 s5, s5, s6'); A(f's_add_u32 s5, s5, {WS_YT}')
        A('s_lshl_b32 s6, s10, 11'); A(f's_add_u32 m0, s6, {L_Y}')
        for n in range(2): A(f'buffer_load_dwordx4 v{28+n}, {srd(SWS)}, s5 offen offset:{1024*n} sc1 lds', tag='y')
        return o
    def g_poll_addr(self):
        return [I(f'v_and_b32 v{vFl}, 3, v{vL}'), I(f'v_lshlrev_b32 v{vFl}, 3, v{vFl}'), I(f's_lshl_b32 s14, s{sTB}, 7'), I(f's_add_u32 s14, s14, {FL_G}')]
    def g_loads(self):
        o = []; A = lambda t, **k: o.append(I(t, **k))
        A(f'v_and_b32 v28, 31, v{vL}'); A('v_lshlrev_b32 v28, 2, v28'); A(f's_lshl_b32 s5, s{sTB}, 8'); A(f's_add_u32 s5, s5, {WS_G}')
        for p in range(2): A(f'buffer_load_dword v{vGG+p}, v28, {srd(SWS)}, s5 offen offset:{128*p} sc1')
        return o
    def a_part(self):
        o = []; A = lambda t, **k: o.append(I(t, **k))
        Q = vXR + 24; Yv = vXR + 28; T = vXR + 24
        A(f'v_lshrrev_b32 v28, 5, v{vL}'); A(f'v_bfe_u32 v29, v{vL}, 2, 2'); A('v_lshl_or_b32 v28, v28, 2, v29'); A('v_lshlrev_b32 v28, 7, v28')
        A(f'v_bfe_u32 v29, v{vL}, 4, 1'); A('v_lshl_or_b32 v28, v29, 5, v28'); A(f'v_and_b32 v29, 3, v{vL}'); A('v_lshl_or_b32 v28, v29, 3, v28')
        A('s_lshl_b32 s6, s10, 11'); A(f's_add_u32 s6, s6, {L_Y}'); A('v_add_u32 v28, s6, v28')
        A(f'v_bfe_u32 v29, v{vL}, 1, 3'); A('s_lshl_b32 s6, s10, 1'); A('v_xor_b32 v29, s6, v29')
        A(f'v_and_b32 v30, 31, v{vL}'); A('v_lshlrev_b32 v30, 7, v30'); A(f'v_lshrrev_b32 v31, 5, v{vL}'); A('v_lshl_or_b32 v30, v31, 3, v30'); A(f'v_add_u32 v30, {L_Q}, v30')
        A('v_xor_b32 v31, 1, v29'); A('v_lshl_add_u32 v29, v29, 4, v30'); A('v_lshl_add_u32 v30, v31, 4, v30')
        o.append(WAITVM('y'))
        QY = 120
        GF = 31
        for p in range(2):
            for gq in range(2):
                A(f'ds_read_b64 {vr(QY+2*gq,2)}, v{29+gq} offset:{4096*p}')
                A(f'ds_read_b64_tr_b16 {vr(QY+4+2*gq,2)}, v28 offset:{1024*gq + 64*p}')
            A(f'v_lshlrev_b32 v{GF}, 16, v{vGG+p}'); A(f'v_and_b32 v{vGG+p}, s{sMASK}, v{vGG+p}')
            for gq in range(2):
                for h in range(2):
                    d = vGA + 8 * p + 4 * gq + 2 * h
                    q, y = QY + 2 * gq + h, QY + 4 + 2 * gq + h
                    A(f'v_lshlrev_b32 v{d}, 16, v{q}'); A(f'v_and_b32 v{d+1}, s{sMASK}, v{q}')
                    A(f'v_lshlrev_b32 v{q}, 16, v{y}'); A(f'v_and_b32 v{y}, s{sMASK}, v{y}')
                    A(f'v_mul_f32 v{d}, v{d}, v{q}'); A(f'v_mul_f32 v{d+1}, v{d+1}, v{y}')
                    A(f'v_mul_f32 v{d}, v{d}, v{GF}'); A(f'v_mul_f32 v{d+1}, v{d+1}, v{GF}')
        return o
    def out_addr(self):
        o = []; A = lambda t, **k: o.append(I(t, **k))
        A(f'v_and_b32 v28, 31, v{vL}'); A('v_lshlrev_b32 v28, 10, v28'); A(f'v_lshrrev_b32 v29, 5, v{vL}'); A(f'v_lshl_or_b32 v{vE+4}, v29, 4, v28')
        A(f's_lshl_b32 s15, s{sTB}, 16'); A(f's_lshl_b32 s5, s{sDB}, 7'); A('s_add_u32 s15, s15, s5'); A('s_lshl_b32 s5, s10, 5'); A('s_add_u32 s15, s15, s5')
        A('s_add_u32 s9, s15, 32768')
        return o
    def out_store(self, p, B):
        o = []; A = lambda t, **k: o.append(I(t, **k))
        G = vGA + 8 * p
        for e in range(8): A(f'v_fmac_f32 v{G+e}, v{vGG+p}, v{B+e}')
        for q in range(4): A(f'v_cvt_pk_bf16_f32 v{B+q}, v{G+2*q}, v{G+2*q+1}')
        A(f'v_permlane32_swap_b32 v{B}, v{B+2}'); A(f'v_permlane32_swap_b32 v{B+1}, v{B+3}')
        A(f'buffer_store_dwordx4 {vr(B,4)}, v{vE+4}, {srd(SOUT)}, s{15 if p == 0 else 9} offen')
        return o

    def tail(self):
        O = self.o
        W = Weave()
        cb = self.conv(W)
        gb = len(W.spine)
        for i in range(56):
            p, s = divmod(i, 28)
            for dt in range(2):
                acc = ACC2 + 32 * p + 16 * dt
                c = '0' if s == 0 else vr(acc, 16)
                W.mfma(I(f'v_mfma_f32_32x32x16_bf16 {vr(acc,16)}, {ar(aWD+8*s+4*dt,4)}, {vr(HR+4*(i%NHR),4)}, {c}',
                         expect=[(regs('a', aWD+8*s+4*dt, 4), f'wd{s}_{dt}'), (regs('v', HR+4*(i%NHR), 4), f'h{i}')]))
        cg = lambda st: cb + 2 * st
        for k, x in enumerate(self.wd_loads()): W.place([x], cg(k) + 1)
        g = W.place(self.h_epilogue(), cg(O['epi_start']))
        g = W.place(stream('hfl', [self.flag_store('hst', 13, SHS)]), g + 2 * O['hflag_delay'])
        assert g < cg(O['hpoll']), g
        W.place(stream('fa', self.final_addr() + self.q_dma()), g + 1)
        W.place(stream('hp', self.h_poll_addr() + [self.poll_issue(14, 'hp')]), cg(O['hpoll']))
        g = W.place(stream('hp', [self.poll_check(14)]), cg(O['hcheck']))
        addr, wr, addr2, post = [stream('ce', z) for z in self.conv_epilogue()]
        g2 = W.place(addr + addr2, g + 1)
        assert g2 < gb
        npre = 0; g = max(g + 1, cg(56))
        while g < gb and npre < NHR:
            W.place([self.h_load(npre)], g); npre += 1; g += 1
        for i in range(npre, 56):
            earliest = gb + 2 * (i - NHR) + 1 if i >= NHR else gb
            pos = max(earliest, gb + 2 * (i - npre))
            W.place([self.h_load(i)], pos)
        g = W.place(wr, gb + 1)
        g = W.place([[WAITLGKM0(), I('s_barrier')]], g + 2)
        g = W.place(post, g)
        W.place(self.stamp(5), g)
        g = W.place(stream('gp', self.g_poll_addr() + [self.poll_issue(14, 'gp')]), max(g, gb + O['gpoll']))
        g = W.place(stream('ce', [self.flag_store('yst', 11)]), g + 12)
        g = W.place(stream('gp', [self.poll_check(14)] + self.g_loads()), g + 1)
        g = W.place(stream('y', self.y_poll_addr() + [self.poll_issue(14, 'yp')]), max(g, gb + O['ypoll']))
        g = W.place(self.exch_write(0), max(g, gb + 56 + 3))
        g = W.place([[WAITLGKM0(), WAITVM('q'), I('s_barrier')]], g + 3)
        g = W.place(self.exch_read(0), g)
        g = W.place(self.exch_sum(0, vBS), g + 2)
        g = W.place(stream('y', [self.poll_check(14)] + self.y_dma()), max(g, gb + O['ycheck']))
        g = W.place(stream('y', self.out_addr()), g)
        g = W.place(stream('y', self.a_part()), max(g + 10, gb + 92))
        W.gaps[cb] += self.stamp(3); W.gaps[gb] += self.stamp(4)
        for k in range(8):
            W.gaps[cb + 16 * k] += self.stamp(k, 'conv'); W.gaps[gb + 14 * k] += self.stamp(k, 'g2')
        o = W.flatten()
        o += self.stamp(6)
        o += stream('y', self.out_store(0, vBS))
        o += self.exch_write(1) + [WAITLGKM0(), I('s_barrier')] + self.exch_read(1) + self.exch_sum(1, vBS) + stream('y', self.out_store(1, vBS))
        if O['prof']:
            o += self.stamp(7) + [DRAIN()] + self.stamp(8) + [I('s_waitcnt lgkmcnt(0)')]
            o += [I('s_lshl_b32 s5, s2, 2'), I(f's_add_u32 s5, s5, s{sW}'), I('s_lshl_b32 s5, s5, 6'), I(f's_add_u32 s5, s5, {WS_PROF}'), I('v_mov_b32 v28, 0'), I('s_mov_b64 exec, 1')]
            for k, r in enumerate(STAMPS):
                o += [I(f'v_mov_b32 v29, s{r}'), I(f'buffer_store_dword v29, v28, {srd(SWS)}, s5 offen offset:{4*k}')]
            o += [I('s_memrealtime s[6:7]'), I('s_waitcnt lgkmcnt(0)'), I('v_mov_b32 v29, s6'), I(f'buffer_store_dword v29, v28, {srd(SWS)}, s5 offen offset:40')]
            if O.get('dbgtime'):
                o += [I('v_not_b32 v30, s0'), I(f'global_atomic_umax v28, v30, {sp(P_DBG)} offset:16'), I(f'global_atomic_umax v28, v29, {sp(P_DBG)} offset:20')]
                for k, r in enumerate(STAMPS[:8]):
                    o += [I(f's_sub_u32 s6, s{r}, s1'), I('v_mov_b32 v31, s6'), I(f'global_atomic_umax v28, v31, {sp(P_DBG)} offset:{24+4*k}')]
            o += [I('v_mov_b32 v30, s0'), I(f'buffer_store_dword v30, v28, {srd(SWS)}, s5 offen offset:36'), I('v_mov_b32 v31, s1'), I(f'buffer_store_dword v31, v28, {srd(SWS)}, s5 offen offset:44')]
        return o

    def helper(self):
        O = self.o
        o = []; A = lambda t, **k: o.append(I(t, **k))
        A('L_helper:')
        sHX, sHD, sHQ = 2, 8, 9
        A('s_and_b32 s8, s2, 7'); A('s_lshr_b32 s9, s2, 3')
        KB = 35904
        A(f's_mul_i32 s10, s{sW}, {KB}')
        A(f'v_lshrrev_b32 v28, 3, v{vL}'); A(f'v_and_b32 v29, 7, v{vL}'); A('v_lshlrev_b32 v30, 10, v28'); A('v_lshl_add_u32 v32, v29, 4, v30')
        A('s_lshl_b32 s11, s9, 2'); A(f's_add_u32 s11, s11, s{sW}')
        A('s_lshl_b32 s12, s11, 17'); A('s_lshl_b32 s13, s8, 7'); A('s_add_u32 s12, s12, s13')
        A('s_cmp_eq_u32 s11, 0'); A('s_cselect_b32 s13, 0x80000000, 0'); A('v_or_b32 v33, s13, v32')
        A('s_cselect_b32 s13, 0, 8192'); A('s_sub_u32 s13, s12, s13')
        A('s_waitcnt lgkmcnt(0)')
        o += self.ws_base()
        if self.o['prof']: A('s_mov_b32 s0, s74'); A('s_mov_b32 s1, s76')
        o += self.mk_srd(SWS, P_WS, WS_SIZE)
        o += self.mk_srd(SA, P_K, 0x200000) + self.mk_srd(SB, P_V, 0x200000) + self.mk_srd(SX, P_Q, 0x200000)
        sk = self.lab('np')
        A(f's_or_b32 s3, s2, s{sW}'); A('s_cmp_lg_u32 s3, 0'); A(f's_cbranch_scc1 {sk}')
        o.append(RAW(f'v_mov_b32 v28, {FL_KV}\nbuffer_load_dwordx2 v[24:25], v28, {srd(SWS)}, 0 offen sc1'))
        A(f'{sk}:')
        fl = O['ldkv']
        A(f's_mov_b32 m0, s10')
        A(f'buffer_load_dwordx4 v33, {srd(SA)}, s13 offen {fl} lds', tag='np0')
        sk = self.lab('np')
        def blk(b):
            r = [I(f's_add_u32 m0, s10, {(b+1)*1088}'), I(f's_add_u32 s14, s12, {b*8192}'),
                 I(f'buffer_load_dwordx4 v32, {srd(SA)}, s14 offen {fl} lds', tag=f'kv{b>>3}'),
                 I(f's_add_u32 m0, s10, {(17+b)*1088}'), I('s_nop 0'),
                 I(f'buffer_load_dwordx4 v32, {srd(SB)}, s14 offen {fl} lds', tag=f'kv{b>>3}')]
            return r
        for b in range(8): o += blk(b)
        A('s_cmp_lg_u32 s3, 0'); A(f's_cbranch_scc1 {sk}')
        o.append(RAW('s_waitcnt vmcnt(17)\nv_add_u32 v24, 0x9E3779B8, v24\nv_or_b32 v24, 1, v24\nv_add_u32 v25, 0x7F4A7C15, v25\nv_mov_b32 v28, 0\n'
                     f's_mov_b64 exec, 1\nglobal_store_dwordx2 v28, v[24:25], {sp(P_DBG)} sc1\ns_mov_b64 exec, -1'))
        A(f'{sk}:')
        A(f'v_lshrrev_b32 v28, 3, v{vL}'); A('v_lshlrev_b32 v30, 6, v28'); A('s_lshl_b32 s15, s8, 9'); A('v_add_u32 v30, s15, v30')
        for i in range(4): A(f'global_load_dwordx4 {vr(64+4*i,4)}, v30, {sp(P_SK)} offset:{16*i}')
        for b in range(8, 16): o += blk(b)
        if O['codepf']: o += stream('pf', self.code_prefetch())
        o += self.stamp(0)
        o += stream('nonce', self.nonce_issue())
        S0 = 32
        A(f'v_lshrrev_b32 v28, 3, v{vL}')
        A(f'v_and_b32 v29, 7, v{vL}'); A('v_mul_u32_u24 v31, 1088, v29'); A('v_lshl_add_u32 v31, v28, 4, v31'); A('v_add_u32 v31, s10, v31')
        A('v_lshlrev_b32 v30, 15, v28'); A('v_lshl_add_u32 v30, v29, 4, v30')
        A('s_lshl_b32 s12, s8, 18'); A('s_lshl_b32 s13, s11, 8'); A('s_add_u32 s12, s12, s13'); A(f's_add_u32 s12, s12, {WS_KVT}')
        KR = 128; VR = 172; KF = 80; VF = 112; RS = 204; PO = 220
        for x in range(2):
            o.append(WAITVM(['np0', f'kv{x}']))
            for i in range(-3, 8):
                off = (8*x + 1) * 1088 + i * 128 if i >= 0 else 8*x * 1088 + (8 + i) * 128
                A(f'ds_read_b128 {vr(KR+4*(i+3),4)}, v31 offset:{off}')
                if i >= 0: A(f'ds_read_b128 {vr(VR+4*i,4)}, v31 offset:{(17+8*x)*1088 + i*128}')
            if x == 0:
                for e in range(8):
                    for j in range(4):
                        src = 64 + 2 * e + (j >> 1)
                        if j & 1: A(f'v_and_b32 v{S0+8*j+e}, s{sMASK}, v{src}')
                        else: A(f'v_lshlrev_b32 v{S0+8*j+e}, 16, v{src}')
            def unpackk(i):
                for m in range(4):
                    d = KF + 8 * ((i + 4) & 3) + 2 * m
                    A(f'v_lshlrev_b32 v{d}, 16, v{KR+4*(i+3)+m}'); A(f'v_and_b32 v{d+1}, s{sMASK}, v{KR+4*(i+3)+m}')
            for i in range(-3, 0): unpackk(i)
            for i in range(8):
                unpackk(i)
                for m in range(4):
                    A(f'v_lshlrev_b32 v{VF+2*m}, 16, v{VR+4*i+m}'); A(f'v_and_b32 v{VF+2*m+1}, s{sMASK}, v{VR+4*i+m}')
                R = RS + 8 * (i & 1)
                kf = lambda j, m: vr(KF + 8 * ((i - j + 4) & 3) + 2 * m, 2)
                for m in range(4): A(f'v_pk_mul_f32 {vr(R+2*m,2)}, {kf(3,m)}, {vr(S0+24+2*m,2)}')
                for j in (2, 1, 0):
                    for m in range(4): A(f'v_pk_fma_f32 {vr(R+2*m,2)}, {kf(j,m)}, {vr(S0+8*j+2*m,2)}, {vr(R+2*m,2)}')
                for m in range(4): A(f'v_pk_mul_f32 {vr(R+2*m,2)}, {vr(R+2*m,2)}, {vr(VF+2*m,2)}')
                if i & 1:
                    q = (7 - i) // 2
                    for e in range(8): A(f'v_cvt_pk_bf16_f32 v{PO+4*e+q}, v{RS+8+e}, v{RS+e}')
            for e in range(8):
                A(f's_add_u32 s14, s12, {e*4096 + 128*x}')
                A(f'buffer_store_dwordx4 {vr(PO+4*e,4)}, v30, {srd(SWS)}, s14 offen sc1', tag='kvst')
            if x == 0: o += stream('nonce', self.nonce_check())
        o += self.stamp(1)
        o += self.mk_srd(SA, P_WD, 1792*1024)
        A(f'v_lshrrev_b32 v28, 3, v{vL}'); A(f'v_bfe_u32 v29, v{vL}, 4, 1'); A('v_lshlrev_b32 v29, 2, v29'); A(f'v_and_b32 v32, 7, v{vL}'); A('v_xor_b32 v29, v29, v32')
        A('v_lshlrev_b32 v28, 10, v28'); A('v_lshl_add_u32 v32, v29, 4, v28')
        A('s_mul_i32 s12, s9, 448'); A(f's_mul_i32 s13, s{sW}, 112'); A('s_add_u32 s12, s12, s13'); A('s_lshl_b32 s12, s12, 10'); A('s_lshl_b32 s13, s8, 7'); A('s_add_u32 s12, s12, s13')
        fl = O['ldwd']
        for b in range(14):
            o += ([I(f's_add_u32 m0, s10, {b*1024}'), I(f's_add_u32 s14, s12, {b*8192}'), I(f'buffer_load_dwordx4 v32, {srd(SA)}, s14 offen {fl} lds', tag=f'wdl{b>>1}')])
        A('s_lshl_b32 s13, s8, 7'); A('s_lshl_b32 s14, s9, 5'); A('s_add_u32 s13, s13, s14'); A(f's_lshl_b32 s14, s{sW}, 3'); A('s_add_u32 s13, s13, s14')
        A(f's_add_u32 s15, s13, {FL_WD}'); A(f's_add_u32 s13, s13, {FL_KV}')
        o += stream('fl', self.flag_store('kvst', 13))
        A(f's_lshl_b32 s12, s2, 16'); A(f's_lshl_b32 s13, s{sW}, 14'); A('s_add_u32 s12, s12, s13')
        A(f'v_lshrrev_b32 v28, 5, v{vL}'); A(f'v_bfe_u32 v29, v{vL}, 2, 2'); A('v_lshl_or_b32 v28, v28, 2, v29'); A('v_lshlrev_b32 v28, 7, v28'); A('v_add_u32 v28, s10, v28')
        A(f'v_and_b32 v29, 1, v{vL}'); A('v_lshl_add_u32 v28, v29, 3, v28')
        A(f'v_bfe_u32 v29, v{vL}, 4, 1'); A(f'v_bfe_u32 v30, v{vL}, 1, 1'); A('v_lshl_or_b32 v29, v29, 1, v30')
        A(f'v_bfe_u32 v30, v{vL}, 3, 1'); A('v_lshl_or_b32 v29, v30, 2, v29')
        A('v_lshl_add_u32 v30, v29, 4, v28'); A('v_xor_b32 v29, 4, v29'); A('v_lshl_add_u32 v31, v29, 4, v28')
        A('s_mul_i32 s13, s8, 112'); A('s_mul_i32 s14, s9, 28'); A('s_add_u32 s13, s13, s14'); A(f's_mul_i32 s14, s{sW}, 7'); A('s_add_u32 s13, s13, s14')
        A('s_lshl_b32 s13, s13, 11'); A(f's_add_u32 s13, s13, {WS_WDF}')
        for fs in range(7):
            o.append(WAITVM(f'wdl{fs}'))
            for dt in range(2):
                for j in range(2): A(f'ds_read_b64_tr_b16 {vr(128+8*fs+4*dt+2*j,2)}, v{30+dt} offset:{(16*fs+8*j)*128}')
            if fs: A('s_add_u32 s13, s13, 2048')
            for dt in range(2): A(f'buffer_store_dwordx4 {vr(128+8*fs+4*dt,4)}, v{vL16}, {srd(SWS)}, s13 offen offset:{1024*dt} sc1', tag='wdst')
        A(f'global_load_dwordx4 {vr(32,4)}, v{vL16}, {sp(P_GW)}')
        for i in range(16):
            if i % 4 == 0 and i: A('s_add_u32 s12, s12, 4096')
            A(f'buffer_load_dwordx4 {vr(192+4*i,4)}, v{vL16}, {srd(SX)}, s12 offen offset:{1024*(i&3)}')
        o += stream('fl', self.flag_store('wdst', 15))
        o += self.stamp(2)
        Z = 36
        for i in range(16):
            R = 192 + 4 * i
            A(f'v_dot2_f32_bf16 v{Z+i}, v{R}, v32, 0')
            for m in range(1, 4): A(f'v_dot2_f32_bf16 v{Z+i}, v{R+m}, v{32+m}, v{Z+i}')
        for sh in (8, 4, 2, 1):
            for i in range(16): A(f'v_add_f32_dpp v{Z+i}, v{Z+i}, v{Z+i} row_ror:{sh} row_mask:0xf bank_mask:0xf')
        A('s_mov_b32 s4, 0x00010001'); A('s_mov_b32 s5, 0x00010001'); A(f'v_mov_b32 v52, v{Z}')
        for i in range(1, 16):
            A('s_lshl_b64 s[4:5], s[4:5], 1'); A(f'v_cndmask_b32 v52, v52, v{Z+i}, s[4:5]')
        A('v_mov_b32 v53, v52'); A('v_permlane32_swap_b32 v52, v53'); A('v_add_f32 v52, v52, v53')
        A('v_mov_b32 v53, v52'); A('v_permlane16_swap_b32 v52, v53'); A('v_add_f32 v52, v52, v53')
        A('v_cvt_pk_bf16_f32 v52, v52, v52'); A(f'v_and_b32 v52, s{sMASK}, v52')
        A('v_mul_f32 v52, 0xbfb8aa3b, v52'); A('v_exp_f32 v52, v52'); A('v_add_f32 v52, 1.0, v52'); A('v_rcp_f32 v52, v52')
        A('v_cvt_pk_bf16_f32 v52, v52, v52'); A(f'v_and_b32 v52, s{sMASK}, v52'); A('v_sub_f32 v53, 1.0, v52'); A('v_cvt_pk_bf16_f32 v52, v52, v53')
        A(f'v_lshlrev_b32 v28, 2, v{vL}'); A('s_lshl_b32 s12, s2, 8'); A(f's_lshl_b32 s13, s{sW}, 6'); A('s_add_u32 s12, s12, s13'); A(f's_add_u32 s12, s12, {WS_G}')
        o.append([I('s_mov_b64 exec, 0xffff'), I(f'buffer_store_dword v52, v28, {srd(SWS)}, s12 offen sc1', tag='gst'), I('s_mov_b64 exec, -1')])
        A('s_lshl_b32 s12, s2, 7'); A(f's_lshl_b32 s13, s{sW}, 3'); A('s_add_u32 s12, s12, s13'); A(f's_add_u32 s15, s12, {FL_G}')
        o += [WAITLGKM0(), I('s_barrier')]
        o += stream('late', self.late_setup()) + stream('ssm', self.ssm_loads()) + stream('kvp', self.kv_poll_addr() + [self.poll_issue(14, 'kvp')])
        o += stream('fl', self.flag_store('gst', 15))
        o += stream('zero', self.zero_fill()) + stream('kvp', self.poll_check(14) + self.kv_loads()) + stream('wdp', self.wd_poll_addr() + [self.poll_issue(14, 'wdp')])
        o += stream('cop', self.copies_build()) + stream('uw', self.u_writes()) + stream('wdp', self.poll_check(14))
        o += self.mk_srd(SHS, P_WS, 0)
        A(f's_mov_b32 s{sHo0}, 0'); A(f's_mov_b32 s{sHo1}, 0'); A('s_mov_b32 s13, 0')
        o += [DRAIN(), I('s_nop 7'), I('s_branch L_join')]
        flat = []
        for x in o:
            if isinstance(x, list): flat += x
            elif x is not None: flat.append(x)
        return flat

    def build(self):
        flat = lambda L: [y for x in L for y in (x if isinstance(x, list) else [x])]
        main = self.prologue() + flat(self.gemm1()) + [I('L_join:')] + self.tail() + [I('L_end:'), I('s_endpgm')]
        main = flat(main)
        hel = [RESET()] + self.helper()
        allc = main + hel
        check_tags(allc)
        temps = set(regs('s', 3, 13)) | set(regs('v', 28, 4)) | {('scc', 0), ('vcc_lo', 0), ('m0', 0), ('v', vFl), ('v', vP), ('v', vP+1), ('v', vU0), ('v', vU1)}
        check_streams(allc, temps, allow={(None, 'hfl'), (None, 'dma'), (None, 'fl')})
        allc = insert_nops(insert_waits(allc))
        self.ins = allc
        hdr = open('cdna_kernels/' + NAME + '.s.ref').read().split('\n')
        head = [l for l in hdr if l.startswith(';') and '@launch' not in l and 'Override launch' not in l and 'grid=ceil' not in l]
        txt = '\n'.join(head) + '\n' + f'; @launch grid=(256,1,1) block=(256,1,1) lds={LDS_BYTES}\n'
        txt += f'.amdgcn_target "amdgcn-amd-amdhsa--gfx950"\n.text\n.globl {NAME}_kernel\n.p2align 12\n.type {NAME}_kernel,@function\n{NAME}_kernel:\n'
        txt += render(allc) + 'L_codeend:\n'
        txt += f'''.section .rodata,"a"
.p2align 6
.amdhsa_kernel {NAME}_kernel
  .amdhsa_next_free_vgpr 512
  .amdhsa_next_free_sgpr 102
  .amdhsa_accum_offset 256
  .amdhsa_group_segment_fixed_size 0
  .amdhsa_kernarg_size 112
  .amdhsa_user_sgpr_count 2
  .amdhsa_user_sgpr_kernarg_segment_ptr 1
  .amdhsa_system_sgpr_workgroup_id_x 1
  .amdhsa_float_denorm_mode_32 3
.end_amdhsa_kernel
'''
        return txt

if __name__ == '__main__':
    out = sys.argv[1]
    kw = {}
    for a in sys.argv[2:]:
        k, v = a.split('=')
        try: v = int(v)
        except ValueError: pass
        kw[k] = v
    open(out, 'w').write(Gen(**kw).build())
```

```python
import re

def _regs(tok):
    tok = tok.strip()
    tok = re.sub(r'^-', '', tok)
    tok = re.sub(r'^(abs|neg)\((.*)\)$', r'\2', tok)
    tok = tok.strip('|')
    m = re.fullmatch(r'([vas])(\d+)', tok)
    if m: return [(m.group(1), int(m.group(2)))]
    m = re.fullmatch(r'([vas])\[(\d+):(\d+)\]', tok)
    if m: return [(m.group(1), i) for i in range(int(m.group(2)), int(m.group(3)) + 1)]
    if tok in ('vcc', 'exec'): return [(tok + '_lo', 0), (tok + '_hi', 0)]
    if tok in ('vcc_lo', 'vcc_hi', 'exec_lo', 'exec_hi', 'm0', 'scc'): return [(tok, 0)]
    return []

TRANS = ('v_exp_f32', 'v_log_f32', 'v_rcp_f32', 'v_rsq_f32', 'v_sqrt_f32', 'v_sin_f32', 'v_cos_f32')

class Ins:
    __slots__ = ('text', 'op', 'kind', 'defs', 'uses', 'tag', 'expect', 'pseudo', 'arg', 'sgpr_const', 'dpp', 'wide_store', 'lds_dma', 'cost', 'note', 'stream')
    def __init__(self, text, tag=None, expect=None, pseudo=None, arg=None):
        self.text = text; self.tag = tag; self.expect = expect; self.pseudo = pseudo; self.arg = arg
        self.defs = []; self.uses = []; self.kind = 'pseudo' if pseudo else None
        self.dpp = False; self.wide_store = False; self.lds_dma = False; self.op = pseudo or ''
        self.cost = 0; self.note = None; self.stream = None
        if not pseudo: self._parse()
    def _parse(self):
        t = self.text.split(';')[0].strip()
        if t.endswith(':') or t.startswith('.'):
            self.kind = 'label'; self.op = t; return
        sp = t.split(None, 1)
        op = sp[0]; self.op = op
        rest = sp[1] if len(sp) > 1 else ''
        ops = [o.strip() for o in re.split(r',(?![^\[\(]*[\]\)])', rest)] if rest else []
        mods = ''
        if ops:
            last = ops[-1].split(None, 1)
            ops[-1] = last[0]
            mods = last[1] if len(last) > 1 else ''
        R = [_regs(o) for o in ops]
        flat = lambda L: [r for x in L for r in x]
        self.cost = 4
        if op.startswith('v_mfma'):
            self.kind = 'mfma'; self.defs = R[0]; self.uses = flat(R[1:]); self.cost = 8
            self.arg = (R[0], R[1], R[2], R[3])
        elif op.startswith('buffer_load') or op.startswith('global_load'):
            self.kind = 'vmem'; self.cost = 5
            if ' lds' in (' ' + mods) or op.startswith('global_load_lds'):
                self.lds_dma = True; self.uses = flat(R) + [('m0', 0)]
            else:
                self.defs = R[0]; self.uses = flat(R[1:])
        elif op.startswith('buffer_store') or op.startswith('global_store') or op.startswith('global_atomic'):
            self.kind = 'vmem'; self.uses = flat(R); self.cost = 5
            if op.endswith('x4') or op.endswith('x3'):
                self.wide_store = True
                self.arg = R[0] if op.startswith('buffer') else R[1]
        elif op.startswith('ds_read'):
            self.kind = 'ds'; self.defs = R[0]; self.uses = flat(R[1:]); self.cost = 5
        elif op.startswith('ds_write'):
            self.kind = 'ds'; self.uses = flat(R); self.cost = 5
        elif op.startswith('s_load') or op in ('s_memtime', 's_memrealtime'):
            self.kind = 'smem'; self.defs = R[0]; self.uses = flat(R[1:])
        elif op == 's_waitcnt': self.kind = 'wait'
        elif op == 's_nop': self.kind = 'nop'; self.arg = int(ops[0]) + 1
        elif op == 's_barrier': self.kind = 'barrier'
        elif op in ('s_endpgm', 's_setprio'): self.kind = 'salu'
        elif op.startswith('s_cbranch') or op == 's_branch':
            self.kind = 'branch'
            if 'scc' in op: self.uses = [('scc', 0)]
        elif op.startswith('s_cmp'):
            self.kind = 'salu'; self.uses = flat(R); self.defs = [('scc', 0)]
        elif op in ('s_setpc_b64',):
            self.kind = 'branch'; self.uses = flat(R)
        elif op in ('s_swappc_b64',):
            self.kind = 'branch'; self.defs = R[0]; self.uses = flat(R[1:])
        elif op.startswith('s_'):
            self.kind = 'salu'; self.defs = list(R[0]); self.uses = flat(R[1:])
            if op in ('s_addc_u32', 's_subb_u32') or op.startswith('s_cselect'): self.uses.append(('scc', 0))
            if not (op.startswith('s_mov') or op.startswith('s_cselect') or op.startswith('s_mul') or op.startswith('s_getpc') or op.startswith('s_getreg') or op.startswith('s_bfm')):
                self.defs.append(('scc', 0))
        elif op.startswith('v_'):
            self.kind = 'valu'
            self.defs = list(R[0]); self.uses = flat(R[1:])
            if op.startswith('v_permlane'):
                self.defs = R[0] + R[1]; self.uses = R[0] + R[1]
            if op.startswith('v_fmac') or op.startswith('v_dot2c') or op.startswith('v_writelane'): self.uses += R[0]
            if 'dpp' in op or 'row_' in mods or 'quad_perm' in mods or 'wave_' in mods:
                self.dpp = True; self.uses += R[0]
            if op in ('v_add_co_u32', 'v_addc_co_u32', 'v_sub_co_u32'):
                self.defs = R[0] + R[1]; self.uses = flat(R[2:])
            lit = any(re.fullmatch(r'0x[0-9a-fA-F]+|\d+', o) and int(o, 0) > 64 for o in ops[1:])
            vop3 = op in ('v_cvt_pk_bf16_f32', 'v_alignbyte_b32', 'v_alignbit_b32', 'v_fma_f32', 'v_add3_u32', 'v_lshl_add_u32', 'v_lshl_or_b32',
                          'v_and_or_b32', 'v_mad_u32_u24', 'v_perm_b32', 'v_dot2_f32_bf16', 'v_mul_lo_u32', 'v_accvgpr_read_b32', 'v_accvgpr_write_b32', 'v_bfe_u32') or op.startswith('v_pk_') or self.dpp
            self.cost = 5 if (lit or vop3) else 4
            if op in TRANS: self.cost = 8
        else:
            raise ValueError('cannot parse: ' + t)
        if self.kind in ('valu', 'vmem', 'ds', 'mfma'): self.uses = self.uses + [('exec_lo', 0), ('exec_hi', 0)]

def I(text, **kw): return Ins(text, **kw)
def WAITVM(tag): return Ins('', pseudo='waitvm', arg=tag)
def WAITLGKM0(): return Ins('', pseudo='waitlgkm0')
def DRAIN(): return Ins('', pseudo='drain')
def RAW(text, defs='', uses=''):
    x = Ins(text, pseudo='raw')
    x.defs = [r for t in defs.split() for r in _regs(t)]; x.uses = [r for t in uses.split() for r in _regs(t)]
    return x
def stream(name, items):
    for it in items:
        for x in (it if isinstance(it, list) else [it]):
            x.stream = name
    return items
def atomize(items):
    out = []
    for it in items:
        grp = list(it) if isinstance(it, list) else [it]
        need = set()
        d = set()
        for x in grp:
            need |= {r for r in x.uses if r[0] in ('scc', 'vcc_lo') and r not in d}
            d |= set(x.defs)
        while need and out:
            prev = out.pop(); grp = prev + grp
            need -= {r for x in prev for r in x.defs}
        out.append(grp)
    return out
def check_streams(ins, temps, allow=()):
    last = {}
    for x in ins:
        if x.pseudo == 'reset': last = {}
        for r in x.uses:
            if x.kind == 'label': break
            if r in temps and r in last and last[r].stream != x.stream and (last[r].stream, x.stream) not in allow and r not in x.defs[:0]:
                raise AssertionError(f'temp {r} used by "{x.text}" [{x.stream}] was last written by "{last[r].text}" [{last[r].stream}]')
        for r in x.defs:
            if r in temps: last[r] = x
def NEED(rs):
    x = Ins('', pseudo='need'); x.uses = list(rs); return x
def RESET(): return Ins('', pseudo='reset')

def insert_waits(ins):
    out = []
    vm = []
    lg = []
    sm = set()
    def emit_wait(v=None, l=None):
        parts = []
        if v is not None: parts.append(f'vmcnt({min(v, 63)})')
        if l is not None: parts.append(f'lgkmcnt({min(l, 15)})')
        out.append(Ins('s_waitcnt ' + ' '.join(parts)))
    for x in ins:
        if x.pseudo == 'waitvm':
            tags = x.arg if isinstance(x.arg, (list, tuple, set)) else [x.arg]
            idx = max((i for i, (d, t) in enumerate(vm) if t in tags), default=-1)
            if idx >= 0:
                emit_wait(v=len(vm) - 1 - idx); del vm[:idx + 1]
            continue
        if x.pseudo == 'waitlgkm0':
            if lg or sm: emit_wait(l=0); lg.clear(); sm.clear()
            continue
        if x.pseudo == 'drain':
            emit_wait(v=0, l=0); vm.clear(); lg.clear(); sm.clear(); continue
        if x.pseudo == 'reset':
            vm.clear(); lg.clear(); sm.clear(); out.append(x); continue
        if (x.pseudo and x.pseudo != 'need') or x.kind == 'label':
            out.append(x); continue
        touched = set(x.uses) | set(x.defs)
        nv = nl = None
        idx = max((i for i, (d, t) in enumerate(vm) if d & touched), default=-1)
        if idx >= 0: nv = len(vm) - 1 - idx; del vm[:idx + 1]
        if sm & touched:
            nl = 0; lg.clear(); sm.clear()
        else:
            idx = max((i for i, d in enumerate(lg) if d & touched), default=-1)
            if idx >= 0: nl = len(lg) - 1 - idx; del lg[:idx + 1]
        if x.kind == 'ds' and len(lg) >= 15 and (nl is None):
            nl = 14; del lg[:len(lg) - 14]
        if x.kind == 'vmem' and len(vm) >= 62 and (nv is None):
            nv = 61; del vm[:len(vm) - 61]
        if nv is not None or nl is not None: emit_wait(nv, nl)
        if x.pseudo == 'need': continue
        out.append(x)
        if x.kind == 'vmem': vm.append((set(x.defs), x.tag))
        elif x.kind == 'ds': lg.append(set(x.defs))
        elif x.kind == 'smem' and not x.note == 'stamp': sm |= set(x.defs)
        elif x.kind == 'wait':
            m = re.search(r'vmcnt\((\d+)\)', x.text)
            if m:
                n = int(m.group(1))
                if len(vm) > n: del vm[:len(vm) - n]
            m = re.search(r'lgkmcnt\((\d+)\)', x.text)
            if m:
                n = int(m.group(1))
                if len(lg) > n: del lg[:len(lg) - n]
                if n == 0: sm.clear()
    return out

def states(x):
    if x.kind == 'nop': return x.arg
    if x.kind in ('label', 'pseudo'): return 0
    return 1

def isv(r): return r[0] in ('v', 'a')
def iss(r): return r[0] in ('s', 'vcc_lo', 'vcc_hi')

def insert_nops(ins):
    out = []
    hist = []
    pos = 0
    for x in ins:
        if x.pseudo == 'reset': hist = []; out.append(x); continue
        if x.pseudo or x.kind == 'label': out.append(x); continue
        need = 0
        U = set(x.uses); D = set(x.defs)
        for (p, pp) in reversed(hist):
            dist = pos - pp - 1
            if dist > 20: break
            req = 0
            PD = set(p.defs); PU = set(p.uses)
            if p.kind == 'valu':
                vd = {r for r in PD if isv(r)}; sd = {r for r in PD if iss(r)}
                if x.kind == 'mfma' and vd & U: req = max(req, 2)
                if x.kind == 'valu':
                    if x.op.startswith('v_permlane') and vd & U: req = max(req, 2)
                    if x.dpp and vd & U: req = max(req, 2)
                    if x.op.startswith('v_readfirstlane') or x.op.startswith('v_readlane'):
                        if vd & U: req = max(req, 1)
                        if x.op.startswith('v_readlane') and sd & U: req = max(req, 4)
                    if sd & U: req = max(req, 2)
                    if p.op in TRANS and vd & U: req = max(req, 1)
                if x.kind == 'vmem' and sd & U: req = max(req, 5)
                if x.kind in ('salu', 'branch') and sd & U: req = max(req, 1)
            if p.kind == 'salu' and ('m0', 0) in PD and x.lds_dma: req = max(req, 1)
            if p.kind == 'mfma':
                n = 12 if '32x32' in p.op else 8
                if x.kind == 'mfma':
                    d, a, b, c = x.arg
                    if PD & (set(a) | set(b)): req = max(req, n)
                    elif PD & set(c) and list(c) != list(p.defs): req = max(req, n - 2)
                    elif PD & set(d) and not (PD & set(c)): req = max(req, n)
                elif x.kind in ('valu', 'vmem', 'ds') and PD & (U | D): req = max(req, n)
                pc = set(p.arg[3])
                if x.kind == 'valu' and pc & D: req = max(req, n - 5)
            if p.wide_store and set(p.arg) & D: req = max(req, 2 if x.kind == 'valu' else 1)
            need = max(need, req - dist)
        while need > 0:
            k = min(need, 16); nop = Ins(f's_nop {k - 1}'); out.append(nop); hist.append((nop, pos)); pos += k; need -= k
        out.append(x); hist.append((x, pos)); pos += states(x)
        if len(hist) > 64: hist = hist[-40:]
    return out

def check_tags(ins):
    cur = {}
    for x in ins:
        if x.pseudo == 'reset': cur = {}
        if x.expect:
            for regs, tag in x.expect:
                for r in regs:
                    if cur.get(r) != tag:
                        raise AssertionError(f'tag mismatch at "{x.text}": {r} holds {cur.get(r)} expected {tag}')
        for r in x.defs:
            if x.kind == 'mfma' and x.tag is None and r in cur and list(x.arg[3]) == list(x.defs): continue
            cur[r] = x.tag

def render(ins):
    o = []
    for x in ins:
        if x.pseudo in ('reset',): continue
        if x.kind == 'label': o.append(x.text)
        else: o.append('    ' + x.text.replace('\n', '\n    '))
    return '\n'.join(o) + '\n'

class Weave:
    def __init__(self, budget=23):
        self.spine = []
        self.gaps = []
        self.budget = budget
    def mfma(self, ins, pre=None):
        self.spine.append((list(pre or []), ins)); self.gaps.append([]); return len(self.spine) - 1
    def used(self, g):
        c = sum(x.cost for x in self.gaps[g])
        if g + 1 < len(self.spine): c += sum(4 if (x.pseudo or x.kind == 'barrier') else x.cost for x in self.spine[g + 1][0])
        return c
    def place(self, items, start, end=None, per_gap=99, extra=0):
        g = start; n = 0
        items = atomize(items)
        last = len(self.spine) - 1 if end is None else min(end, len(self.spine) - 1)
        for it in items:
            grp = it if isinstance(it, list) else [it]
            c = sum(4 if x.pseudo else x.cost for x in grp)
            big = c > 12
            while g < last and (n >= per_gap or (not big and self.used(g) + c > self.budget + extra and self.used(g) > 0) or (big and self.used(g) > self.budget - 8 + extra)):
                g += 1; n = 0
            self.gaps[g].extend(grp); n += 1
        return g
    def flatten(self):
        o = []
        for (pre, m), gap in zip(self.spine, self.gaps):
            o.extend(pre); o.append(m); o.extend(gap)
        return o
```

```python
import sys, json
from asmlib import *

NAME = 'gated_mix__ssm_conv_h3__glu_gated_reglu__prompt'
WS_H   = 0
WS_KVT = 0x900000
WS_YT  = 0xB00000
WS_G   = 0xD00000
FL_H   = 0xD40000
FL_KV  = 0xD60000
FL_G   = 0xD68000
FL_Y   = 0xD80000
WS_PROF= 0xD20000
WS_SIZE= 0xE00000
L_W = 0
L_X = 81920
L_C = 32768
L_S = 98304
L_X0 = 0
L_X1 = 32768
L_Q = 147456
L_Y = 155648
LDS_BYTES = 163840
CSTR = 2368
UOFF = 9280

P_Q, P_K, P_V, P_SK, P_SSM, P_D, P_BX, P_WG, P_WU, P_WD, P_GW, P_OUT, P_DBG, P_WS = [16 + 2 * i for i in range(14)]
SX, SA, SB, SWS, SHS, SSM, SOUT = 44, 48, 52, 56, 60, 64, 68
sN = 72
sG = 74
sW, sW4K, sC0, sXb, sWb, sWo, sXo, sHo0, sHo1, sTB, sDB, sMASK, sSPIN, sD = range(88, 102)
STAMPS = [28, 30, 32, 36, 24, 26, 38, 40, 42]
sPW, sPX = 16, 20
def srd(n): return f's[{n}:{n+3}]'
def sp(n): return f's[{n}:{n+1}]'
def vr(n, k): return f'v[{n}:{n+k-1}]' if k > 1 else f'v{n}'
def ar(n, k): return f'a[{n}:{n+k-1}]'
def regs(t, n, k): return [(t, i) for i in range(n, n + k)]
vL, vL16 = 0, 1
vX, vW, vA, vB = 2, 6, 10, 14
vCA, vCB, vG0, vG1, vHl, vFl, vP, vN = 18, 19, 20, 21, 22, 23, 24, 26
vT = 28
vS = 6
vR0, vR1 = 10, 11
vQ = 12
FA = [32, 56]; FB = [48, 72]
vD = 80; vCT = 98; vU0 = 110; vU1 = 111; vKV = 112
ACC1 = 128
CA = 32; CBR = 56
ACC2 = 32
HR = 160; NHR = 24
vBS = 128; vGA = 136; vGG = 152; vE = 154
vXR = 96
aWD = 0; aCV = 224

DEF = dict(prof=0, E=2, dma_gap=1, p_nonce=8, p_ssm=11, p_kv=13, epi_start=0, hflag_delay=11, hpoll=46, hcheck=54, wd0=16, wdstep=7, wdlead=4, sleep=4,
           ypoll=40, ycheck=64, gpoll=8, ldx='', ldw='', ldkv='nt', ldwd='', ldssm='nt', codepf=1, spin=200000, nohelp=0)

class Gen:
    def __init__(self, **kw):
        self.o = dict(DEF); self.o.update(kw)
        self.nlab = 0
        self.nstamp = 0
    def lab(self, base):
        self.nlab += 1; return f'L_{base}_{self.nlab}'
    def stamp(self, k, st='std'):
        if not self.o['prof'] or (self.o.get('stampset', 'std') != st and k < 8): return []
        x = I(f's_memtime {sp(STAMPS[k])}'); x.note = 'stamp'; return [x]
    def mk_srd(self, d, p, size, bias=0):
        o = []
        if bias:
            o += [I(f's_sub_u32 s{d}, s{p}, {bias}'), I(f's_subb_u32 s{d+1}, s{p+1}, 0')]
        else:
            o += [I(f's_mov_b64 {sp(d)}, {sp(p)}')]
        o += [I(f's_mov_b32 s{d+2}, {size + bias}'), I(f's_mov_b32 s{d+3}, 0x20000')]
        return o
    def ws_base(self):
        b = self.o.get('wsbase', 0) << 20
        return [I(f's_add_u32 s{P_WS}, s{P_WS}, {b}'), I(f's_addc_u32 s{P_WS+1}, s{P_WS+1}, 0')] if b else []
    def poll_issue(self, soff_reg, tag):
        return I(f'buffer_load_dwordx2 {vr(vP,2)}, v{vFl}, {srd(SWS)}, s{soff_reg} offen sc1', tag=tag)
    def poll_check(self, soff_reg):
        ok = self.lab('ok'); lp = self.lab('lp')
        return [I(f'v_cmp_eq_u64 vcc, {sp(sN)}, {vr(vP,2)}'), I('s_cmp_eq_u64 vcc, exec'), I(f's_cbranch_scc1 {ok}'),
                RAW(f's_mov_b32 s{sSPIN}, 0\n{lp}:\nbuffer_load_dwordx2 {vr(vP,2)}, v{vFl}, {srd(SWS)}, s{soff_reg} offen sc1\ns_waitcnt vmcnt(0)\n'
                    f'v_cmp_eq_u64 vcc, {sp(sN)}, {vr(vP,2)}\ns_add_u32 s{sSPIN}, s{sSPIN}, 1\ns_nop 1\ns_cmp_eq_u64 vcc, exec\ns_cbranch_scc1 {ok}\n'
                    f's_sleep {self.o["sleep"]}\ns_cmp_lt_u32 s{sSPIN}, {self.o["spin"]}\ns_cbranch_scc1 {lp}', defs=f'vcc scc', uses=f's{soff_reg} v{vFl}'),
                I(f'{ok}:')]
    def nonce_issue(self):
        return [I(f'v_mov_b32 v{vT}, 0'), I(f'global_load_dwordx2 {vr(vN,2)}, v{vT}, {sp(P_DBG)} sc1', tag='nonce')]
    def nonce_check(self):
        ok = self.lab('nok'); lp = self.lab('nlp')
        return [I(f'v_cmp_ne_u32 vcc, 0, v{vN}'), I('s_cmp_eq_u64 vcc, exec'), I(f's_cbranch_scc1 {ok}'),
                RAW(f's_mov_b32 s{sSPIN}, 0\nv_mov_b32 v{vT}, 0\n{lp}:\nglobal_load_dwordx2 {vr(vN,2)}, v{vT}, {sp(P_DBG)} sc1\ns_waitcnt vmcnt(0)\n'
                    f'v_cmp_ne_u32 vcc, 0, v{vN}\ns_add_u32 s{sSPIN}, s{sSPIN}, 1\ns_nop 1\ns_cmp_eq_u64 vcc, exec\ns_cbranch_scc1 {ok}\n'
                    f's_sleep {self.o["sleep"]}\ns_cmp_lt_u32 s{sSPIN}, {self.o["spin"]}\ns_cbranch_scc1 {lp}', defs=f'vcc scc v{vT}'),
                I(f'{ok}:'), I(f'v_readfirstlane_b32 s{sN}, v{vN}'), I(f'v_readfirstlane_b32 s{sN+1}, v{vN+1}')]
    def flag_store(self, tag, soff_reg, srdn=SWS):
        return [I(f'v_mov_b32 v{vT}, 0'), WAITVM(tag), I('s_mov_b64 exec, 1'),
                I(f'buffer_store_dwordx2 {vr(vN,2)}, v{vT}, {srd(srdn)}, s{soff_reg} offen sc1'), I('s_mov_b64 exec, -1')]

    def prologue(self):
        o = []; A = lambda t, **k: o.append(I(t, **k))
        A('s_cmp_ge_u32 s2, 256'); A('s_cbranch_scc1 L_end')
        if self.o['prof']: A('s_memrealtime s[74:75]'); A('s_memtime s[76:77]')
        if self.o.get('delay'):
            o.append(RAW(f's_mov_b32 s3, 0\nL_delay:\ns_nop 15\ns_nop 15\ns_nop 15\ns_nop 15\ns_add_u32 s3, s3, 1\ns_cmp_lt_u32 s3, {self.o["delay"]}\ns_cbranch_scc1 L_delay'))
        A('s_load_dwordx16 s[16:31], s[0:1], 0'); A('s_load_dwordx8 s[32:39], s[0:1], 64'); A('s_load_dwordx4 s[40:43], s[0:1], 96')
        A(f'v_lshrrev_b32 v1, 6, v0'); A(f'v_and_b32 v{vL}, 63, v0'); A(f'v_readfirstlane_b32 s{sW}, v1')
        A(f'v_lshlrev_b32 v{vL16}, 4, v{vL}')
        A(f's_lshl_b32 s{sW4K}, s{sW}, 12')
        A(f's_mov_b32 s{sMASK}, 0xffff0000')
        A('s_and_b32 s3, s2, 7'); A('s_lshr_b32 s4, s2, 3')
        A('s_and_b32 s5, s3, 3'); A('s_lshr_b32 s6, s3, 2')
        A('s_lshl_b32 s7, s5, 3'); A('s_lshl_b32 s8, s6, 2'); A('s_add_u32 s7, s7, s8'); A('s_and_b32 s8, s4, 3')
        A(f's_add_u32 s{sTB}, s7, s8'); A(f's_lshr_b32 s{sDB}, s4, 2')
        A('s_cmp_lt_u32 s2, 32'); A('s_cbranch_scc1 L_helper')
        return o

    def gemm_prologue(self):
        o = []; A = lambda t, **k: o.append(I(t, **k))
        A('s_sub_u32 s4, s4, 4'); A('s_and_b32 s7, s4, 3'); A('s_lshr_b32 s8, s4, 2')
        A('s_lshl_b32 s9, s5, 2'); A('s_add_u32 s9, s9, s7')
        A('s_mul_i32 s10, s6, 7'); A('s_add_u32 s10, s10, s8')
        A('s_lshl_b32 s11, s5, 1'); A('s_add_u32 s11, s11, s6')
        if self.o.get('norot'): A(f's_mov_b32 s{sC0}, 0')
        else: A(f's_and_b32 s{sC0}, s11, 7')
        A(f's_lshl_b32 s{sXb}, s9, 17'); A(f's_lshl_b32 s11, s{sW}, 15'); A(f's_add_u32 s{sXb}, s{sXb}, s11')
        A(f's_mul_i32 s{sWb}, s{sW}, {8*3584}'); A('s_lshl_b32 s11, s10, 8'); A(f's_add_u32 s{sWb}, s{sWb}, s11')
        A(f'v_lshrrev_b32 v28, 3, v{vL}'); A('v_lshlrev_b32 v28, 10, v28')
        A(f'v_and_b32 v29, 7, v{vL}'); A(f'v_lshrrev_b32 v30, 4, v{vL}'); A('v_xor_b32 v29, v29, v30'); A('v_lshl_add_u32 v28, v29, 4, v28')
        A(f'v_lshrrev_b32 v29, 4, v{vL}'); A('v_mul_u32_u24 v30, 3584, v29')
        A(f'v_bfe_u32 v31, v{vL}, 1, 3'); A('v_lshlrev_b32 v29, 1, v29'); A('v_xor_b32 v31, v31, v29')
        A(f'v_and_b32 v29, 1, v{vL}'); A('v_lshlrev_b32 v29, 4, v29'); A('v_lshl_or_b32 v31, v31, 5, v29')
        for k in range(4):
            A(f's_add_u32 s11, s8, {k}'); A('s_and_b32 s11, s11, 3')
            A('s_and_b32 s12, s11, 1'); A('s_lshl_b32 s12, s12, 6'); A('s_lshl_b32 s13, s11, 13')
            A(f'v_xor_b32 v29, s12, v28'); A(f'v_add_u32 v{vX+k}, s13, v29')
            A(f's_add_u32 s11, s7, {k}'); A('s_and_b32 s11, s11, 3')
            A('s_and_b32 s12, s11, 1'); A('s_lshl_b32 s12, s12, 5'); A('s_lshr_b32 s13, s11, 1'); A(f's_mul_i32 s13, s13, {4*3584}')
            A(f'v_xor_b32 v29, s12, v31'); A(f'v_add3_u32 v{vW+k}, v29, v30, s13')
        A(f's_lshl_b32 s{sXo}, s{sC0}, 7'); A(f's_add_u32 s{sXo}, s{sXo}, s{sXb}')
        A(f's_mul_i32 s{sWo}, s{sC0}, {64*3584}'); A(f's_add_u32 s{sWo}, s{sWo}, s{sWb}')
        A(f's_and_b32 s11, s{sW}, 1'); A(f's_lshr_b32 s12, s{sW}, 1')
        A('s_lshl_b32 s13, s9, 1'); A('s_add_u32 s13, s13, s11')
        A('s_mul_i32 s14, s13, 112'); A('s_lshl_b32 s15, s10, 3'); A('s_add_u32 s14, s14, s15'); A('s_lshl_b32 s15, s12, 2'); A('s_add_u32 s14, s14, s15')
        A(f's_lshl_b32 s{sHo0}, s14, 11'); A(f's_add_u32 s{sHo1}, s{sHo0}, 4096')
        A('s_mul_i32 s13, s13, 28'); A('s_lshl_b32 s14, s10, 1'); A('s_add_u32 s13, s13, s14'); A('s_add_u32 s13, s13, s12'); A('s_lshl_b32 s13, s13, 7')
        A(f's_add_u32 s13, s13, {FL_H}')
        o.append(WAITLGKM0())
        o += self.ws_base()
        if self.o['prof']: A('s_mov_b32 s0, s74'); A('s_mov_b32 s1, s76')
        o += self.mk_srd(SX, P_Q, 0x200000)
        A('s_and_b32 s11, s7, 1'); A('s_cmp_eq_u32 s11, 0')
        A(f's_cselect_b64 {sp(SA)}, {sp(P_WG)}, {sp(P_WU)}'); A(f's_cselect_b64 {sp(SB)}, {sp(P_WU)}, {sp(P_WG)}')
        for d in (SA, SB): A(f's_mov_b32 s{d+2}, {512*3584}'); A(f's_mov_b32 s{d+3}, 0x20000')
        for k in range(4):
            A(f's_add_u32 s11, s7, {k}'); A('s_and_b32 s11, s11, 3'); A('s_lshl_b32 s11, s11, 10'); A(f's_add_u32 s{sPW+k}, s11, s{sW4K}')
            A(f's_add_u32 s11, s8, {k}'); A('s_and_b32 s11, s11, 3'); A('s_lshl_b32 s11, s11, 10'); A(f's_add_u32 s{sPX+k}, s11, s{sW4K}')
        return [x for x in o if x is not None]

    def dma_x(self, c, ks, so):
        fl = self.o['ldx']
        return [[I(f's_add_u32 m0, s{sPX+k}, {L_X + (c % 3) * 16384}'), I(f'buffer_load_dwordx4 v{vX+k}, {srd(SX)}, s{so} offen {fl} lds', tag=f'x{c}')] for k in ks]
    def dma_w(self, H, ks, so):
        fl = self.o['ldw']
        return [[I(f's_add_u32 m0, s{sPW+k}, {L_W + ((H + 1) % 5) * 16384}'), I(f'buffer_load_dwordx4 v{vW+k}, {srd(SB if k & 1 else SA)}, s{so} offen {fl} lds', tag=f'w{H}')] for k in ks]
    def off_w(self, H, d):
        o = [I(f's_add_u32 s{d}, s{sC0}, {H>>1}'), I(f's_and_b32 s{d}, s{d}, 7'), I(f's_mul_i32 s{d}, s{d}, {64*3584}'), I(f's_add_u32 s{d}, s{d}, s{sWb}')]
        if H & 1: o.append(I(f's_add_u32 s{d}, s{d}, {32*3584}'))
        return o
    def off_x(self, c, d):
        return [I(f's_add_u32 s{d}, s{sC0}, {c}'), I(f's_and_b32 s{d}, s{d}, 7'), I(f's_lshl_b32 s{d}, s{d}, 7'), I(f's_add_u32 s{d}, s{d}, s{sXb}')]

    def gemm_addr(self):
        o = []; A = lambda t, **k: o.append(I(t, **k))
        A(f's_lshr_b32 s3, s{sW}, 1'); A('s_lshl_b32 s3, s3, 2')
        A(f'v_bfe_u32 v28, v{vL}, 2, 2')
        A(f'v_bfe_u32 v29, v{vL}, 1, 1')
        A('v_lshl_or_b32 v30, v28, 1, v29')
        A('v_lshlrev_b32 v28, 8, v28'); A('v_lshl_or_b32 v28, v29, 10, v28')
        A(f'v_lshrrev_b32 v29, 5, v{vL}'); A('v_lshl_or_b32 v28, v29, 12, v28')
        A(f'v_bfe_u32 v29, v{vL}, 4, 1'); A('v_lshl_or_b32 v28, v29, 4, v28')
        A(f'v_and_b32 v29, 1, v{vL}'); A('v_lshl_or_b32 v28, v29, 3, v28')
        A('v_xor_b32 v30, s3, v30')
        for a in range(4):
            A(f'v_xor_b32 v29, {a}, v30'); A(f'v_lshl_or_b32 v{vA+a}, v29, 5, v28')
        A(f's_and_b32 s3, s{sW}, 1'); A('s_lshl_b32 s3, s3, 13'); A(f's_add_u32 s3, s3, {L_X}')
        A(f'v_and_b32 v28, 31, v{vL}'); A('v_lshlrev_b32 v28, 7, v28'); A('v_add_u32 v28, s3, v28')
        A(f'v_bfe_u32 v29, v{vL}, 1, 3'); A(f'v_lshrrev_b32 v30, 5, v{vL}'); A('v_xor_b32 v29, v29, v30')
        for s in range(4):
            A(f'v_xor_b32 v30, {2*s}, v29'); A(f'v_lshl_add_u32 v{vB+s}, v30, 4, v28')
        return o

    def frag_reads(self, S):
        st = S & 1; H = S >> 1; c = S >> 2
        fa, fb = FA[st], FB[st]
        wo = L_W + ((H + 1) % 5) * 16384 + st * 8192
        xo = (c % 3) * 16384
        def rb(b): return I(f'ds_read_b128 {vr(fb+4*b,4)}, v{vB+(S&3)} offset:{xo + 4096*b}', tag=f'B{S}_{b}')
        def ra(a): return [I(f'ds_read_b64_tr_b16 {vr(fa+4*a+2*j,2)}, v{vA+a} offset:{wo + 2048*j}', tag=f'A{S}_{a}') for j in range(2)]
        pre = []
        hi = (H + 1) % 5 == 4
        if hi: wo -= 65536
        if st == 0 and hi: pre = [I(f'v_add_u32 v{vA+a}, 0x10000, v{vA+a}') for a in range(4)]
        if st == 0 and H > 0 and H % 5 == 4: pre = [I(f'v_subrev_u32 v{vA+a}, 0x10000, v{vA+a}') for a in range(4)]
        return [rb(0)] + pre + ra(0) + [rb(1)] + ra(1) + ra(2) + ra(3)

    def late_setup(self):
        o = []; A = lambda t, **k: o.append(I(t, **k))
        o += self.mk_srd(SWS, P_WS, WS_SIZE) + self.mk_srd(SOUT, P_OUT, 0x200000)
        A(f's_lshr_b32 s5, s{sW}, 1'); A('s_lshl_b32 s6, s2, 1'); A('s_add_u32 s5, s5, s6')
        A('s_lshl_b32 s6, s5, 12')
        A(f's_add_u32 s{SSM}, s{P_SSM}, s6'); A(f's_addc_u32 s{SSM+1}, s{P_SSM+1}, 0'); A(f's_mov_b32 s{SSM+2}, 4096'); A(f's_mov_b32 s{SSM+3}, 0x20000')
        A('s_lshl_b32 s6, s2, 2'); A(f'v_mov_b32 v{vT}, s6')
        A(f'global_load_dword v{vT+1}, v{vT}, {sp(P_D)}', tag='dval')
        A(f's_lshl_b32 s6, s{sW}, 14'); A(f's_add_u32 s6, s6, {L_C}')
        A(f'v_and_b32 v30, 3, v{vL}'); A(f'v_mul_u32_u24 v30, {CSTR}, v30')
        A(f'v_and_b32 v31, 28, v{vL}'); A('v_lshl_add_u32 v30, v31, 1, v30')
        A(f'v_lshrrev_b32 v31, 5, v{vL}'); A('v_lshlrev_b32 v31, 4, v31')
        A('v_sub_u32 v30, v30, v31'); A('s_add_u32 s7, s6, 16'); A(f'v_add_u32 v{vCA}, s7, v30')
        A(f'v_and_b32 v30, 31, v{vL}'); A('v_mul_u32_u24 v30, 144, v30'); A(f's_add_u32 s7, s6, {UOFF}'); A(f'v_add3_u32 v{vCB}, v30, v31, s7')
        A(f's_mul_i32 s9, s{sTB}, {112*2048}'); A(f'v_add_u32 v{vHl}, s9, v{vL16}')
        A(f's_and_b32 s7, s{sTB}, 3'); A('s_mul_i32 s7, s7, 7'); A('s_add_u32 s7, s7, 1'); A('s_lshr_b32 s7, s7, 1')
        A(f's_mul_i32 s8, s{sDB}, 7'); A('s_add_u32 s8, s8, 2'); A('s_lshr_b32 s8, s8, 2'); A('s_add_u32 s7, s7, s8')
        if self.o.get('norot2'): A('s_mov_b32 s7, 0')
        A('s_sub_u32 s8, s7, 14'); A('s_cmp_ge_u32 s7, 14'); A('s_cselect_b32 s7, s8, s7')
        A(f's_mul_i32 s8, s{sW}, {28*2048}'); A('s_lshl_b32 s7, s7, 12')
        A(f's_add_u32 s9, s8, {14*4096}')
        A(f's_add_u32 s{sG}, s7, s8')
        for g in range(1, 14):
            A(f's_add_u32 s{sG+g}, s{sG+g-1}, 4096'); A(f's_cmp_eq_u32 s{sG+g}, s9'); A(f's_cselect_b32 s{sG+g}, s8, s{sG+g}')
        A(f'v_readfirstlane_b32 s{sD}, v{vT+1}'); A(f's_lshr_b32 s7, s{sW}, 1'); A('s_lshl_b32 s7, s7, 4'); A(f's_lshr_b32 s{sD}, s{sD}, s7'); A(f's_lshl_b32 s{sD}, s{sD}, 16')
        return o

    def zero_fill(self):
        o = []; A = lambda t, **k: o.append(I(t, **k))
        A(f's_lshl_b32 s6, s{sW}, 14'); A(f's_add_u32 s6, s6, {L_C + UOFF}'); A(f'v_add_u32 v{vU0}, s6, v{vL16}')
        for i in range(4): A(f'v_mov_b32 v{vCT+i}, 0')
        for i in range(5): A(f'ds_write_b128 v{vU0}, {vr(vCT,4)} offset:{1024*i}')
        return o
    def ssm_loads(self):
        o = []; A = lambda t, **k: o.append(I(t, **k))
        fl = self.o['ldssm']
        A(f's_and_b32 s6, s{sW}, 1'); A('s_mul_i32 s6, s6, 2048'); A('s_sub_u32 s6, s6, 128')
        A(f'v_add_u32 v30, s6, v{vL16}')
        A('v_add_u32 v31, 16, v30'); A('v_add_u32 v29, 1024, v30')
        A(f'v_cmp_gt_i32 vcc, 0, v30'); A('v_bfrev_b32 v28, 1'); A('v_cndmask_b32 v30, v30, v28, vcc')
        A(f'v_cmp_gt_i32 vcc, 0, v31'); A('v_cndmask_b32 v31, v31, v28, vcc')
        A(f'buffer_load_dwordx4 {vr(vD,4)}, v30, {srd(SSM)}, 0 offen {fl}')
        A(f'buffer_load_dwordx2 {vr(vD+4,2)}, v31, {srd(SSM)}, 0 offen {fl}')
        A(f'buffer_load_dwordx4 {vr(vD+6,4)}, v29, {srd(SSM)}, 0 offen {fl}')
        A(f'buffer_load_dwordx2 {vr(vD+10,2)}, v29, {srd(SSM)}, 0 offen offset:16 {fl}')
        A(f'buffer_load_dwordx4 {vr(vD+12,4)}, v29, {srd(SSM)}, 0 offen offset:1024 {fl}')
        A(f'buffer_load_dwordx2 {vr(vD+16,2)}, v29, {srd(SSM)}, 0 offen offset:1040 {fl}')
        return o
    def copies_build(self):
        o = []; A = lambda t, **k: o.append(I(t, **k))
        A(f's_lshl_b32 s6, s{sW}, 14'); A(f's_add_u32 s6, s6, {L_C}'); A(f'v_add_u32 v{vU1}, s6, v{vL16}')
        for p in range(3):
            d = vD + 6 * p
            for i in range(4): A(f'v_alignbyte_b32 v{vCT+i}, v{d+i+1}, v{d+i}, 2')
            for i in range(4): A(f'v_mov_b32 v{vCT+4+i}, v{d+i+1}')
            for i in range(4): A(f'v_alignbyte_b32 v{vCT+8+i}, v{d+i+2}, v{d+i+1}, 2')
            w = [I(f'ds_write_b128 v{vU1}, {vr(vCT+4*c,4)} offset:{c*CSTR + 1024*p}') for c in range(3)]
            w.append(I(f'ds_write_b128 v{vU1}, {vr(d+2,4)} offset:{3*CSTR + 1024*p}'))
            if p < 2: o += w
            else: o.append([I('s_mov_b64 exec, 0xff')] + w + [I('s_mov_b64 exec, -1')])
        return o
    def kv_poll_addr(self):
        return [I(f'v_and_b32 v{vFl}, 15, v{vL}'), I(f'v_lshlrev_b32 v{vFl}, 7, v{vFl}'),
                I('s_lshr_b32 s14, s2, 5'), I('s_lshl_b32 s14, s14, 11'), I(f's_add_u32 s14, s14, {FL_KV}')]
    def kv_loads(self):
        o = []; A = lambda t, **k: o.append(I(t, **k))
        A(f's_lshr_b32 s5, s{sW}, 1'); A('s_lshl_b32 s6, s2, 1'); A('s_add_u32 s5, s5, s6'); A('s_lshl_b32 s5, s5, 12'); A(f's_add_u32 s5, s5, {WS_KVT}')
        for i in range(4): A(f'buffer_load_dwordx4 {vr(vKV+4*i,4)}, v{vL16}, {srd(SWS)}, s5 offen offset:{1024*i} sc1')
        return o
    def u_writes(self):
        o = []; A = lambda t, **k: o.append(I(t, **k))
        A(f's_and_b32 s5, s{sW}, 1'); A('s_mul_i32 s7, s5, 2304')
        A(f's_lshl_b32 s6, s{sW}, 14'); A(f's_add_u32 s6, s6, {L_C + UOFF + 15*144}'); A('s_add_u32 s6, s6, s7')
        A(f'v_lshrrev_b32 v30, 3, v{vL}'); A('v_mul_u32_u24 v30, 144, v30'); A(f'v_and_b32 v31, 7, v{vL}'); A('v_lshl_add_u32 v30, v31, 4, v30')
        A(f'v_add_u32 v{vU0}, s6, v30'); A('s_sub_u32 s7, 2304, s7'); A(f'v_add_u32 v{vU1}, s7, v{vU0}')
        for i in (2, 3): A(f'ds_write_b128 v{vU1}, {vr(vKV+4*i,4)} offset:{1152*(i-2)}')
        for i in (0, 1): A(f'ds_write_b128 v{vU0}, {vr(vKV+4*i,4)} offset:{1152*i}')
        return o
    def stage_setup(self):
        o = []; A = lambda t, **k: o.append(I(t, **k))
        o += self.mk_srd(SA, P_WD, 1792 * 1024)
        A(f'v_lshrrev_b32 v28, 3, v{vL}'); A(f'v_bfe_u32 v29, v{vL}, 4, 1'); A('v_lshlrev_b32 v29, 2, v29'); A(f'v_and_b32 v30, 7, v{vL}'); A('v_xor_b32 v29, v29, v30')
        A('v_lshlrev_b32 v28, 10, v28'); A('v_lshl_add_u32 v28, v29, 4, v28'); A(f's_lshl_b32 s5, s{sDB}, 7'); A(f'v_add_u32 v{vS}, s5, v28')
        A(f'v_add_u32 v{vS+1}, {8192 - 1024}, v{vS}'); A(f'v_add_u32 v{vS+2}, 16384, v{vS}'); A(f'v_add_u32 v{vS+3}, {24576 - 1024}, v{vS}')
        A(f's_mul_i32 s5, s{sW}, 12288'); A(f's_add_u32 s{sWo}, s5, {L_S}')
        A(f'v_lshrrev_b32 v28, 5, v{vL}'); A(f'v_bfe_u32 v29, v{vL}, 2, 2'); A('v_lshl_or_b32 v28, v28, 2, v29'); A('v_lshlrev_b32 v28, 7, v28'); A(f'v_add_u32 v28, s{sWo}, v28')
        A(f'v_and_b32 v29, 1, v{vL}'); A('v_lshl_add_u32 v28, v29, 3, v28')
        A(f'v_bfe_u32 v29, v{vL}, 4, 1'); A(f'v_bfe_u32 v30, v{vL}, 1, 1'); A('v_lshl_or_b32 v29, v29, 1, v30')
        A(f'v_bfe_u32 v30, v{vL}, 3, 1'); A('v_lshl_or_b32 v29, v30, 2, v29')
        A(f's_and_b32 s5, s{sW}, 1'); A('s_lshl_b32 s5, s5, 2'); A(f's_and_b32 s6, s{sW}, 2'); A('s_or_b32 s5, s5, s6'); A('v_xor_b32 v29, s5, v29')
        A(f'v_lshl_add_u32 v{vR0}, v29, 4, v28'); A('v_xor_b32 v29, 4, v29'); A(f'v_lshl_add_u32 v{vR1}, v29, 4, v28')
        A(f'v_lshrrev_b32 v28, 3, v{vL}'); A('v_lshlrev_b32 v28, 10, v28'); A(f'v_and_b32 v29, 7, v{vL}'); A(f'v_lshrrev_b32 v30, 4, v{vL}'); A('v_xor_b32 v29, v29, v30')
        A(f'v_lshl_add_u32 v{vQ}, v29, 4, v28'); A(f'v_xor_b32 v{vQ+1}, 64, v{vQ}'); A(f'v_add_u32 v{vQ+1}, 7168, v{vQ+1}')
        return o
    def wd_dma(self, s_):
        fl = self.o['ldwd']
        o = []
        if s_ % 2 == 0: o.append(I(f's_lshl_b32 s{sXo}, s{sG+(s_>>1)}, 3'))
        o.append(I(f's_add_u32 m0, s{sWo}, {(s_ % 6) * 2048}'))
        L = [I(f'buffer_load_dwordx4 v{vS+2*(s_&1)+j}, {srd(SA)}, s{sXo} offen offset:{1024*j} {fl} lds', tag=f'sd{s_}') for j in range(2)]
        if s_ >= 6: o.insert(0, NEED(regs('a', aWD + 8 * (s_ - 6), 8)))
        return [o + [L[0]], L[1]]
    def wd_read(self, s_):
        return [WAITVM(f'sd{s_}')] + [I(f'ds_read_b64_tr_b16 {ar(aWD+8*s_+4*dt+2*j,2)}, v{vR0+dt} offset:{(s_%6)*2048 + 1024*j}', tag=f'wd{s_}_{dt}') for dt in range(2) for j in range(2)]

    def gemm1(self):
        O = self.o; E = O['E']
        o = self.gemm_prologue()
        flat = lambda L: [y for x in L for y in (x if isinstance(x, list) else [x])]
        o += flat(self.dma_x(0, range(4), sXo)) + flat(self.dma_w(0, range(4), sWo)) + self.off_w(1, sWo) + flat(self.dma_w(1, range(4), sWo))
        if O['codepf']: o += self.code_prefetch()
        if E:
            o += self.off_x(1, 4) + flat(self.dma_x(1, [0], 4))
            for U in range(2, 2 + E): o += self.off_w(U, 3) + flat(self.dma_w(U, [0], 3))
        o += self.stamp(0)
        o += self.gemm_addr()
        o += self.mk_srd(SHS, P_WS, WS_SIZE)
        o += [WAITVM(['x0', 'w0']), I('s_barrier')] + self.stamp(1) + self.frag_reads(0)
        W = Weave()
        for S in range(32):
            st = S & 1
            for i in range(8):
                a, b = i >> 1, i & 1
                acc = ACC1 + 32 * a + 16 * b
                c = '0' if S == 0 else vr(acc, 16)
                m = I(f'v_mfma_f32_32x32x16_bf16 {vr(acc,16)}, {vr(FA[st]+4*a,4)}, {vr(FB[st]+4*b,4)}, {c}',
                      expect=[(regs('v', FA[st]+4*a, 4), f'A{S}_{a}'), (regs('v', FB[st]+4*b, 4), f'B{S}_{b}')])
                pre = []
                if i == 0 and st == 1:
                    H = (S + 1) >> 1
                    pre = [WAITLGKM0(), WAITVM([f'w{H}', f'x{H>>1}']), I('s_barrier')]
                W.mfma(m, pre)
        for S in range(31): W.place(self.frag_reads(S + 1), 8 * S, per_gap=2)
        pstart = lambda H: max(0, 8 * (2 * H - 1))
        late = [1, 2, 3] if E else [0, 1, 2, 3]
        g = 0
        for H in range(14):
            items = []
            if H % 2 == 0 and H // 2 + 1 < 8: items += [[x] for x in self.off_x(H // 2 + 1, sXo)] + self.dma_x(H // 2 + 1, late, sXo)
            items += [[x] for x in self.off_w(H + 2, sWo)] + self.dma_w(H + 2, late, sWo)
            nlate = len(items)
            if E and H + 2 + E < 16: items += [[x] for x in self.off_w(H + 2 + E, 3)] + self.dma_w(H + 2 + E, [0], 3)
            if E and H % 2 == 0 and H // 2 + 2 < 8: items += [[x] for x in self.off_x(H // 2 + 2, 4)] + self.dma_x(H // 2 + 2, [0], 4)
            stream('dma', items)
            g = max(g, pstart(H))
            for it in items:
                isd = any(x.kind == 'vmem' for x in it)
                g = W.place([it], g)
                if isd and H > 0: g += O['dma_gap']
            assert g <= pstart(H + 2), (H, g)
        gd = g
        g = W.place(stream('late', self.late_setup()), pstart(1) + 8)
        assert g < pstart(O['p_nonce']), g
        W.place(stream('nonce', [self.nonce_issue()]), pstart(O['p_nonce']) + 11)
        W.place(stream('nonce', [self.nonce_check()]), pstart(O['p_nonce'] + 2) + 5)
        W.place(stream('ssm', self.ssm_loads()), pstart(O['p_ssm']) + 9)
        g = W.place(stream('kvp', self.kv_poll_addr() + [self.poll_issue(14, 'kvp')]), pstart(O['p_kv']) + 7)
        g = W.place(stream('zero', self.zero_fill()), max(g, pstart(14)))
        g = W.place(stream('kvp', [self.poll_check(14)] + self.kv_loads()), max(g, pstart(O['p_kv'] + 1) + O.get('kvchk', 2)))
        g = W.place(stream('cop', self.copies_build()), max(g, pstart(14) + 4))
        g = W.place(stream('stg', self.stage_setup()), max(g, gd + 1, 8 * 30 + 6))
        g = W.place(stream('uw', self.u_writes()), max(g, 8 * 31))
        for k in range(8): W.gaps[32 * k] += self.stamp(k, 'g1')
        o += W.flatten()
        o += self.stamp(2)
        return o

    def code_prefetch(self):
        o = []; A = lambda t, **k: o.append(I(t, **k))
        sk = self.lab('pf'); pc = self.lab('pc')
        A(f's_cmp_lg_u32 s{sW}, 3'); A(f's_cbranch_scc1 {sk}')
        A('s_getpc_b64 s[6:7]'); A(f'{pc}:')
        A(f's_sub_u32 s6, s6, {pc}-{NAME}_kernel'); A('s_subb_u32 s7, s7, 0')
        A('s_lshr_b32 s3, s2, 3'); A('s_and_b32 s3, s3, 7'); A('s_mul_i32 s3, s3, 5120')
        A(f'v_min_u32 v28, 39, v{vL}'); A('v_lshlrev_b32 v28, 7, v28'); A('v_add_u32 v28, s3, v28')
        A(f'v_min_u32 v28, L_codeend-{NAME}_kernel-4, v28')
        o.append(RAW('global_load_dword v127, v28, s[6:7]'))
        A(f'{sk}:')
        return o

    def conv(self, W):
        O = self.o
        pre = []
        def ra(sg):
            d = CA + 4 * (sg % 6)
            return [I(f'ds_read_b64 {vr(d+2*j,2)}, v{vCA} offset:{32*sg + 8*j}', tag=f'cA{sg}') for j in range(2)]
        def rb(st):
            d = CBR + 4 * (st % 4)
            return I(f'ds_read_b128 {vr(d,4)}, v{vCB} offset:{(15-(st>>2))*144 + 32*(3-(st&3))}', tag=f'cB{st}')
        pre += ra(0) + [rb(0)] + ra(2) + ra(1) + [rb(1)] + ra(3)
        base = len(W.spine)
        for st in range(64):
            for m in range(2):
                sg = st + 2 * m
                acc = aCV + 16 * m
                c = '0' if st == 0 else ar(acc, 16)
                W.mfma(I(f'v_mfma_f32_32x32x16_bf16 {ar(acc,16)}, {vr(CA+4*(sg%6),4)}, {vr(CBR+4*(st%4),4)}, {c}',
                         expect=[(regs('v', CA+4*(sg%6), 4), f'cA{sg}'), (regs('v', CBR+4*(st%4), 4), f'cB{st}')]), pre if (st == 0 and m == 0) else None)
        for st in range(64):
            it = []
            if st + 2 < 64: it.append(rb(st + 2))
            if st + 4 < 66: it += ra(st + 4)
            W.place(it[:2], base + 2 * st); W.place(it[2:], base + 2 * st + 1)
        return base

    def h_epilogue(self):
        o = []
        for a in range(4):
            for b in range(2):
                R = ACC1 + 32 * a + 16 * b
                for h in (0, 8):
                    for i in range(4): o.append(I(f'v_max_f32 v{R+h+i}, 0, v{R+h+i}'))
                    for i in range(4): o.append(I(f'v_mul_f32 v{R+h+i}, v{R+h+i}, v{R+h+4+i}'))
                for q, src in enumerate((0, 2, 8, 10)): o.append(I(f'v_cvt_pk_bf16_f32 v{R+4+q}, v{R+src}, v{R+src+1}'))
                so = sHo0 if a < 2 else sHo1
                o.append(I(f'buffer_store_dwordx4 {vr(R+4,4)}, v{vL16}, {srd(SHS)}, s{so} offen offset:{(a&1)*2048 + b*1024} sc1', tag='hst'))
        return o
    def h_load(self, i):
        p, s = divmod(i, 28)
        return I(f'buffer_load_dwordx4 {vr(HR+4*(i%NHR),4)}, v{vHl}, {srd(SWS)}, s{sG+(s>>1)} offen offset:{(s&1)*2048 + p*1024} sc1', tag=f'h{i}')
    def h_poll_addr(self):
        return [I(f'v_min_u32 v{vFl}, 6, v{vL}'), I(f'v_lshlrev_b32 v{vFl}, 7, v{vFl}'),
                I(f's_mul_i32 s14, s{sTB}, {28*128}'), I(f's_mul_i32 s15, s{sW}, {7*128}'), I('s_add_u32 s14, s14, s15'), I(f's_add_u32 s14, s14, {FL_H}')]

    def conv_epilogue(self):
        a = []; A = lambda t, **k: a.append(I(t, **k))
        A(f's_lshl_b32 s6, s{sW}, 14'); A(f's_add_u32 s6, s6, {L_C}')
        A(f'v_and_b32 v30, 31, v{vL}'); A('v_mul_u32_u24 v30, 272, v30'); A(f'v_lshrrev_b32 v31, 5, v{vL}'); A('v_lshl_add_u32 v30, v31, 4, v30'); A('v_add_u32 v30, s6, v30')
        addr = a; a = []
        for m in range(2):
            for g in range(4): A(f'ds_write_b128 v30, {ar(aCV+16*m+4*g,4)} offset:{(32*m+8*g)*4}')
        wr = a; a = []
        A(f's_and_b32 s5, s{sW}, 2'); A('s_lshl_b32 s5, s5, 14'); A(f's_add_u32 s5, s5, {L_C}')
        A(f's_and_b32 s7, s{sW}, 1'); A('s_lshl_b32 s7, s7, 4')
        A(f'v_lshrrev_b32 v28, 3, v{vL}'); A('v_add_u32 v28, s7, v28'); A(f'v_and_b32 v29, 7, v{vL}')
        A('v_mul_u32_u24 v31, 272, v28'); A('v_lshl_add_u32 v31, v29, 5, v31'); A(f'v_add_u32 v{vGG}, s5, v31')
        A('v_mul_u32_u24 v31, 144, v28'); A('v_lshl_add_u32 v31, v29, 4, v31'); A(f's_add_u32 s5, s5, {UOFF + 15*144}'); A(f'v_add_u32 v{vGG+1}, s5, v31')
        A(f's_lshr_b32 s5, s{sW}, 1'); A('s_lshl_b32 s6, s2, 1'); A('s_add_u32 s5, s5, s6')
        A(f's_and_b32 s7, s{sW}, 1'); A('s_lshl_b32 s12, s5, 12'); A('s_lshl_b32 s8, s7, 11'); A('s_add_u32 s12, s12, s8'); A(f's_add_u32 s12, s12, {WS_YT}')
        A('s_lshr_b32 s8, s5, 6'); A('s_lshl_b32 s8, s8, 1'); A('s_add_u32 s8, s8, s7'); A('s_lshl_b32 s8, s8, 13'); A('s_and_b32 s11, s5, 63'); A('s_lshl_b32 s11, s11, 7')
        A('s_add_u32 s11, s11, s8'); A(f's_add_u32 s11, s11, {FL_Y}')
        addr2 = a; a = []
        P0 = vXR; P1 = vXR + 8; U = vXR + 16; T = vXR + 20; Y = vXR + 24
        for rho in range(2):
            for x in range(2): A(f'ds_read_b128 {vr(P0+4*x,4)}, v{vGG} offset:{rho*2176 + 16*x}')
            for x in range(2): A(f'ds_read_b128 {vr(P1+4*x,4)}, v{vGG} offset:{16384 + rho*2176 + 16*x}')
            A(f'ds_read_b128 {vr(U,4)}, v{vGG+1} offset:{rho*1152}')
            for e in range(8): A(f'v_add_f32 v{P0+e}, v{P0+e}, v{P1+e}')
            for q in range(4):
                A(f'v_lshlrev_b32 v{T}, 16, v{U+q}'); A(f'v_and_b32 v{T+1}, s{sMASK}, v{U+q}')
                A(f'v_fmac_f32 v{P0+7-2*q}, s{sD}, v{T}'); A(f'v_fmac_f32 v{P0+6-2*q}, s{sD}, v{T+1}')
            for q in range(4): A(f'v_cvt_pk_bf16_f32 v{Y+4*rho+q}, v{P0+2*q}, v{P0+2*q+1}')
            A(f'buffer_store_dwordx4 {vr(Y+4*rho,4)}, v{vL16}, {srd(SWS)}, s12 offen offset:{1024*rho} sc1', tag='yst')
        return addr, wr, addr2, a

    def exch_write(self, p):
        o = []
        for j, (dt, gp, m) in enumerate(((0, 1, 2), (1, 0, 1), (1, 1, 3))):
            R = ACC2 + 32 * p + 16 * dt + 8 * gp
            for x in range(2): o.append(I(f'ds_write_b128 v{vE+j}, {vr(R+4*x,4)} offset:{(L_X1 if p else L_X0) + j*2048 + 1024*x}'))
        return o
    def exch_read(self, p):
        return [I(f'ds_read_b128 {vr(vXR+8*j+4*x,4)}, v{vE+3} offset:{(L_X1 if p else L_X0) + j*2048 + 1024*x}') for j in range(3) for x in range(2)]
    def exch_sum(self, p, dst):
        o = []; R = ACC2 + 32 * p
        for e in range(8): o.append(I(f'v_add_f32 v{vXR+e}, v{vXR+e}, v{vXR+8+e}'))
        for e in range(8): o.append(I(f'v_add_f32 v{dst+e}, v{R+e}, v{vXR+16+e}'))
        for e in range(8): o.append(I(f'v_add_f32 v{dst+e}, v{dst+e}, v{vXR+e}'))
        return o
    def final_addr(self):
        o = []; A = lambda t, **k: o.append(I(t, **k))
        for j, m in enumerate((2, 1, 3)):
            A(f's_xor_b32 s5, s{sW}, {m}'); A('s_mul_i32 s5, s5, 6144'); A(f'v_add_u32 v{vE+j}, s5, v{vL16}')
        A(f's_mul_i32 s5, s{sW}, 6144'); A(f'v_add_u32 v{vE+3}, s5, v{vL16}')
        return o
    def q_dma(self):
        o = []; A = lambda t, **k: o.append(I(t, **k))
        A(f's_lshl_b32 s5, s{sTB}, 16'); A(f's_lshl_b32 s6, s{sW}, 14'); A('s_add_u32 s5, s5, s6'); A(f's_lshl_b32 s6, s{sDB}, 7'); A('s_add_u32 s5, s5, s6')
        A(f's_lshr_b32 s6, s{sW4K}, 1'); A(f's_add_u32 m0, s6, {L_Q}')
        for n in range(2): A(f'buffer_load_dwordx4 v{vQ+n}, {srd(SX)}, s5 offen offset:{1024*n} lds', tag='q')
        return o
    def y_poll_addr(self):
        o = []; A = lambda t, **k: o.append(I(t, **k))
        A(f's_and_b32 s10, s{sW}, 1'); A('s_lshl_b32 s10, s10, 1'); A(f's_lshr_b32 s15, s{sW}, 1'); A('s_add_u32 s10, s10, s15')
        A(f'v_and_b32 v{vFl}, 15, v{vL}'); A(f'v_lshlrev_b32 v{vFl}, 7, v{vFl}')
        A(f's_lshl_b32 s14, s{sDB}, 1'); A(f's_lshr_b32 s15, s{sTB}, 4'); A('s_add_u32 s14, s14, s15'); A('s_lshl_b32 s14, s14, 13')
        A('s_lshl_b32 s15, s10, 11'); A('s_add_u32 s14, s14, s15'); A(f's_add_u32 s14, s14, {FL_Y}')
        return o
    def y_dma(self):
        o = []; A = lambda t, **k: o.append(I(t, **k))
        A(f'v_lshrrev_b32 v28, 3, v{vL}'); A('v_lshlrev_b32 v28, 12, v28'); A(f'v_and_b32 v29, 7, v{vL}'); A('v_lshl_add_u32 v28, v29, 4, v28')
        A(f'v_add_u32 v29, {8*4096 - 1024}, v28')
        A(f's_lshl_b32 s5, s{sDB}, 18'); A('s_lshl_b32 s6, s10, 16'); A('s_add_u32 s5, s5, s6'); A(f's_lshl_b32 s6, s{sTB}, 7'); A('s_add_u32 s5, s5, s6'); A(f's_add_u32 s5, s5, {WS_YT}')
        A('s_lshl_b32 s6, s10, 11'); A(f's_add_u32 m0, s6, {L_Y}')
        for n in range(2): A(f'buffer_load_dwordx4 v{28+n}, {srd(SWS)}, s5 offen offset:{1024*n} sc1 lds', tag='y')
        return o
    def g_poll_addr(self):
        return [I(f'v_and_b32 v{vFl}, 3, v{vL}'), I(f'v_lshlrev_b32 v{vFl}, 7, v{vFl}'), I(f's_lshl_b32 s14, s{sTB}, 9'), I(f's_add_u32 s14, s14, {FL_G}')]
    def g_loads(self):
        o = []; A = lambda t, **k: o.append(I(t, **k))
        A(f'v_and_b32 v28, 31, v{vL}'); A('v_lshlrev_b32 v28, 2, v28'); A(f's_lshl_b32 s5, s{sTB}, 8'); A(f's_add_u32 s5, s5, {WS_G}')
        for p in range(2): A(f'buffer_load_dword v{vGG+p}, v28, {srd(SWS)}, s5 offen offset:{128*p} sc1')
        return o
    def a_part(self):
        o = []; A = lambda t, **k: o.append(I(t, **k))
        Q = vXR + 24; Yv = vXR + 28; T = vXR + 24
        A(f'v_lshrrev_b32 v28, 5, v{vL}'); A(f'v_bfe_u32 v29, v{vL}, 2, 2'); A('v_lshl_or_b32 v28, v28, 2, v29'); A('v_lshlrev_b32 v28, 7, v28')
        A(f'v_bfe_u32 v29, v{vL}, 4, 1'); A('v_lshl_or_b32 v28, v29, 5, v28'); A(f'v_and_b32 v29, 3, v{vL}'); A('v_lshl_or_b32 v28, v29, 3, v28')
        A('s_lshl_b32 s6, s10, 11'); A(f's_add_u32 s6, s6, {L_Y}'); A('v_add_u32 v28, s6, v28')
        A(f'v_bfe_u32 v29, v{vL}, 1, 3'); A('s_lshl_b32 s6, s10, 1'); A('v_xor_b32 v29, s6, v29')
        A(f'v_and_b32 v30, 31, v{vL}'); A('v_lshlrev_b32 v30, 7, v30'); A(f'v_lshrrev_b32 v31, 5, v{vL}'); A('v_lshl_or_b32 v30, v31, 3, v30'); A(f'v_add_u32 v30, {L_Q}, v30')
        A('v_xor_b32 v31, 1, v29'); A('v_lshl_add_u32 v29, v29, 4, v30'); A('v_lshl_add_u32 v30, v31, 4, v30')
        o.append(WAITVM('y'))
        QY = 120
        GF = 31
        for p in range(2):
            for gq in range(2):
                A(f'ds_read_b64 {vr(QY+2*gq,2)}, v{29+gq} offset:{4096*p}')
                A(f'ds_read_b64_tr_b16 {vr(QY+4+2*gq,2)}, v28 offset:{1024*gq + 64*p}')
            A(f'v_lshlrev_b32 v{GF}, 16, v{vGG+p}'); A(f'v_and_b32 v{vGG+p}, s{sMASK}, v{vGG+p}')
            for gq in range(2):
                for h in range(2):
                    d = vGA + 8 * p + 4 * gq + 2 * h
                    q, y = QY + 2 * gq + h, QY + 4 + 2 * gq + h
                    A(f'v_lshlrev_b32 v{d}, 16, v{q}'); A(f'v_and_b32 v{d+1}, s{sMASK}, v{q}')
                    A(f'v_lshlrev_b32 v{q}, 16, v{y}'); A(f'v_and_b32 v{y}, s{sMASK}, v{y}')
                    A(f'v_mul_f32 v{d}, v{d}, v{q}'); A(f'v_mul_f32 v{d+1}, v{d+1}, v{y}')
                    A(f'v_mul_f32 v{d}, v{d}, v{GF}'); A(f'v_mul_f32 v{d+1}, v{d+1}, v{GF}')
        return o
    def out_addr(self):
        o = []; A = lambda t, **k: o.append(I(t, **k))
        A(f'v_and_b32 v28, 31, v{vL}'); A('v_lshlrev_b32 v28, 10, v28'); A(f'v_lshrrev_b32 v29, 5, v{vL}'); A(f'v_lshl_or_b32 v{vE+4}, v29, 4, v28')
        A(f's_lshl_b32 s15, s{sTB}, 16'); A(f's_lshl_b32 s5, s{sDB}, 7'); A('s_add_u32 s15, s15, s5'); A('s_lshl_b32 s5, s10, 5'); A('s_add_u32 s15, s15, s5')
        A('s_add_u32 s9, s15, 32768')
        return o
    def out_store(self, p, B):
        o = []; A = lambda t, **k: o.append(I(t, **k))
        G = vGA + 8 * p
        for e in range(8): A(f'v_fmac_f32 v{G+e}, v{vGG+p}, v{B+e}')
        for q in range(4): A(f'v_cvt_pk_bf16_f32 v{B+q}, v{G+2*q}, v{G+2*q+1}')
        A(f'v_permlane32_swap_b32 v{B}, v{B+2}'); A(f'v_permlane32_swap_b32 v{B+1}, v{B+3}')
        A(f'buffer_store_dwordx4 {vr(B,4)}, v{vE+4}, {srd(SOUT)}, s{15 if p == 0 else 9} offen')
        return o

    def tail(self):
        O = self.o
        W = Weave()
        cb = self.conv(W)
        gb = len(W.spine)
        for i in range(56):
            p, s = divmod(i, 28)
            for dt in range(2):
                acc = ACC2 + 32 * p + 16 * dt
                c = '0' if s == 0 else vr(acc, 16)
                W.mfma(I(f'v_mfma_f32_32x32x16_bf16 {vr(acc,16)}, {ar(aWD+8*s+4*dt,4)}, {vr(HR+4*(i%NHR),4)}, {c}',
                         expect=[(regs('a', aWD+8*s+4*dt, 4), f'wd{s}_{dt}'), (regs('v', HR+4*(i%NHR), 4), f'h{i}')]))
        cg = lambda st: cb + 2 * st
        g = W.place(self.h_epilogue(), cg(O['epi_start']))
        ge = g
        gs = lambda k: cb + O['wd0'] + (k * O['wdstep']) // 2
        g = 0
        for k in range(28 + O['wdlead']):
            if k >= O['wdlead']: g = max(g, W.place(stream('wd', self.wd_read(k - O['wdlead'])), max(g, gs(k)), per_gap=3, extra=12))
            if k < 28: g = W.place(stream('wd', self.wd_dma(k)), max(g, gs(k)), extra=12)
        assert g <= gb + 40, (g, gb)
        g = W.place(stream('hfl', [self.flag_store('hst', 13, SHS)]), ge + 2 * O['hflag_delay'], extra=12)
        assert g < cg(O['hpoll']), g
        W.place(stream('fa', self.final_addr() + self.q_dma()), g + 1)
        W.place(stream('hp', self.h_poll_addr() + [self.poll_issue(14, 'hp')]), cg(O['hpoll']))
        g = W.place(stream('hp', [self.poll_check(14)]), cg(O['hcheck']))
        addr, wr, addr2, post = [stream('ce', z) for z in self.conv_epilogue()]
        g2 = W.place(addr + addr2, g + 1)
        assert g2 < gb
        npre = 0; g = max(g + 1, cg(56))
        while g < gb and npre < NHR:
            W.place([self.h_load(npre)], g); npre += 1; g += 1
        for i in range(npre, 56):
            earliest = gb + 2 * (i - NHR) + 1 if i >= NHR else gb
            pos = max(earliest, gb + 2 * (i - npre))
            W.place([self.h_load(i)], pos)
        g = W.place(wr, gb + 1)
        g = W.place([[WAITLGKM0(), I('s_barrier')]], g + 2)
        g = W.place(post, g)
        W.place(self.stamp(5), g)
        g = W.place(stream('gp', self.g_poll_addr() + [self.poll_issue(14, 'gp')]), max(g, gb + O['gpoll']))
        g = W.place(stream('ce', [self.flag_store('yst', 11)]), g + 12)
        g = W.place(stream('gp', [self.poll_check(14)] + self.g_loads()), g + 1)
        g = W.place(stream('y', self.y_poll_addr() + [self.poll_issue(14, 'yp')]), max(g, gb + O['ypoll']))
        g = W.place(self.exch_write(0), max(g, gb + 56 + 3))
        g = W.place([[WAITLGKM0(), WAITVM('q'), I('s_barrier')]], g + 3)
        g = W.place(self.exch_read(0), g)
        g = W.place(self.exch_sum(0, vBS), g + 2)
        g = W.place(stream('y', [self.poll_check(14)] + self.y_dma()), max(g, gb + O['ycheck']))
        g = W.place(stream('y', self.out_addr()), g)
        g = W.place(stream('y', self.a_part()), max(g + 10, gb + 92))
        W.gaps[cb] += self.stamp(3); W.gaps[gb] += self.stamp(4)
        for k in range(8):
            W.gaps[cb + 16 * k] += self.stamp(k, 'conv'); W.gaps[gb + 14 * k] += self.stamp(k, 'g2')
        o = W.flatten()
        o += self.stamp(6)
        o += stream('y', self.out_store(0, vBS))
        o += self.exch_write(1) + [WAITLGKM0(), I('s_barrier')] + self.exch_read(1) + self.exch_sum(1, vBS) + stream('y', self.out_store(1, vBS))
        if O.get('fixend'):
            o += [RAW(f's_or_b32 s3, s2, s{sW}\ns_cmp_lg_u32 s3, 0\ns_cbranch_scc1 L_fe2\ns_add_u32 s0, s0, {O["fixend"]}\nL_fe:\ns_memrealtime s[6:7]\ns_waitcnt lgkmcnt(0)\ns_sub_u32 s6, s6, s0\ns_cmp_lt_i32 s6, 0\ns_cbranch_scc1 L_fe\nL_fe2:')]
        if O['prof']:
            o += self.stamp(7) + [DRAIN()] + self.stamp(8) + [I('s_waitcnt lgkmcnt(0)')]
            o += [I('s_lshl_b32 s5, s2, 2'), I(f's_add_u32 s5, s5, s{sW}'), I('s_lshl_b32 s5, s5, 6'), I(f's_add_u32 s5, s5, {WS_PROF}'), I('v_mov_b32 v28, 0'), I('s_mov_b64 exec, 1')]
            for k, r in enumerate(STAMPS):
                o += [I(f'v_mov_b32 v29, s{r}'), I(f'buffer_store_dword v29, v28, {srd(SWS)}, s5 offen offset:{4*k}')]
            o += [I('s_memrealtime s[6:7]'), I('s_waitcnt lgkmcnt(0)'), I('v_mov_b32 v29, s6'), I(f'buffer_store_dword v29, v28, {srd(SWS)}, s5 offen offset:40')]
            if O.get('dbgtime'):
                o += [I('v_not_b32 v30, s0'), I(f'global_atomic_umax v28, v30, {sp(P_DBG)} offset:16'), I(f'global_atomic_umax v28, v29, {sp(P_DBG)} offset:20')]
                for k, r in enumerate(STAMPS[:8]):
                    o += [I(f's_sub_u32 s6, s{r}, s1'), I('v_mov_b32 v31, s6'), I(f'global_atomic_umax v28, v31, {sp(P_DBG)} offset:{24+4*k}')]
            o += [I('v_mov_b32 v30, s0'), I(f'buffer_store_dword v30, v28, {srd(SWS)}, s5 offen offset:36'), I('v_mov_b32 v31, s1'), I(f'buffer_store_dword v31, v28, {srd(SWS)}, s5 offen offset:44')]
        return o

    def helper(self):
        O = self.o
        o = []; A = lambda t, **k: o.append(I(t, **k))
        A('L_helper:')
        A('s_and_b32 s8, s2, 7'); A('s_lshr_b32 s9, s2, 3')
        VB = 65 * 1088
        A(f'v_lshrrev_b32 v28, 3, v{vL}'); A(f'v_and_b32 v29, 7, v{vL}'); A('v_lshlrev_b32 v30, 10, v28'); A('v_lshl_add_u32 v32, v29, 4, v30')
        A('s_lshl_b32 s11, s9, 19'); A('s_lshl_b32 s13, s8, 7'); A('s_add_u32 s11, s11, s13')
        A(f's_lshl_b32 s12, s{sW}, 15'); A('s_add_u32 s12, s12, s11')
        A(f's_mul_i32 s10, s{sW}, {4*1088}')
        A('s_cmp_eq_u32 s9, 0'); A('s_cselect_b32 s13, 0x80000000, 0'); A('v_or_b32 v33, s13, v32')
        A('s_cselect_b32 s13, 0, 8192'); A('s_sub_u32 s13, s11, s13')
        A('v_lshlrev_b32 v30, 6, v28'); A('s_lshl_b32 s15, s8, 9'); A(f's_and_b32 s14, s{sW}, 1'); A('s_lshl_b32 s14, s14, 5'); A('s_add_u32 s15, s15, s14'); A('v_add_u32 v30, s15, v30')
        A('s_waitcnt lgkmcnt(0)')
        o += self.ws_base()
        if self.o['prof']: A('s_mov_b32 s0, s74'); A('s_mov_b32 s1, s76')
        o += self.mk_srd(SA, P_K, 0x200000) + self.mk_srd(SB, P_V, 0x200000)
        fl = O['ldkv']
        def dmas(sg):
            r = []
            for j in range(4):
                b = 16 * sg + j
                r.append([I(f's_add_u32 m0, s10, {(b+1)*1088}'), I(f's_add_u32 s14, s12, {b*8192}'),
                          I(f'buffer_load_dwordx4 v32, {srd(SA)}, s14 offen {fl} lds', tag=f'kv{sg}')])
                r.append([I(f's_add_u32 m0, s10, {VB + b*1088}'), I(f'buffer_load_dwordx4 v32, {srd(SB)}, s14 offen {fl} lds', tag=f'kv{sg}')])
            return r
        flat = lambda L: [y for x in L for y in (x if isinstance(x, list) else [x])]
        sk = self.lab('h0')
        A(f's_cmp_lg_u32 s{sW}, 0'); A(f's_cbranch_scc1 {sk}')
        o.append(RAW(f's_mov_b32 m0, 0\ns_nop 0\nbuffer_load_dwordx4 v33, {srd(SA)}, s13 offen {fl} lds'))
        A(f'{sk}:')
        o += flat(dmas(0))
        for i in range(2): A(f'global_load_dwordx4 {vr(64+4*i,4)}, v30, {sp(P_SK)} offset:{16*i}')
        A(f'global_load_dwordx4 {vr(72,4)}, v{vL16}, {sp(P_GW)}')
        o += self.mk_srd(SWS, P_WS, WS_SIZE) + self.mk_srd(SX, P_Q, 0x200000)
        sk = self.lab('np')
        A(f's_or_b32 s3, s2, s{sW}'); A('s_cmp_lg_u32 s3, 0'); A(f's_cbranch_scc1 {sk}')
        o.append(RAW(f'v_mov_b32 v28, {FL_KV}\nbuffer_load_dwordx2 v[24:25], v28, {srd(SWS)}, 0 offen sc1\ns_waitcnt vmcnt(0)\n'
                     'v_add_u32 v24, 0x9E3779B8, v24\nv_or_b32 v24, 1, v24\nv_add_u32 v25, 0x7F4A7C15, v25\nv_mov_b32 v28, 0\n'
                     f's_mov_b64 exec, 1\nglobal_store_dwordx2 v28, v[24:25], {sp(P_DBG)} sc1\ns_mov_b64 exec, -1'))
        A(f'{sk}:')
        o += flat(dmas(1))
        if O['codepf']: o += stream('pf', self.code_prefetch())
        o += self.stamp(0)
        A(f'v_lshrrev_b32 v28, 3, v{vL}'); A(f'v_and_b32 v29, 7, v{vL}')
        A(f's_lshr_b32 s3, s{sW}, 1'); A(f's_and_b32 s4, s{sW}, 1'); A('s_mul_i32 s5, s3, 8704'); A('s_lshl_b32 s6, s4, 3'); A('s_add_u32 s5, s5, s6')
        A('v_mul_u32_u24 v31, 1088, v29'); A('v_lshl_add_u32 v31, v28, 4, v31'); A('v_add_u32 v34, s5, v31'); A(f'v_add_u32 v35, {VB}, v34')
        A('v_lshlrev_b32 v30, 15, v28'); A('v_lshl_add_u32 v30, v29, 4, v30'); A('s_lshl_b32 s5, s4, 14'); A('s_lshl_b32 s6, s3, 7'); A('s_add_u32 s5, s5, s6'); A('v_add_u32 v36, s5, v30')
        A('s_lshl_b32 s7, s8, 18'); A('s_lshl_b32 s5, s9, 10'); A('s_add_u32 s7, s7, s5'); A(f's_add_u32 s7, s7, {WS_KVT}')
        S0 = 40; KR = 128; VR = 150; KF = 80; VF = 96; RS = 100; PO = 108; XR = 192
        for e in range(4):
            for j in range(4):
                src = 64 + 2 * e + (j >> 1)
                if j & 1: A(f'v_and_b32 v{S0+4*j+e}, s{sMASK}, v{src}')
                else: A(f'v_lshlrev_b32 v{S0+4*j+e}, 16, v{src}')
        def xloads():
            r = [[I(f's_lshl_b32 s15, s2, 16'), I(f's_lshl_b32 s5, s{sW}, 14'), I('s_add_u32 s15, s15, s5')]]
            for i in range(16):
                g = [I('s_add_u32 s15, s15, 4096')] if (i % 4 == 0 and i) else []
                r.append(g + [I(f'buffer_load_dwordx4 {vr(XR+4*i,4)}, v{vL16}, {srd(SX)}, s15 offen offset:{1024*(i&3)}')])
            return r
        for sg in range(4):
            o += [WAITVM(f'kv{sg}'), I('s_barrier')]
            c = []; C = lambda t, **k: c.append(I(t, **k))
            for i in range(-3, 8):
                off = (16*sg + 1) * 1088 + i * 128 if i >= 0 else 16*sg * 1088 + (8 + i) * 128
                C(f'ds_read_b64 {vr(KR+2*(i+3),2)}, v34 offset:{off}')
                if i >= 0: C(f'ds_read_b64 {vr(VR+2*i,2)}, v35 offset:{16*sg*1088 + i*128}')
            def unpackk(i):
                for m in range(2):
                    d = KF + 4 * ((i + 4) & 3) + 2 * m
                    C(f'v_lshlrev_b32 v{d}, 16, v{KR+2*(i+3)+m}'); C(f'v_and_b32 v{d+1}, s{sMASK}, v{KR+2*(i+3)+m}')
            for i in range(-3, 0): unpackk(i)
            for i in range(8):
                unpackk(i)
                for m in range(2):
                    C(f'v_lshlrev_b32 v{VF+2*m}, 16, v{VR+2*i+m}'); C(f'v_and_b32 v{VF+2*m+1}, s{sMASK}, v{VR+2*i+m}')
                R = RS + 4 * (i & 1)
                kf = lambda j, m: vr(KF + 4 * ((i - j + 4) & 3) + 2 * m, 2)
                for m in range(2): C(f'v_pk_mul_f32 {vr(R+2*m,2)}, {kf(3,m)}, {vr(S0+12+2*m,2)}')
                for j in (2, 1, 0):
                    for m in range(2): C(f'v_pk_fma_f32 {vr(R+2*m,2)}, {kf(j,m)}, {vr(S0+4*j+2*m,2)}, {vr(R+2*m,2)}')
                for m in range(2): C(f'v_pk_mul_f32 {vr(R+2*m,2)}, {vr(R+2*m,2)}, {vr(VF+2*m,2)}')
                if i & 1:
                    q = (7 - i) // 2
                    for e in range(4): C(f'v_cvt_pk_bf16_f32 v{PO+4*e+q}, v{RS+4+e}, v{RS+e}')
            for e in range(4):
                C(f's_add_u32 s6, s7, {e*4096 + 256*sg}')
                C(f'buffer_store_dwordx4 {vr(PO+4*e,4)}, v36, {srd(SWS)}, s6 offen sc1', tag='kvst')
            ld = dmas(sg + 2) if sg < 2 else (xloads()[:9] if sg == 2 else [])
            if sg == 3: ld = [[I('s_nop 0')]] + xloads()[9:]
            body = c[:19]; rest = c[19:]
            step = max(1, (len(rest) - 10) // max(1, len(ld)))
            k = 0
            for n, x in enumerate(rest):
                if n % step == 0 and k < len(ld): body += ld[k]; k += 1
                body.append(x)
            while k < len(ld): body += ld[k]; k += 1
            o += body
            if sg == 0: o += stream('nonce', self.nonce_issue())
            if sg == 1: o += stream('nonce', self.nonce_check())
        o += self.stamp(1)
        A('s_lshl_b32 s13, s8, 4'); A('s_lshl_b32 s14, s9, 2'); A('s_add_u32 s13, s13, s14'); A(f's_add_u32 s13, s13, s{sW}'); A('s_lshl_b32 s13, s13, 7'); A(f's_add_u32 s13, s13, {FL_KV}')
        o += stream('late', self.late_setup()) + stream('ssm', self.ssm_loads())
        o += stream('fl', self.flag_store('kvst', 13))
        o += self.stamp(2)
        Z = 40
        for i in range(16):
            R = XR + 4 * i
            A(f'v_dot2_f32_bf16 v{Z+i}, v{R}, v72, 0')
            for m in range(1, 4): A(f'v_dot2_f32_bf16 v{Z+i}, v{R+m}, v{72+m}, v{Z+i}')
        for sh in (8, 4, 2, 1):
            for i in range(16): A(f'v_add_f32_dpp v{Z+i}, v{Z+i}, v{Z+i} row_ror:{sh} row_mask:0xf bank_mask:0xf')
        A('s_mov_b32 s4, 0x00010001'); A('s_mov_b32 s5, 0x00010001'); A(f'v_mov_b32 v60, v{Z}')
        for i in range(1, 16):
            A('s_lshl_b64 s[4:5], s[4:5], 1'); A(f'v_cndmask_b32 v60, v60, v{Z+i}, s[4:5]')
        A('v_mov_b32 v61, v60'); A('v_permlane32_swap_b32 v60, v61'); A('v_add_f32 v60, v60, v61')
        A('v_mov_b32 v61, v60'); A('v_permlane16_swap_b32 v60, v61'); A('v_add_f32 v60, v60, v61')
        A('v_cvt_pk_bf16_f32 v60, v60, v60'); A(f'v_and_b32 v60, s{sMASK}, v60')
        A('v_mul_f32 v60, 0xbfb8aa3b, v60'); A('v_exp_f32 v60, v60'); A('v_add_f32 v60, 1.0, v60'); A('v_rcp_f32 v60, v60')
        A('v_cvt_pk_bf16_f32 v60, v60, v60'); A(f'v_and_b32 v60, s{sMASK}, v60'); A('v_sub_f32 v61, 1.0, v60'); A('v_cvt_pk_bf16_f32 v60, v60, v61')
        A(f'v_lshlrev_b32 v28, 2, v{vL}'); A('s_lshl_b32 s12, s2, 8'); A(f's_lshl_b32 s13, s{sW}, 6'); A('s_add_u32 s12, s12, s13'); A(f's_add_u32 s12, s12, {WS_G}')
        o += [I('s_mov_b64 exec, 0xffff'), I(f'buffer_store_dword v60, v28, {srd(SWS)}, s12 offen sc1', tag='gst'), I('s_mov_b64 exec, -1')]
        A('s_lshl_b32 s12, s2, 2'); A(f's_add_u32 s12, s12, s{sW}'); A('s_lshl_b32 s12, s12, 7'); A(f's_add_u32 s15, s12, {FL_G}')
        o += stream('kvp', self.kv_poll_addr() + [self.poll_issue(14, 'kvp')])
        o += [WAITLGKM0(), I('s_barrier')]
        o += stream('zero', self.zero_fill()) + stream('cop', self.copies_build()) + stream('stg', self.stage_setup())
        o += stream('fl', self.flag_store('gst', 15))
        o += stream('kvp', self.poll_check(14) + self.kv_loads()) + stream('uw', self.u_writes())
        o += self.mk_srd(SHS, P_WS, 0)
        A(f's_mov_b32 s{sHo0}, 0'); A(f's_mov_b32 s{sHo1}, 0'); A('s_mov_b32 s13, 0')
        o += [DRAIN(), I('s_nop 7'), I('s_branch L_join')]
        return flat(o)

    def build(self):
        flat = lambda L: [y for x in L for y in (x if isinstance(x, list) else [x])]
        main = self.prologue() + flat(self.gemm1()) + [I('L_join:')] + self.tail() + [I('L_end:'), I('s_endpgm')]
        main = flat(main)
        hel = [RESET()] + self.helper()
        allc = main + hel
        check_tags(allc)
        temps = set(regs('s', 3, 13)) | set(regs('v', 28, 4)) | {('scc', 0), ('vcc_lo', 0), ('m0', 0), ('v', vFl), ('v', vP), ('v', vP+1), ('v', vU0), ('v', vU1)}
        check_streams(allc, temps, allow={(None, 'hfl'), (None, 'dma'), (None, 'fl')})
        allc = insert_nops(insert_waits(allc))
        self.ins = allc
        hdr = open('cdna_kernels/' + NAME + '.s.ref').read().split('\n')
        head = [l for l in hdr if l.startswith(';') and '@launch' not in l and 'Override launch' not in l and 'grid=ceil' not in l]
        txt = '\n'.join(head) + '\n' + f'; @launch grid=(256,1,1) block=(256,1,1) lds={LDS_BYTES}\n'
        txt += f'.amdgcn_target "amdgcn-amd-amdhsa--gfx950"\n.text\n.globl {NAME}_kernel\n.p2align 12\n.type {NAME}_kernel,@function\n{NAME}_kernel:\n'
        txt += render(allc) + 'L_codeend:\n'
        txt += f'''.section .rodata,"a"
.p2align 6
.amdhsa_kernel {NAME}_kernel
  .amdhsa_next_free_vgpr 512
  .amdhsa_next_free_sgpr 102
  .amdhsa_accum_offset 256
  .amdhsa_group_segment_fixed_size 0
  .amdhsa_kernarg_size 112
  .amdhsa_user_sgpr_count 2
  .amdhsa_user_sgpr_kernarg_segment_ptr 1
  .amdhsa_system_sgpr_workgroup_id_x 1
  .amdhsa_float_denorm_mode_32 3
.end_amdhsa_kernel
'''
        return txt

if __name__ == '__main__':
    out = sys.argv[1]
    kw = {}
    for a in sys.argv[2:]:
        k, v = a.split('=')
        try: v = int(v)
        except ValueError: pass
        kw[k] = v
    open(out, 'w').write(Gen(**kw).build())
```

```python
import re

def _regs(tok):
    tok = tok.strip()
    tok = re.sub(r'^-', '', tok)
    tok = re.sub(r'^(abs|neg)\((.*)\)$', r'\2', tok)
    tok = tok.strip('|')
    m = re.fullmatch(r'([vas])(\d+)', tok)
    if m: return [(m.group(1), int(m.group(2)))]
    m = re.fullmatch(r'([vas])\[(\d+):(\d+)\]', tok)
    if m: return [(m.group(1), i) for i in range(int(m.group(2)), int(m.group(3)) + 1)]
    if tok in ('vcc', 'exec'): return [(tok + '_lo', 0), (tok + '_hi', 0)]
    if tok in ('vcc_lo', 'vcc_hi', 'exec_lo', 'exec_hi', 'm0', 'scc'): return [(tok, 0)]
    return []

TRANS = ('v_exp_f32', 'v_log_f32', 'v_rcp_f32', 'v_rsq_f32', 'v_sqrt_f32', 'v_sin_f32', 'v_cos_f32')

class Ins:
    __slots__ = ('text', 'op', 'kind', 'defs', 'uses', 'tag', 'expect', 'pseudo', 'arg', 'sgpr_const', 'dpp', 'wide_store', 'lds_dma', 'cost', 'note', 'stream')
    def __init__(self, text, tag=None, expect=None, pseudo=None, arg=None):
        self.text = text; self.tag = tag; self.expect = expect; self.pseudo = pseudo; self.arg = arg
        self.defs = []; self.uses = []; self.kind = 'pseudo' if pseudo else None
        self.dpp = False; self.wide_store = False; self.lds_dma = False; self.op = pseudo or ''
        self.cost = 0; self.note = None; self.stream = None
        if not pseudo: self._parse()
    def _parse(self):
        t = self.text.split(';')[0].strip()
        if t.endswith(':') or t.startswith('.'):
            self.kind = 'label'; self.op = t; return
        sp = t.split(None, 1)
        op = sp[0]; self.op = op
        rest = sp[1] if len(sp) > 1 else ''
        ops = [o.strip() for o in re.split(r',(?![^\[\(]*[\]\)])', rest)] if rest else []
        mods = ''
        if ops:
            last = ops[-1].split(None, 1)
            ops[-1] = last[0]
            mods = last[1] if len(last) > 1 else ''
        R = [_regs(o) for o in ops]
        flat = lambda L: [r for x in L for r in x]
        self.cost = 4
        if op.startswith('v_mfma'):
            self.kind = 'mfma'; self.defs = R[0]; self.uses = flat(R[1:]); self.cost = 8
            self.arg = (R[0], R[1], R[2], R[3])
        elif op.startswith('buffer_load') or op.startswith('global_load'):
            self.kind = 'vmem'; self.cost = 5
            if ' lds' in (' ' + mods) or op.startswith('global_load_lds'):
                self.lds_dma = True; self.uses = flat(R) + [('m0', 0)]
            else:
                self.defs = R[0]; self.uses = flat(R[1:])
        elif op.startswith('buffer_store') or op.startswith('global_store') or op.startswith('global_atomic'):
            self.kind = 'vmem'; self.uses = flat(R); self.cost = 5
            if op.endswith('x4') or op.endswith('x3'):
                self.wide_store = True
                self.arg = R[0] if op.startswith('buffer') else R[1]
        elif op.startswith('ds_read'):
            self.kind = 'ds'; self.defs = R[0]; self.uses = flat(R[1:]); self.cost = 5
        elif op.startswith('ds_write'):
            self.kind = 'ds'; self.uses = flat(R); self.cost = 5
        elif op.startswith('s_load') or op in ('s_memtime', 's_memrealtime'):
            self.kind = 'smem'; self.defs = R[0]; self.uses = flat(R[1:])
        elif op == 's_waitcnt': self.kind = 'wait'
        elif op == 's_nop': self.kind = 'nop'; self.arg = int(ops[0]) + 1
        elif op == 's_barrier': self.kind = 'barrier'
        elif op in ('s_endpgm', 's_setprio'): self.kind = 'salu'
        elif op.startswith('s_cbranch') or op == 's_branch':
            self.kind = 'branch'
            if 'scc' in op: self.uses = [('scc', 0)]
        elif op.startswith('s_cmp'):
            self.kind = 'salu'; self.uses = flat(R); self.defs = [('scc', 0)]
        elif op in ('s_setpc_b64',):
            self.kind = 'branch'; self.uses = flat(R)
        elif op in ('s_swappc_b64',):
            self.kind = 'branch'; self.defs = R[0]; self.uses = flat(R[1:])
        elif op.startswith('s_'):
            self.kind = 'salu'; self.defs = list(R[0]); self.uses = flat(R[1:])
            if op in ('s_addc_u32', 's_subb_u32') or op.startswith('s_cselect'): self.uses.append(('scc', 0))
            if not (op.startswith('s_mov') or op.startswith('s_cselect') or op.startswith('s_mul') or op.startswith('s_getpc') or op.startswith('s_getreg') or op.startswith('s_bfm')):
                self.defs.append(('scc', 0))
        elif op.startswith('v_'):
            self.kind = 'valu'
            self.defs = list(R[0]); self.uses = flat(R[1:])
            if op.startswith('v_permlane'):
                self.defs = R[0] + R[1]; self.uses = R[0] + R[1]
            if op.startswith('v_fmac') or op.startswith('v_dot2c') or op.startswith('v_writelane'): self.uses += R[0]
            if 'dpp' in op or 'row_' in mods or 'quad_perm' in mods or 'wave_' in mods:
                self.dpp = True; self.uses += R[0]
            if op in ('v_add_co_u32', 'v_addc_co_u32', 'v_sub_co_u32'):
                self.defs = R[0] + R[1]; self.uses = flat(R[2:])
            lit = any(re.fullmatch(r'0x[0-9a-fA-F]+|\d+', o) and int(o, 0) > 64 for o in ops[1:])
            vop3 = op in ('v_cvt_pk_bf16_f32', 'v_alignbyte_b32', 'v_alignbit_b32', 'v_fma_f32', 'v_add3_u32', 'v_lshl_add_u32', 'v_lshl_or_b32',
                          'v_and_or_b32', 'v_mad_u32_u24', 'v_perm_b32', 'v_dot2_f32_bf16', 'v_mul_lo_u32', 'v_accvgpr_read_b32', 'v_accvgpr_write_b32', 'v_bfe_u32') or op.startswith('v_pk_') or self.dpp
            self.cost = 5 if (lit or vop3) else 4
            if op in TRANS: self.cost = 8
        else:
            raise ValueError('cannot parse: ' + t)
        if self.kind in ('valu', 'vmem', 'ds', 'mfma'): self.uses = self.uses + [('exec_lo', 0), ('exec_hi', 0)]

def I(text, **kw): return Ins(text, **kw)
def WAITVM(tag): return Ins('', pseudo='waitvm', arg=tag)
def WAITLGKM0(): return Ins('', pseudo='waitlgkm0')
def DRAIN(): return Ins('', pseudo='drain')
def RAW(text, defs='', uses=''):
    x = Ins(text, pseudo='raw')
    x.defs = [r for t in defs.split() for r in _regs(t)]; x.uses = [r for t in uses.split() for r in _regs(t)]
    return x
def stream(name, items):
    for it in items:
        for x in (it if isinstance(it, list) else [it]):
            x.stream = name
    return items
def atomize(items):
    out = []
    for it in items:
        grp = list(it) if isinstance(it, list) else [it]
        need = set()
        d = set()
        for x in grp:
            need |= {r for r in x.uses if r[0] in ('scc', 'vcc_lo') and r not in d}
            d |= set(x.defs)
        while need and out:
            prev = out.pop(); grp = prev + grp
            need -= {r for x in prev for r in x.defs}
        out.append(grp)
    return out
def check_streams(ins, temps, allow=()):
    last = {}
    for x in ins:
        if x.pseudo == 'reset': last = {}
        for r in x.uses:
            if x.kind == 'label': break
            if r in temps and r in last and last[r].stream != x.stream and (last[r].stream, x.stream) not in allow and r not in x.defs[:0]:
                raise AssertionError(f'temp {r} used by "{x.text}" [{x.stream}] was last written by "{last[r].text}" [{last[r].stream}]')
        for r in x.defs:
            if r in temps: last[r] = x
def NEED(rs):
    x = Ins('', pseudo='need'); x.uses = list(rs); return x
def RESET(): return Ins('', pseudo='reset')

def insert_waits(ins):
    out = []
    vm = []
    lg = []
    sm = set()
    def emit_wait(v=None, l=None):
        parts = []
        if v is not None: parts.append(f'vmcnt({min(v, 63)})')
        if l is not None: parts.append(f'lgkmcnt({min(l, 15)})')
        out.append(Ins('s_waitcnt ' + ' '.join(parts)))
    for x in ins:
        if x.pseudo == 'waitvm':
            tags = x.arg if isinstance(x.arg, (list, tuple, set)) else [x.arg]
            idx = max((i for i, (d, t) in enumerate(vm) if t in tags), default=-1)
            if idx >= 0:
                emit_wait(v=len(vm) - 1 - idx); del vm[:idx + 1]
            continue
        if x.pseudo == 'waitlgkm0':
            if lg or sm: emit_wait(l=0); lg.clear(); sm.clear()
            continue
        if x.pseudo == 'drain':
            emit_wait(v=0, l=0); vm.clear(); lg.clear(); sm.clear(); continue
        if x.pseudo == 'reset':
            vm.clear(); lg.clear(); sm.clear(); out.append(x); continue
        if (x.pseudo and x.pseudo != 'need') or x.kind == 'label':
            out.append(x); continue
        touched = set(x.uses) | set(x.defs)
        nv = nl = None
        idx = max((i for i, (d, t) in enumerate(vm) if d & touched), default=-1)
        if idx >= 0: nv = len(vm) - 1 - idx; del vm[:idx + 1]
        if sm & touched:
            nl = 0; lg.clear(); sm.clear()
        else:
            idx = max((i for i, d in enumerate(lg) if d & touched), default=-1)
            if idx >= 0: nl = len(lg) - 1 - idx; del lg[:idx + 1]
        if x.kind == 'ds' and len(lg) >= 15 and (nl is None):
            nl = 14; del lg[:len(lg) - 14]
        if x.kind == 'vmem' and len(vm) >= 62 and (nv is None):
            nv = 61; del vm[:len(vm) - 61]
        if nv is not None or nl is not None: emit_wait(nv, nl)
        if x.pseudo == 'need': continue
        out.append(x)
        if x.kind == 'vmem': vm.append((set(x.defs), x.tag))
        elif x.kind == 'ds': lg.append(set(x.defs))
        elif x.kind == 'smem' and not x.note == 'stamp': sm |= set(x.defs)
        elif x.kind == 'wait':
            m = re.search(r'vmcnt\((\d+)\)', x.text)
            if m:
                n = int(m.group(1))
                if len(vm) > n: del vm[:len(vm) - n]
            m = re.search(r'lgkmcnt\((\d+)\)', x.text)
            if m:
                n = int(m.group(1))
                if len(lg) > n: del lg[:len(lg) - n]
                if n == 0: sm.clear()
    return out

def states(x):
    if x.kind == 'nop': return x.arg
    if x.kind in ('label', 'pseudo'): return 0
    return 1

def isv(r): return r[0] in ('v', 'a')
def iss(r): return r[0] in ('s', 'vcc_lo', 'vcc_hi')

def insert_nops(ins):
    out = []
    hist = []
    pos = 0
    for x in ins:
        if x.pseudo == 'reset': hist = []; out.append(x); continue
        if x.pseudo or x.kind == 'label': out.append(x); continue
        need = 0
        U = set(x.uses); D = set(x.defs)
        for (p, pp) in reversed(hist):
            dist = pos - pp - 1
            if dist > 20: break
            req = 0
            PD = set(p.defs); PU = set(p.uses)
            if p.kind == 'valu':
                vd = {r for r in PD if isv(r)}; sd = {r for r in PD if iss(r)}
                if x.kind == 'mfma' and vd & U: req = max(req, 2)
                if x.kind == 'valu':
                    if x.op.startswith('v_permlane') and vd & U: req = max(req, 2)
                    if x.dpp and vd & U: req = max(req, 2)
                    if x.op.startswith('v_readfirstlane') or x.op.startswith('v_readlane'):
                        if vd & U: req = max(req, 1)
                        if x.op.startswith('v_readlane') and sd & U: req = max(req, 4)
                    if sd & U: req = max(req, 2)
                    if p.op in TRANS and vd & U: req = max(req, 1)
                if p.op.startswith('v_dot2') and vd & (U | D) and not (x.op == p.op and set(vd) & set(x.uses[-3:-2])): req = max(req, 3)
                if x.kind == 'vmem' and sd & U: req = max(req, 5)
                if x.kind in ('salu', 'branch') and sd & U: req = max(req, 1)
            if p.kind == 'salu' and ('m0', 0) in PD and x.lds_dma: req = max(req, 1)
            if p.kind == 'mfma':
                n = 12 if '32x32' in p.op else 8
                if x.kind == 'mfma':
                    d, a, b, c = x.arg
                    if PD & (set(a) | set(b)): req = max(req, n)
                    elif PD & set(c) and list(c) != list(p.defs): req = max(req, n - 2)
                    elif PD & set(d) and not (PD & set(c)): req = max(req, n)
                elif x.kind in ('valu', 'vmem', 'ds') and PD & (U | D): req = max(req, n)
                pc = set(p.arg[3])
                if x.kind == 'valu' and pc & D: req = max(req, n - 5)
            if p.wide_store and set(p.arg) & D: req = max(req, 2 if x.kind == 'valu' else 1)
            need = max(need, req - dist)
        while need > 0:
            k = min(need, 16); nop = Ins(f's_nop {k - 1}'); out.append(nop); hist.append((nop, pos)); pos += k; need -= k
        out.append(x); hist.append((x, pos)); pos += states(x)
        if len(hist) > 64: hist = hist[-40:]
    return out

def check_tags(ins):
    cur = {}
    for x in ins:
        if x.pseudo == 'reset': cur = {}
        if x.expect:
            for regs, tag in x.expect:
                for r in regs:
                    if cur.get(r) != tag:
                        raise AssertionError(f'tag mismatch at "{x.text}": {r} holds {cur.get(r)} expected {tag}')
        for r in x.defs:
            if x.kind == 'mfma' and x.tag is None and r in cur and list(x.arg[3]) == list(x.defs): continue
            cur[r] = x.tag

def render(ins):
    o = []
    for x in ins:
        if x.pseudo in ('reset',): continue
        if x.kind == 'label': o.append(x.text)
        else: o.append('    ' + x.text.replace('\n', '\n    '))
    return '\n'.join(o) + '\n'

class Weave:
    def __init__(self, budget=23):
        self.spine = []
        self.gaps = []
        self.budget = budget
    def mfma(self, ins, pre=None):
        self.spine.append((list(pre or []), ins)); self.gaps.append([]); return len(self.spine) - 1
    def used(self, g):
        c = sum(x.cost for x in self.gaps[g])
        if g + 1 < len(self.spine): c += sum(4 if (x.pseudo or x.kind == 'barrier') else x.cost for x in self.spine[g + 1][0])
        return c
    def place(self, items, start, end=None, per_gap=99, extra=0):
        g = start; n = 0
        items = atomize(items)
        last = len(self.spine) - 1 if end is None else min(end, len(self.spine) - 1)
        for it in items:
            grp = it if isinstance(it, list) else [it]
            c = sum(4 if x.pseudo else x.cost for x in grp)
            big = c > 12
            while g < last and (n >= per_gap or (not big and self.used(g) + c > self.budget + extra and self.used(g) > 0) or (big and self.used(g) > self.budget - 8 + extra)):
                g += 1; n = 0
            self.gaps[g].extend(grp); n += 1
        return g
    def flatten(self):
        o = []
        for (pre, m), gap in zip(self.spine, self.gaps):
            o.extend(pre)
            if m is not None: o.append(m)
            o.extend(gap)
        return o
```

```python
import sys, json
from asmlib import *

NAME = 'gated_mix__ssm_conv_h3__glu_gated_reglu__prompt'
WS_H   = 0
WS_KVT = 0x900000
WS_YT  = 0xB00000
WS_G   = 0xD00000
FL_H   = 0xD40000
FL_KV  = 0xD60000
FL_G   = 0xD68000
FL_Y   = 0xD80000
WS_PROF= 0xD20000
WS_SIZE= 0xE00000
L_W = 0
L_X = 81920
L_C = 32768
L_S = 98304
L_X0 = 0
L_X1 = 32768
L_Q = 147456
L_Y = 155648
LDS_BYTES = 163840
CSTR = 2368
UOFF = 9280

P_Q, P_K, P_V, P_SK, P_SSM, P_D, P_BX, P_WG, P_WU, P_WD, P_GW, P_OUT, P_DBG, P_WS = [16 + 2 * i for i in range(14)]
SX, SA, SB, SWS, SHS, SSM, SOUT = 44, 48, 52, 56, 60, 64, 68
sN = 72
sG = 74
sW, sW4K, sC0, sXb, sWb, sWo, sXo, sHo0, sHo1, sTB, sDB, sMASK, sSPIN, sD = range(88, 102)
STAMPS = [28, 30, 32, 24, 26, 38, 40, 42, 34]
sPW, sPX = 16, 20
def srd(n): return f's[{n}:{n+3}]'
def sp(n): return f's[{n}:{n+1}]'
def vr(n, k): return f'v[{n}:{n+k-1}]' if k > 1 else f'v{n}'
def ar(n, k): return f'a[{n}:{n+k-1}]'
def regs(t, n, k): return [(t, i) for i in range(n, n + k)]
vL, vL16 = 0, 1
vX, vW, vA, vB = 2, 6, 10, 14
vCA, vCB, vG0, vG1, vHl, vFl, vP, vN = 18, 19, 20, 21, 22, 23, 24, 26
vT = 28
vS = 2
vR0, vR1 = 20, 21
SWD = SSM; sSB = sXb
vQ = 12
vGW = 144 - 144 + 98; vGX = 102
vGL = 116
FA = [32, 56]; FB = [48, 72]
vD = 80; vCT = 98; vU0 = 110; vU1 = 111; vKV = 112
ACC1 = 128
CA = 32; CBR = 56
ACC2 = 32
HR = 160; NHR = 24
vBS = 128; vGA = 136; vGG = 152; vE = 154
vXR = 96
aWD = 0; aCV = 224

DEF = dict(prof=0, E=2, dma_gap=1, p_nonce=6, p_ssm=8, nA=44, wdgap=4, hflag=24, hpoll=40, hcheck=52,
           k1=7, a0=-35, a1=11, b0=1, b1=10, lag=24, c0=14, sleep=4, hrate=2,
           yflag=16, ypoll=68, ycheck=88, apart=100, gpoll=6, ldx='', ldw='', ldkv='nt', ldwd='', ldssm='nt', codepf=1, spin=200000, rot2='dx')

class Gen:
    def __init__(self, **kw):
        self.o = dict(DEF); self.o.update(kw)
        self.nlab = 0
        self.nstamp = 0
    def lab(self, base):
        self.nlab += 1; return f'L_{base}_{self.nlab}'
    def stamp(self, k, st='std'):
        if not self.o['prof'] or (self.o.get('stampset', 'std') != st and k < 8): return []
        x = I(f's_memtime {sp(STAMPS[k])}'); x.note = 'stamp'; return [x]
    def mk_srd(self, d, p, size, bias=0):
        o = []
        if bias:
            o += [I(f's_sub_u32 s{d}, s{p}, {bias}'), I(f's_subb_u32 s{d+1}, s{p+1}, 0')]
        else:
            o += [I(f's_mov_b64 {sp(d)}, {sp(p)}')]
        o += [I(f's_mov_b32 s{d+2}, {size + bias}'), I(f's_mov_b32 s{d+3}, 0x20000')]
        return o
    def ws_base(self):
        b = self.o.get('wsbase', 0) << 20
        return [I(f's_add_u32 s{P_WS}, s{P_WS}, {b}'), I(f's_addc_u32 s{P_WS+1}, s{P_WS+1}, 0')] if b else []
    def poll_issue(self, soff_reg, tag):
        return I(f'buffer_load_dwordx2 {vr(vP,2)}, v{vFl}, {srd(SWS)}, s{soff_reg} offen sc1', tag=tag)
    def poll_check(self, soff_reg):
        ok = self.lab('ok'); lp = self.lab('lp')
        if self.o.get('nopoll'): return [I(f'v_cmp_eq_u64 vcc, {sp(sN)}, {vr(vP,2)}')]
        return [I(f'v_cmp_eq_u64 vcc, {sp(sN)}, {vr(vP,2)}'), I('s_cmp_eq_u64 vcc, exec'), I(f's_cbranch_scc1 {ok}'),
                RAW(f's_mov_b32 s{sSPIN}, 0\n{lp}:\nbuffer_load_dwordx2 {vr(vP,2)}, v{vFl}, {srd(SWS)}, s{soff_reg} offen sc1\ns_waitcnt vmcnt(0)\n'
                    f'v_cmp_eq_u64 vcc, {sp(sN)}, {vr(vP,2)}\ns_add_u32 s{sSPIN}, s{sSPIN}, 1\ns_nop 1\ns_cmp_eq_u64 vcc, exec\ns_cbranch_scc1 {ok}\n'
                    f's_sleep {self.o["sleep"]}\ns_cmp_lt_u32 s{sSPIN}, {self.o["spin"]}\ns_cbranch_scc1 {lp}', defs=f'vcc scc', uses=f's{soff_reg} v{vFl}'),
                I(f'{ok}:')]
    def nonce_issue(self):
        return [I(f'v_mov_b32 v{vT}, 0'), I(f'global_load_dwordx2 {vr(vN,2)}, v{vT}, {sp(P_DBG)} sc1', tag='nonce')]
    def nonce_check(self):
        ok = self.lab('nok'); lp = self.lab('nlp')
        return [I(f'v_cmp_ne_u32 vcc, 0, v{vN}'), I('s_cmp_eq_u64 vcc, exec'), I(f's_cbranch_scc1 {ok}'),
                RAW(f's_mov_b32 s{sSPIN}, 0\nv_mov_b32 v{vT}, 0\n{lp}:\nglobal_load_dwordx2 {vr(vN,2)}, v{vT}, {sp(P_DBG)} sc1\ns_waitcnt vmcnt(0)\n'
                    f'v_cmp_ne_u32 vcc, 0, v{vN}\ns_add_u32 s{sSPIN}, s{sSPIN}, 1\ns_nop 1\ns_cmp_eq_u64 vcc, exec\ns_cbranch_scc1 {ok}\n'
                    f's_sleep {self.o["sleep"]}\ns_cmp_lt_u32 s{sSPIN}, {self.o["spin"]}\ns_cbranch_scc1 {lp}', defs=f'vcc scc v{vT}'),
                I(f'{ok}:'), I(f'v_readfirstlane_b32 s{sN}, v{vN}'), I(f'v_readfirstlane_b32 s{sN+1}, v{vN+1}')]
    def flag_store(self, tag, soff_reg, srdn=SWS):
        return [I(f'v_mov_b32 v{vT}, 0'), WAITVM(tag), I('s_mov_b64 exec, 1'),
                I(f'buffer_store_dwordx2 {vr(vN,2)}, v{vT}, {srd(srdn)}, s{soff_reg} offen sc1'), I('s_mov_b64 exec, -1')]

    def prologue(self):
        o = []; A = lambda t, **k: o.append(I(t, **k))
        A('s_cmp_ge_u32 s2, 256'); A('s_cbranch_scc1 L_end')
        if self.o['prof']: A('s_memrealtime s[74:75]'); A('s_memtime s[76:77]')
        if self.o.get('delay'):
            o.append(RAW(f's_mov_b32 s3, 0\nL_delay:\ns_nop 15\ns_nop 15\ns_nop 15\ns_nop 15\ns_add_u32 s3, s3, 1\ns_cmp_lt_u32 s3, {self.o["delay"]}\ns_cbranch_scc1 L_delay'))
        A('s_load_dwordx16 s[16:31], s[0:1], 0'); A('s_load_dwordx8 s[32:39], s[0:1], 64'); A('s_load_dwordx4 s[40:43], s[0:1], 96')
        A(f'v_lshrrev_b32 v1, 6, v0'); A(f'v_and_b32 v{vL}, 63, v0'); A(f'v_readfirstlane_b32 s{sW}, v1')
        A(f'v_lshlrev_b32 v{vL16}, 4, v{vL}')
        A(f's_lshl_b32 s{sW4K}, s{sW}, 12')
        A(f's_mov_b32 s{sMASK}, 0xffff0000')
        A('s_and_b32 s3, s2, 7'); A('s_lshr_b32 s4, s2, 3')
        A('s_and_b32 s5, s3, 3'); A('s_lshr_b32 s6, s3, 2')
        A('s_lshl_b32 s7, s5, 3'); A('s_lshl_b32 s8, s6, 2'); A('s_add_u32 s7, s7, s8'); A('s_and_b32 s8, s4, 3')
        A(f's_add_u32 s{sTB}, s7, s8'); A(f's_lshr_b32 s{sDB}, s4, 2')
        A('s_cmp_lt_u32 s2, 32'); A('s_cbranch_scc1 L_helper')
        return o

    def gemm_prologue(self):
        o = []; A = lambda t, **k: o.append(I(t, **k))
        A('s_sub_u32 s4, s4, 4'); A('s_and_b32 s7, s4, 3'); A('s_lshr_b32 s8, s4, 2')
        A('s_lshl_b32 s9, s5, 2'); A('s_add_u32 s9, s9, s7')
        A('s_mul_i32 s10, s6, 7'); A('s_add_u32 s10, s10, s8')
        A('s_lshl_b32 s11, s5, 1'); A('s_add_u32 s11, s11, s6')
        if self.o.get('norot'): A(f's_mov_b32 s{sC0}, 0')
        else: A(f's_and_b32 s{sC0}, s11, 7')
        A(f's_lshl_b32 s{sXb}, s9, 17'); A(f's_lshl_b32 s11, s{sW}, 15'); A(f's_add_u32 s{sXb}, s{sXb}, s11')
        A(f's_mul_i32 s{sWb}, s{sW}, {8*3584}'); A('s_lshl_b32 s11, s10, 8'); A(f's_add_u32 s{sWb}, s{sWb}, s11')
        A(f'v_lshrrev_b32 v28, 3, v{vL}'); A('v_lshlrev_b32 v28, 10, v28')
        A(f'v_and_b32 v29, 7, v{vL}'); A(f'v_lshrrev_b32 v30, 4, v{vL}'); A('v_xor_b32 v29, v29, v30'); A('v_lshl_add_u32 v28, v29, 4, v28')
        A(f'v_lshrrev_b32 v29, 4, v{vL}'); A('v_mul_u32_u24 v30, 3584, v29')
        A(f'v_bfe_u32 v31, v{vL}, 1, 3'); A('v_lshlrev_b32 v29, 1, v29'); A('v_xor_b32 v31, v31, v29')
        A(f'v_and_b32 v29, 1, v{vL}'); A('v_lshlrev_b32 v29, 4, v29'); A('v_lshl_or_b32 v31, v31, 5, v29')
        for k in range(4):
            A(f's_add_u32 s11, s8, {k}'); A('s_and_b32 s11, s11, 3')
            A('s_and_b32 s12, s11, 1'); A('s_lshl_b32 s12, s12, 6'); A('s_lshl_b32 s13, s11, 13')
            A(f'v_xor_b32 v29, s12, v28'); A(f'v_add_u32 v{vX+k}, s13, v29')
            A(f's_add_u32 s11, s7, {k}'); A('s_and_b32 s11, s11, 3')
            A('s_and_b32 s12, s11, 1'); A('s_lshl_b32 s12, s12, 5'); A('s_lshr_b32 s13, s11, 1'); A(f's_mul_i32 s13, s13, {4*3584}')
            A(f'v_xor_b32 v29, s12, v31'); A(f'v_add3_u32 v{vW+k}, v29, v30, s13')
        A(f's_lshl_b32 s{sXo}, s{sC0}, 7'); A(f's_add_u32 s{sXo}, s{sXo}, s{sXb}')
        A(f's_mul_i32 s{sWo}, s{sC0}, {64*3584}'); A(f's_add_u32 s{sWo}, s{sWo}, s{sWb}')
        A(f's_and_b32 s11, s{sW}, 1'); A(f's_lshr_b32 s12, s{sW}, 1')
        A('s_lshl_b32 s13, s9, 1'); A('s_add_u32 s13, s13, s11')
        A('s_mul_i32 s14, s13, 112'); A('s_lshl_b32 s15, s10, 3'); A('s_add_u32 s14, s14, s15'); A('s_lshl_b32 s15, s12, 2'); A('s_add_u32 s14, s14, s15')
        A(f's_lshl_b32 s{sHo0}, s14, 11'); A(f's_add_u32 s{sHo1}, s{sHo0}, 4096')
        A('s_mul_i32 s13, s13, 28'); A('s_lshl_b32 s14, s10, 1'); A('s_add_u32 s13, s13, s14'); A('s_add_u32 s13, s13, s12'); A('s_lshl_b32 s13, s13, 7')
        A(f's_add_u32 s13, s13, {FL_H}')
        o.append(WAITLGKM0())
        o += self.ws_base()
        if self.o['prof']: A('s_mov_b32 s0, s74'); A('s_mov_b32 s1, s76')
        o += self.mk_srd(SX, P_Q, 0x200000)
        A('s_and_b32 s11, s7, 1'); A('s_cmp_eq_u32 s11, 0')
        A(f's_cselect_b64 {sp(SA)}, {sp(P_WG)}, {sp(P_WU)}'); A(f's_cselect_b64 {sp(SB)}, {sp(P_WU)}, {sp(P_WG)}')
        for d in (SA, SB): A(f's_mov_b32 s{d+2}, {512*3584}'); A(f's_mov_b32 s{d+3}, 0x20000')
        for k in range(4):
            A(f's_add_u32 s11, s7, {k}'); A('s_and_b32 s11, s11, 3'); A('s_lshl_b32 s11, s11, 10'); A(f's_add_u32 s{sPW+k}, s11, s{sW4K}')
            A(f's_add_u32 s11, s8, {k}'); A('s_and_b32 s11, s11, 3'); A('s_lshl_b32 s11, s11, 10'); A(f's_add_u32 s{sPX+k}, s11, s{sW4K}')
        return [x for x in o if x is not None]

    def dma_x(self, c, ks, so):
        fl = self.o['ldx']
        return [[I(f's_add_u32 m0, s{sPX+k}, {L_X + (c % 3) * 16384}'), I(f'buffer_load_dwordx4 v{vX+k}, {srd(SX)}, s{so} offen {fl} lds', tag=f'x{c}')] for k in ks]
    def dma_w(self, H, ks, so):
        fl = self.o['ldw']
        return [[I(f's_add_u32 m0, s{sPW+k}, {L_W + ((H + 1) % 5) * 16384}'), I(f'buffer_load_dwordx4 v{vW+k}, {srd(SB if k & 1 else SA)}, s{so} offen {fl} lds', tag=f'w{H}')] for k in ks]
    def off_w(self, H, d):
        o = [I(f's_add_u32 s{d}, s{sC0}, {H>>1}'), I(f's_and_b32 s{d}, s{d}, 7'), I(f's_mul_i32 s{d}, s{d}, {64*3584}'), I(f's_add_u32 s{d}, s{d}, s{sWb}')]
        if H & 1: o.append(I(f's_add_u32 s{d}, s{d}, {32*3584}'))
        return o
    def off_x(self, c, d):
        return [I(f's_add_u32 s{d}, s{sC0}, {c}'), I(f's_and_b32 s{d}, s{d}, 7'), I(f's_lshl_b32 s{d}, s{d}, 7'), I(f's_add_u32 s{d}, s{d}, s{sXb}')]

    def gemm_addr(self):
        o = []; A = lambda t, **k: o.append(I(t, **k))
        A(f's_lshr_b32 s3, s{sW}, 1'); A('s_lshl_b32 s3, s3, 2')
        A(f'v_bfe_u32 v28, v{vL}, 2, 2')
        A(f'v_bfe_u32 v29, v{vL}, 1, 1')
        A('v_lshl_or_b32 v30, v28, 1, v29')
        A('v_lshlrev_b32 v28, 8, v28'); A('v_lshl_or_b32 v28, v29, 10, v28')
        A(f'v_lshrrev_b32 v29, 5, v{vL}'); A('v_lshl_or_b32 v28, v29, 12, v28')
        A(f'v_bfe_u32 v29, v{vL}, 4, 1'); A('v_lshl_or_b32 v28, v29, 4, v28')
        A(f'v_and_b32 v29, 1, v{vL}'); A('v_lshl_or_b32 v28, v29, 3, v28')
        A('v_xor_b32 v30, s3, v30')
        for a in range(4):
            A(f'v_xor_b32 v29, {a}, v30'); A(f'v_lshl_or_b32 v{vA+a}, v29, 5, v28')
        A(f's_and_b32 s3, s{sW}, 1'); A('s_lshl_b32 s3, s3, 13'); A(f's_add_u32 s3, s3, {L_X}')
        A(f'v_and_b32 v28, 31, v{vL}'); A('v_lshlrev_b32 v28, 7, v28'); A('v_add_u32 v28, s3, v28')
        A(f'v_bfe_u32 v29, v{vL}, 1, 3'); A(f'v_lshrrev_b32 v30, 5, v{vL}'); A('v_xor_b32 v29, v29, v30')
        for s in range(4):
            A(f'v_xor_b32 v30, {2*s}, v29'); A(f'v_lshl_add_u32 v{vB+s}, v30, 4, v28')
        return o

    def frag_reads(self, S):
        st = S & 1; H = S >> 1; c = S >> 2
        fa, fb = FA[st], FB[st]
        wo = L_W + ((H + 1) % 5) * 16384 + st * 8192
        xo = (c % 3) * 16384
        def rb(b): return I(f'ds_read_b128 {vr(fb+4*b,4)}, v{vB+(S&3)} offset:{xo + 4096*b}', tag=f'B{S}_{b}')
        def ra(a): return [I(f'ds_read_b64_tr_b16 {vr(fa+4*a+2*j,2)}, v{vA+a} offset:{wo + 2048*j}', tag=f'A{S}_{a}') for j in range(2)]
        pre = []
        hi = (H + 1) % 5 == 4
        if hi: wo -= 65536
        if st == 0 and hi: pre = [I(f'v_add_u32 v{vA+a}, 0x10000, v{vA+a}') for a in range(4)]
        if st == 0 and H > 0 and H % 5 == 4: pre = [I(f'v_subrev_u32 v{vA+a}, 0x10000, v{vA+a}') for a in range(4)]
        return [rb(0)] + pre + ra(0) + [rb(1)] + ra(1) + ra(2) + ra(3)

    def late_setup(self):
        o = []; A = lambda t, **k: o.append(I(t, **k))
        o += self.mk_srd(SWS, P_WS, WS_SIZE) + self.mk_srd(SOUT, P_OUT, 0x200000)
        A(f's_lshr_b32 s5, s{sW}, 1'); A('s_lshl_b32 s6, s2, 1'); A('s_add_u32 s5, s5, s6')
        A('s_lshl_b32 s6, s5, 12')
        A(f's_add_u32 s{SSM}, s{P_SSM}, s6'); A(f's_addc_u32 s{SSM+1}, s{P_SSM+1}, 0'); A(f's_mov_b32 s{SSM+2}, 4096'); A(f's_mov_b32 s{SSM+3}, 0x20000')
        A('s_lshl_b32 s6, s2, 2'); A(f'v_mov_b32 v{vT}, s6')
        A(f'global_load_dword v{vT+1}, v{vT}, {sp(P_D)}', tag='dval')
        A(f's_lshl_b32 s6, s{sW}, 14'); A(f's_add_u32 s6, s6, {L_C}')
        A(f'v_and_b32 v30, 3, v{vL}'); A(f'v_mul_u32_u24 v30, {CSTR}, v30')
        A(f'v_and_b32 v31, 28, v{vL}'); A('v_lshl_add_u32 v30, v31, 1, v30')
        A(f'v_lshrrev_b32 v31, 5, v{vL}'); A('v_lshlrev_b32 v31, 4, v31')
        A('v_sub_u32 v30, v30, v31'); A('s_add_u32 s7, s6, 16'); A(f'v_add_u32 v{vCA}, s7, v30')
        A(f'v_and_b32 v30, 31, v{vL}'); A('v_mul_u32_u24 v30, 144, v30'); A(f's_add_u32 s7, s6, {UOFF}'); A(f'v_add3_u32 v{vCB}, v30, v31, s7')
        A(f's_mul_i32 s9, s{sTB}, {112*2048}'); A(f'v_add_u32 v{vHl}, s9, v{vL16}')
        r2 = self.o['rot2']
        A('s_mov_b32 s7, 0')
        if 'd' in r2: A(f's_mul_i32 s8, s{sDB}, 7'); A('s_add_u32 s8, s8, 2'); A('s_lshr_b32 s7, s8, 2')
        if 't' in r2: A(f's_and_b32 s8, s{sTB}, 3'); A('s_mul_i32 s8, s8, 7'); A('s_add_u32 s8, s8, 1'); A('s_lshr_b32 s8, s8, 1'); A('s_add_u32 s7, s7, s8')
        if 'x' in r2: A('s_and_b32 s8, s2, 7'); A('s_mul_i32 s8, s8, 7'); A('s_lshr_b32 s8, s8, 2'); A('s_add_u32 s7, s7, s8')
        A('s_sub_u32 s8, s7, 14'); A('s_cmp_ge_u32 s7, 14'); A('s_cselect_b32 s7, s8, s7')
        A(f's_mul_i32 s8, s{sW}, {28*2048}'); A('s_lshl_b32 s7, s7, 12')
        A(f's_add_u32 s9, s8, {14*4096}')
        A(f's_add_u32 s{sG}, s7, s8')
        for g in range(1, 14):
            A(f's_add_u32 s{sG+g}, s{sG+g-1}, 4096'); A(f's_cmp_eq_u32 s{sG+g}, s9'); A(f's_cselect_b32 s{sG+g}, s8, s{sG+g}')
        A(f'v_readfirstlane_b32 s{sD}, v{vT+1}'); A(f's_lshr_b32 s7, s{sW}, 1'); A('s_lshl_b32 s7, s7, 4'); A(f's_lshr_b32 s{sD}, s{sD}, s7'); A(f's_lshl_b32 s{sD}, s{sD}, 16')
        return o

    def zero_fill(self):
        o = []; A = lambda t, **k: o.append(I(t, **k))
        A(f's_lshl_b32 s6, s{sW}, 14'); A(f's_add_u32 s6, s6, {L_C + UOFF}'); A(f'v_add_u32 v{vU0}, s6, v{vL16}')
        for i in range(4): A(f'v_mov_b32 v{vCT+i}, 0')
        for i in range(5): A(f'ds_write_b128 v{vU0}, {vr(vCT,4)} offset:{1024*i}')
        return o
    def ssm_loads(self):
        o = []; A = lambda t, **k: o.append(I(t, **k))
        fl = self.o['ldssm']
        A(f's_and_b32 s6, s{sW}, 1'); A('s_mul_i32 s6, s6, 2048'); A('s_sub_u32 s6, s6, 128')
        A(f'v_add_u32 v30, s6, v{vL16}')
        A('v_add_u32 v31, 16, v30'); A('v_add_u32 v29, 1024, v30')
        A(f'v_cmp_gt_i32 vcc, 0, v30'); A('v_bfrev_b32 v28, 1'); A('v_cndmask_b32 v30, v30, v28, vcc')
        A(f'v_cmp_gt_i32 vcc, 0, v31'); A('v_cndmask_b32 v31, v31, v28, vcc')
        A(f'buffer_load_dwordx4 {vr(vD,4)}, v30, {srd(SSM)}, 0 offen {fl}')
        A(f'buffer_load_dwordx2 {vr(vD+4,2)}, v31, {srd(SSM)}, 0 offen {fl}')
        A(f'buffer_load_dwordx4 {vr(vD+6,4)}, v29, {srd(SSM)}, 0 offen {fl}')
        A(f'buffer_load_dwordx2 {vr(vD+10,2)}, v29, {srd(SSM)}, 0 offen offset:16 {fl}')
        A(f'buffer_load_dwordx4 {vr(vD+12,4)}, v29, {srd(SSM)}, 0 offen offset:1024 {fl}')
        A(f'buffer_load_dwordx2 {vr(vD+16,2)}, v29, {srd(SSM)}, 0 offen offset:1040 {fl}')
        return o
    def copies_build(self):
        o = []; A = lambda t, **k: o.append(I(t, **k))
        A(f's_lshl_b32 s6, s{sW}, 14'); A(f's_add_u32 s6, s6, {L_C}'); A(f'v_add_u32 v{vU1}, s6, v{vL16}')
        for p in range(3):
            d = vD + 6 * p
            for i in range(4): A(f'v_alignbyte_b32 v{vCT+i}, v{d+i+1}, v{d+i}, 2')
            for i in range(4): A(f'v_mov_b32 v{vCT+4+i}, v{d+i+1}')
            for i in range(4): A(f'v_alignbyte_b32 v{vCT+8+i}, v{d+i+2}, v{d+i+1}, 2')
            w = [I(f'ds_write_b128 v{vU1}, {vr(vCT+4*c,4)} offset:{c*CSTR + 1024*p}') for c in range(3)]
            w.append(I(f'ds_write_b128 v{vU1}, {vr(d+2,4)} offset:{3*CSTR + 1024*p}'))
            if p < 2: o += w
            else: o.append([I('s_mov_b64 exec, 0xff')] + w + [I('s_mov_b64 exec, -1')])
        return o
    def kv_poll_addr(self):
        return [I(f'v_and_b32 v{vFl}, 7, v{vL}'), I(f'v_lshlrev_b32 v{vFl}, 8, v{vFl}'),
                I('s_lshr_b32 s14, s2, 5'), I('s_lshl_b32 s14, s14, 11'), I('s_and_b32 s15, s2, 2'), I('s_lshl_b32 s15, s15, 6'), I('s_add_u32 s14, s14, s15'), I(f's_add_u32 s14, s14, {FL_KV}')]
    def kv_loads(self):
        o = []; A = lambda t, **k: o.append(I(t, **k))
        A(f's_lshr_b32 s5, s{sW}, 1'); A('s_lshl_b32 s6, s2, 1'); A('s_add_u32 s5, s5, s6'); A('s_lshl_b32 s5, s5, 12'); A(f's_add_u32 s5, s5, {WS_KVT}')
        for i in range(4): A(f'buffer_load_dwordx4 {vr(vKV+4*i,4)}, v{vL16}, {srd(SWS)}, s5 offen offset:{1024*i} sc1')
        return o
    def u_writes(self):
        o = []; A = lambda t, **k: o.append(I(t, **k))
        A(f's_and_b32 s5, s{sW}, 1'); A('s_mul_i32 s7, s5, 2304')
        A(f's_lshl_b32 s6, s{sW}, 14'); A(f's_add_u32 s6, s6, {L_C + UOFF + 15*144}'); A('s_add_u32 s6, s6, s7')
        A(f'v_lshrrev_b32 v30, 3, v{vL}'); A('v_mul_u32_u24 v30, 144, v30'); A(f'v_and_b32 v31, 7, v{vL}'); A('v_lshl_add_u32 v30, v31, 4, v30')
        A(f'v_add_u32 v{vU0}, s6, v30'); A('s_sub_u32 s7, 2304, s7'); A(f'v_add_u32 v{vU1}, s7, v{vU0}')
        for i in (2, 3): A(f'ds_write_b128 v{vU1}, {vr(vKV+4*i,4)} offset:{1152*(i-2)}')
        for i in (0, 1): A(f'ds_write_b128 v{vU0}, {vr(vKV+4*i,4)} offset:{1152*i}')
        return o
    def stage_setup(self):
        o = []; A = lambda t, **k: o.append(I(t, **k))
        o += self.mk_srd(SWD, P_WD, 1792 * 1024)
        A(f'v_lshrrev_b32 v28, 3, v{vL}'); A(f'v_bfe_u32 v29, v{vL}, 4, 1'); A('v_lshlrev_b32 v29, 2, v29'); A(f'v_and_b32 v30, 7, v{vL}'); A('v_xor_b32 v29, v29, v30')
        A('v_lshlrev_b32 v28, 10, v28'); A('v_lshl_add_u32 v28, v29, 4, v28'); A(f's_lshl_b32 s5, s{sDB}, 7'); A(f'v_add_u32 v{vS}, s5, v28')
        A(f'v_add_u32 v{vS+1}, {8192 - 1024}, v{vS}'); A(f'v_add_u32 v{vS+2}, 16384, v{vS}'); A(f'v_add_u32 v{vS+3}, {24576 - 1024}, v{vS}')
        A(f's_lshl_b32 s5, s{sW}, 13'); A(f's_add_u32 s{sSB}, s5, {L_S}')
        A(f'v_lshrrev_b32 v28, 5, v{vL}'); A(f'v_bfe_u32 v29, v{vL}, 2, 2'); A('v_lshl_or_b32 v28, v28, 2, v29'); A('v_lshlrev_b32 v28, 7, v28'); A(f'v_add_u32 v28, s{sSB}, v28')
        A(f'v_and_b32 v29, 1, v{vL}'); A('v_lshl_add_u32 v28, v29, 3, v28')
        A(f'v_bfe_u32 v29, v{vL}, 4, 1'); A(f'v_bfe_u32 v30, v{vL}, 1, 1'); A('v_lshl_or_b32 v29, v29, 1, v30')
        A(f'v_bfe_u32 v30, v{vL}, 3, 1'); A('v_lshl_or_b32 v29, v30, 2, v29')
        A(f's_and_b32 s5, s{sW}, 1'); A('s_lshl_b32 s5, s5, 2'); A(f's_and_b32 s6, s{sW}, 2'); A('s_or_b32 s5, s5, s6'); A('v_xor_b32 v29, s5, v29')
        A(f'v_lshl_add_u32 v{vR0}, v29, 4, v28'); A('v_xor_b32 v29, 4, v29'); A(f'v_lshl_add_u32 v{vR1}, v29, 4, v28')
        return o
    def slot(self, k):
        sg = (k + 4) % 8
        return (sg & 3) * 2048 + (sg >> 2) * 32768
    def wd_dma(self, s_):
        fl = self.o['ldwd']
        o = []
        if s_ % 2 == 0: o.append(I(f's_lshl_b32 s{sXo}, s{sG+(s_>>1)}, 3'))
        o.append(I(f's_add_u32 m0, s{sSB}, {self.slot(s_)}'))
        L = [I(f'buffer_load_dwordx4 v{vS+2*(s_&1)+j}, {srd(SWD)}, s{sXo} offen offset:{1024*j} {fl} lds', tag=f'sd{s_}') for j in range(2)]
        if s_ >= 8: o.insert(0, NEED(regs('a', aWD + 8 * (s_ - 8), 8)))
        return [o + L]
    def wd_read(self, s_):
        return [WAITVM(f'sd{s_}')] + [I(f'ds_read_b64_tr_b16 {ar(aWD+8*s_+4*dt+2*j,2)}, v{vR0+dt} offset:{self.slot(s_) + 1024*j}', tag=f'wd{s_}_{dt}') for dt in range(2) for j in range(2)]

    def gemm1(self):
        O = self.o; E = O['E']
        o = self.gemm_prologue()
        flat = lambda L: [y for x in L for y in (x if isinstance(x, list) else [x])]
        o += flat(self.dma_x(0, range(4), sXo)) + flat(self.dma_w(0, range(4), sWo)) + self.off_w(1, sWo) + flat(self.dma_w(1, range(4), sWo))
        if O['codepf']: o += self.code_prefetch()
        if E:
            o += self.off_x(1, 4) + flat(self.dma_x(1, [0], 4))
            for U in range(2, 2 + E): o += self.off_w(U, 3) + flat(self.dma_w(U, [0], 3))
        o += self.stamp(0)
        o += self.gemm_addr()
        o += self.mk_srd(SHS, P_WS, WS_SIZE)
        o += [WAITVM(['x0', 'w0']), I('s_barrier')] + self.stamp(1) + self.frag_reads(0)
        W = Weave()
        for S in range(32):
            st = S & 1
            for i in range(8):
                a, b = i >> 1, i & 1
                acc = ACC1 + 32 * a + 16 * b
                c = '0' if S == 0 else vr(acc, 16)
                m = I(f'v_mfma_f32_32x32x16_bf16 {vr(acc,16)}, {vr(FA[st]+4*a,4)}, {vr(FB[st]+4*b,4)}, {c}',
                      expect=[(regs('v', FA[st]+4*a, 4), f'A{S}_{a}'), (regs('v', FB[st]+4*b, 4), f'B{S}_{b}')])
                pre = []
                if i == 0 and st == 1:
                    H = (S + 1) >> 1
                    pre = [WAITLGKM0(), WAITVM([f'w{H}', f'x{H>>1}']), I('s_barrier')]
                W.mfma(m, pre)
        for S in range(31): W.place(self.frag_reads(S + 1), 8 * S, per_gap=2)
        pstart = lambda H: max(0, 8 * (2 * H - 1))
        late = [1, 2, 3] if E else [0, 1, 2, 3]
        g = 0
        for H in range(14):
            items = []
            if H % 2 == 0 and H // 2 + 1 < 8: items += [[x] for x in self.off_x(H // 2 + 1, sXo)] + self.dma_x(H // 2 + 1, late, sXo)
            items += [[x] for x in self.off_w(H + 2, sWo)] + self.dma_w(H + 2, late, sWo)
            nlate = len(items)
            if E and H + 2 + E < 16: items += [[x] for x in self.off_w(H + 2 + E, 3)] + self.dma_w(H + 2 + E, [0], 3)
            if E and H % 2 == 0 and H // 2 + 2 < 8: items += [[x] for x in self.off_x(H // 2 + 2, 4)] + self.dma_x(H // 2 + 2, [0], 4)
            stream('dma', items)
            g = max(g, pstart(H))
            for it in items:
                isd = any(x.kind == 'vmem' for x in it)
                g = W.place([it], g)
                if any(x.tag == 'x7' for x in it): gx = g
                if isd and H > 0: g += O['dma_gap']
            assert g <= pstart(H + 2), (H, g)
        gd = g
        g = W.place(stream('late', self.late_setup()), pstart(1) + 8)
        assert g < pstart(O['p_nonce']), g
        W.place(stream('nonce', [self.nonce_issue()]), pstart(O['p_nonce']) + 13)
        W.place(stream('nonce', [self.nonce_check()]), pstart(O['p_nonce'] + 2) + 5)
        W.place(stream('ssm', self.ssm_loads()), pstart(O['p_ssm']) + 13)
        g = W.place(stream('stg', self.stage_setup()), max(gx + 1, pstart(O['p_ssm'] + 2)))
        gw = max(g, gd + 1)
        g = W.place(stream('zero', self.zero_fill()), max(g, pstart(14)))
        g = W.place(stream('cop', self.copies_build()), g)
        for k in range(2): gw = W.place(stream('wd', self.wd_dma(k)), gw, extra=4) + O['wdgap']
        gw = W.place(stream('kvp', self.kv_poll_addr() + [self.poll_issue(14, 'kvp')]), max(gw, O.get('kvg', 8 * 29 + 4)), extra=8)
        gw = W.place(stream('gate', self.gate_loads()), max(gw, g), extra=8)
        for k in range(2, 4): gw = W.place(stream('wd', self.wd_dma(k)), gw, extra=8) + 2
        for k in range(8): W.gaps[32 * k] += self.stamp(k, 'g1')
        o += W.flatten()
        o += self.stamp(2)
        return o

    def code_prefetch(self):
        o = []; A = lambda t, **k: o.append(I(t, **k))
        sk = self.lab('pf'); pc = self.lab('pc')
        A(f's_cmp_lg_u32 s{sW}, 3'); A(f's_cbranch_scc1 {sk}')
        A('s_getpc_b64 s[6:7]'); A(f'{pc}:')
        A(f's_sub_u32 s6, s6, {pc}-{NAME}_kernel'); A('s_subb_u32 s7, s7, 0')
        A('s_lshr_b32 s3, s2, 3'); A('s_and_b32 s3, s3, 7'); A('s_mul_i32 s3, s3, 5120')
        A(f'v_min_u32 v28, 39, v{vL}'); A('v_lshlrev_b32 v28, 7, v28'); A('v_add_u32 v28, s3, v28')
        A(f'v_min_u32 v28, L_codeend-{NAME}_kernel-4, v28')
        o.append(RAW('global_load_dword v127, v28, s[6:7]'))
        A(f'{sk}:')
        return o

    def conv(self, W):
        O = self.o
        pre = []
        def ra(sg):
            d = CA + 4 * (sg % 6)
            return [I(f'ds_read_b64 {vr(d+2*j,2)}, v{vCA} offset:{32*sg + 8*j}', tag=f'cA{sg}') for j in range(2)]
        def rb(st):
            d = CBR + 4 * (st % 4)
            return I(f'ds_read_b128 {vr(d,4)}, v{vCB} offset:{(15-(st>>2))*144 + 32*(3-(st&3))}', tag=f'cB{st}')
        pre += ra(0) + [rb(0)] + ra(2) + ra(1) + [rb(1)] + ra(3)
        base = len(W.spine)
        for st in range(64):
            for m in range(2):
                sg = st + 2 * m
                acc = aCV + 16 * m
                c = '0' if st == 0 else ar(acc, 16)
                W.mfma(I(f'v_mfma_f32_32x32x16_bf16 {ar(acc,16)}, {vr(CA+4*(sg%6),4)}, {vr(CBR+4*(st%4),4)}, {c}',
                         expect=[(regs('v', CA+4*(sg%6), 4), f'cA{sg}'), (regs('v', CBR+4*(st%4), 4), f'cB{st}')]), pre if (st == 0 and m == 0) else None)
        for st in range(64):
            it = []
            if st + 2 < 64: it.append(rb(st + 2))
            if st + 4 < 66: it += ra(st + 4)
            W.place(it[:2], base + 2 * st); W.place(it[2:], base + 2 * st + 1)
        return base

    def h_epilogue(self):
        o = []
        for a in range(4):
            for b in range(2):
                R = ACC1 + 32 * a + 16 * b
                for h in (0, 8):
                    for i in range(4): o.append(I(f'v_max_f32 v{R+h+i}, 0, v{R+h+i}'))
                    for i in range(4): o.append(I(f'v_mul_f32 v{R+h+i}, v{R+h+i}, v{R+h+4+i}'))
                for q, src in enumerate((0, 2, 8, 10)): o.append(I(f'v_cvt_pk_bf16_f32 v{R+4+q}, v{R+src}, v{R+src+1}'))
                so = sHo0 if a < 2 else sHo1
                if self.o.get('nohst'): continue
                o.append(I(f'buffer_store_dwordx4 {vr(R+4,4)}, v{vL16}, {srd(SHS)}, s{so} offen offset:{(a&1)*2048 + b*1024} {self.o.get("sth", "sc1")}', tag='hst'))
        return o
    def h_load(self, i):
        p, s = divmod(i, 28)
        return I(f'buffer_load_dwordx4 {vr(HR+4*(i%NHR),4)}, v{vHl}, {srd(SWS)}, s{sG+(s>>1)} offen offset:{(s&1)*2048 + p*1024} {self.o.get("ldh", "sc1")}', tag=f'h{i}')
    def h_poll_addr(self):
        return [I(f'v_min_u32 v{vFl}, 6, v{vL}'), I(f'v_lshlrev_b32 v{vFl}, 7, v{vFl}'),
                I(f's_mul_i32 s14, s{sTB}, {28*128}'), I(f's_mul_i32 s15, s{sW}, {7*128}'), I('s_add_u32 s14, s14, s15'), I(f's_add_u32 s14, s14, {FL_H}')]

    def conv_epilogue(self):
        a = []; A = lambda t, **k: a.append(I(t, **k))
        A(f's_lshl_b32 s6, s{sW}, 14'); A(f's_add_u32 s6, s6, {L_C}')
        A(f'v_and_b32 v30, 31, v{vL}'); A('v_mul_u32_u24 v30, 272, v30'); A(f'v_lshrrev_b32 v31, 5, v{vL}'); A('v_lshl_add_u32 v30, v31, 4, v30'); A('v_add_u32 v30, s6, v30')
        addr = a; a = []
        for m in range(2):
            for g in range(4): A(f'ds_write_b128 v30, {ar(aCV+16*m+4*g,4)} offset:{(32*m+8*g)*4}')
        wr = a; a = []
        A(f's_and_b32 s5, s{sW}, 2'); A('s_lshl_b32 s5, s5, 14'); A(f's_add_u32 s5, s5, {L_C}')
        A(f's_and_b32 s7, s{sW}, 1'); A('s_lshl_b32 s7, s7, 4')
        A(f'v_lshrrev_b32 v28, 3, v{vL}'); A('v_add_u32 v28, s7, v28'); A(f'v_and_b32 v29, 7, v{vL}')
        A('v_mul_u32_u24 v31, 272, v28'); A('v_lshl_add_u32 v31, v29, 5, v31'); A(f'v_add_u32 v{vGG}, s5, v31')
        A('v_mul_u32_u24 v31, 144, v28'); A('v_lshl_add_u32 v31, v29, 4, v31'); A(f's_add_u32 s5, s5, {UOFF + 15*144}'); A(f'v_add_u32 v{vGG+1}, s5, v31')
        A(f's_lshr_b32 s5, s{sW}, 1'); A('s_lshl_b32 s6, s2, 1'); A('s_add_u32 s5, s5, s6')
        A(f's_and_b32 s7, s{sW}, 1'); A('s_lshl_b32 s12, s5, 12'); A('s_lshl_b32 s8, s7, 11'); A('s_add_u32 s12, s12, s8'); A(f's_add_u32 s12, s12, {WS_YT}')
        A('s_lshr_b32 s8, s5, 6'); A('s_lshl_b32 s8, s8, 1'); A('s_add_u32 s8, s8, s7'); A('s_lshl_b32 s8, s8, 13'); A('s_and_b32 s11, s5, 63'); A('s_lshl_b32 s11, s11, 7')
        A('s_add_u32 s11, s11, s8'); A(f's_add_u32 s11, s11, {FL_Y}')
        addr2 = a; a = []
        P0 = vXR; P1 = vXR + 8; U = vXR + 16; T = vXR + 20; Y = vXR + 24
        for rho in range(2):
            for x in range(2): A(f'ds_read_b128 {vr(P0+4*x,4)}, v{vGG} offset:{rho*2176 + 16*x}')
            for x in range(2): A(f'ds_read_b128 {vr(P1+4*x,4)}, v{vGG} offset:{16384 + rho*2176 + 16*x}')
            A(f'ds_read_b128 {vr(U,4)}, v{vGG+1} offset:{rho*1152}')
            for e in range(8): A(f'v_add_f32 v{P0+e}, v{P0+e}, v{P1+e}')
            for q in range(4):
                A(f'v_lshlrev_b32 v{T}, 16, v{U+q}'); A(f'v_and_b32 v{T+1}, s{sMASK}, v{U+q}')
                A(f'v_fmac_f32 v{P0+7-2*q}, s{sD}, v{T}'); A(f'v_fmac_f32 v{P0+6-2*q}, s{sD}, v{T+1}')
            for q in range(4): A(f'v_cvt_pk_bf16_f32 v{Y+4*rho+q}, v{P0+2*q}, v{P0+2*q+1}')
            A(f'buffer_store_dwordx4 {vr(Y+4*rho,4)}, v{vL16}, {srd(SWS)}, s12 offen offset:{1024*rho} sc1', tag='yst')
        return addr, wr, addr2, a

    def exch_write(self, p):
        o = []
        for j, (dt, gp, m) in enumerate(((0, 1, 2), (1, 0, 1), (1, 1, 3))):
            R = ACC2 + 32 * p + 16 * dt + 8 * gp
            for x in range(2): o.append(I(f'ds_write_b128 v{vE+j}, {vr(R+4*x,4)} offset:{(L_X1 if p else L_X0) + j*2048 + 1024*x}'))
        return o
    def exch_read(self, p):
        return [I(f'ds_read_b128 {vr(vXR+8*j+4*x,4)}, v{vE+3} offset:{(L_X1 if p else L_X0) + j*2048 + 1024*x}') for j in range(3) for x in range(2)]
    def exch_sum(self, p, dst):
        o = []; R = ACC2 + 32 * p
        for e in range(8): o.append(I(f'v_add_f32 v{vXR+e}, v{vXR+e}, v{vXR+8+e}'))
        for e in range(8): o.append(I(f'v_add_f32 v{dst+e}, v{R+e}, v{vXR+16+e}'))
        for e in range(8): o.append(I(f'v_add_f32 v{dst+e}, v{dst+e}, v{vXR+e}'))
        return o
    def final_addr(self):
        o = []; A = lambda t, **k: o.append(I(t, **k))
        for j, m in enumerate((2, 1, 3)):
            A(f's_xor_b32 s5, s{sW}, {m}'); A('s_mul_i32 s5, s5, 6144'); A(f'v_add_u32 v{vE+j}, s5, v{vL16}')
        A(f's_mul_i32 s5, s{sW}, 6144'); A(f'v_add_u32 v{vE+3}, s5, v{vL16}')
        return o
    def q_dma(self):
        o = []; A = lambda t, **k: o.append(I(t, **k))
        A(f'v_lshrrev_b32 v28, 3, v{vL}'); A('v_lshlrev_b32 v28, 10, v28'); A(f'v_and_b32 v29, 7, v{vL}'); A(f'v_lshrrev_b32 v30, 4, v{vL}'); A('v_xor_b32 v29, v29, v30')
        A(f'v_lshl_add_u32 v{vQ}, v29, 4, v28'); A(f'v_xor_b32 v{vQ+1}, 64, v{vQ}'); A(f'v_add_u32 v{vQ+1}, 7168, v{vQ+1}')
        A(f's_lshl_b32 s5, s{sTB}, 16'); A(f's_lshl_b32 s6, s{sW}, 14'); A('s_add_u32 s5, s5, s6'); A(f's_lshl_b32 s6, s{sDB}, 7'); A('s_add_u32 s5, s5, s6')
        A(f's_lshr_b32 s6, s{sW4K}, 1'); A(f's_add_u32 m0, s6, {L_Q}')
        for n in range(2): A(f'buffer_load_dwordx4 v{vQ+n}, {srd(SX)}, s5 offen offset:{1024*n} lds', tag='q')
        return o[:-3] + [o[-3:]]
    def y_poll_addr(self):
        o = []; A = lambda t, **k: o.append(I(t, **k))
        A(f's_and_b32 s10, s{sW}, 1'); A('s_lshl_b32 s10, s10, 1'); A(f's_lshr_b32 s15, s{sW}, 1'); A('s_add_u32 s10, s10, s15')
        A(f'v_and_b32 v{vFl}, 15, v{vL}'); A(f'v_lshlrev_b32 v{vFl}, 7, v{vFl}')
        A(f's_lshl_b32 s14, s{sDB}, 1'); A(f's_lshr_b32 s15, s{sTB}, 4'); A('s_add_u32 s14, s14, s15'); A('s_lshl_b32 s14, s14, 13')
        A('s_lshl_b32 s15, s10, 11'); A('s_add_u32 s14, s14, s15'); A(f's_add_u32 s14, s14, {FL_Y}')
        return o
    def y_dma(self):
        o = []; A = lambda t, **k: o.append(I(t, **k))
        A(f'v_lshrrev_b32 v28, 3, v{vL}'); A('v_lshlrev_b32 v28, 12, v28'); A(f'v_and_b32 v29, 7, v{vL}'); A('v_lshl_add_u32 v28, v29, 4, v28')
        A(f'v_add_u32 v29, {8*4096 - 1024}, v28')
        A(f's_lshl_b32 s5, s{sDB}, 18'); A('s_lshl_b32 s6, s10, 16'); A('s_add_u32 s5, s5, s6'); A(f's_lshl_b32 s6, s{sTB}, 7'); A('s_add_u32 s5, s5, s6'); A(f's_add_u32 s5, s5, {WS_YT}')
        A('s_lshl_b32 s6, s10, 11'); A(f's_add_u32 m0, s6, {L_Y}')
        for n in range(2): A(f'buffer_load_dwordx4 v{28+n}, {srd(SWS)}, s5 offen offset:{1024*n} sc1 lds', tag='y')
        return o[:-3] + [o[-3:]]
    def gate_loads(self):
        o = []; A = lambda t, **k: o.append(I(t, **k))
        A(f's_lshl_b32 s5, s{sTB}, 3'); A(f's_add_u32 s5, s5, s{sDB}'); A('s_lshl_b32 s5, s5, 2'); A(f's_add_u32 s5, s5, s{sW}'); A('s_lshl_b32 s5, s5, 11')
        A(f'global_load_dwordx4 {vr(vGW,4)}, v{vL16}, {sp(P_GW)}')
        for i in range(2): A(f'buffer_load_dwordx4 {vr(vGX+4*i,4)}, v{vL16}, {srd(SX)}, s5 offen offset:{1024*i}')
        return o
    def gate_compute(self):
        o = []; A = lambda t, **k: o.append(I(t, **k))
        Z = vGX
        for i in range(2):
            R = vGX + 4 * i
            A(f'v_dot2_f32_bf16 v{R}, v{R}, v{vGW}, 0')
            for m in range(1, 4): A(f'v_dot2_f32_bf16 v{R}, v{R+m}, v{vGW+m}, v{R}')
        A(f'v_permlane32_swap_b32 v{Z}, v{Z+4}'); A(f'v_add_f32 v{Z}, v{Z}, v{Z+4}')
        A(f'v_mov_b32 v{Z+1}, v{Z}'); A(f'v_permlane16_swap_b32 v{Z}, v{Z+1}'); A(f'v_add_f32 v{Z}, v{Z}, v{Z+1}')
        for sh in (8, 4, 2, 1): A(f'v_add_f32_dpp v{Z}, v{Z}, v{Z} row_ror:{sh} row_mask:0xf bank_mask:0xf')
        A(f'v_cvt_pk_bf16_f32 v{Z}, v{Z}, v{Z}'); A(f'v_and_b32 v{Z}, s{sMASK}, v{Z}')
        A(f'v_mul_f32 v{Z}, 0xbfb8aa3b, v{Z}'); A(f'v_exp_f32 v{Z}, v{Z}'); A(f'v_add_f32 v{Z}, 1.0, v{Z}'); A(f'v_rcp_f32 v{Z}, v{Z}')
        A(f'v_cvt_pk_bf16_f32 v{Z}, v{Z}, v{Z}'); A(f'v_and_b32 v{Z}, s{sMASK}, v{Z}'); A(f'v_sub_f32 v{Z+1}, 1.0, v{Z}'); A(f'v_cvt_pk_bf16_f32 v{Z}, v{Z}, v{Z+1}')
        A(f'v_mov_b32 v{Z+1}, s{sN}')
        A(f'v_lshrrev_b32 v{Z+2}, 5, v{vL}'); A(f'v_lshlrev_b32 v{Z+2}, 3, v{Z+2}')
        A(f's_lshl_b32 s5, s{sTB}, 3'); A(f's_add_u32 s5, s5, s{sDB}'); A('s_lshl_b32 s5, s5, 2'); A(f's_add_u32 s5, s5, s{sW}'); A('s_lshl_b32 s5, s5, 4'); A(f's_add_u32 s5, s5, {WS_G}')
        o.append([I('s_mov_b32 exec_lo, 1'), I('s_mov_b32 exec_hi, 1'), I(f'buffer_store_dwordx2 {vr(Z,2)}, v{Z+2}, {srd(SWS)}, s5 offen sc1'), I('s_mov_b64 exec, -1')])
        return o
    def g_issue(self):
        o = []; A = lambda t, **k: o.append(I(t, **k))
        A(f'v_and_b32 v{vFl}, 31, v{vL}'); A(f'v_lshlrev_b32 v{vFl}, 3, v{vFl}'); A(f's_lshl_b32 s14, s{sTB}, 9'); A(f's_add_u32 s14, s14, {WS_G}')
        for p in range(2): A(f'buffer_load_dwordx2 {vr(vGL+2*p,2)}, v{vFl}, {srd(SWS)}, s14 offen offset:{256*p} sc1')
        return o
    def g_check(self):
        ok = self.lab('gok'); lp = self.lab('glp')
        cmpx = f'v_cmp_eq_u32 vcc, s{sN}, v{vGL+1}\nv_cmp_eq_u32 s[6:7], s{sN}, v{vGL+3}\ns_add_u32 s{sSPIN}, s{sSPIN}, 1\ns_nop 1\ns_and_b64 vcc, vcc, s[6:7]'
        ld = '\n'.join(f'buffer_load_dwordx2 {vr(vGL+2*p,2)}, v{vFl}, {srd(SWS)}, s14 offen offset:{256*p} sc1' for p in range(2))
        mv = [I(f'v_mov_b32 v{vGG+p}, v{vGL+2*p}') for p in range(2)]
        if self.o.get('nopoll'): return mv
        return [[I(f'v_cmp_eq_u32 vcc, s{sN}, v{vGL+1}'), I(f'v_cmp_eq_u32 s[6:7], s{sN}, v{vGL+3}'), I('s_and_b64 vcc, vcc, s[6:7]'), I('s_cmp_eq_u64 vcc, exec'), I(f's_cbranch_scc1 {ok}'),
                RAW(f's_mov_b32 s{sSPIN}, 0\n{lp}:\n{ld}\ns_waitcnt vmcnt(0)\n{cmpx}\ns_cmp_eq_u64 vcc, exec\ns_cbranch_scc1 {ok}\n'
                    f's_sleep {self.o["sleep"]}\ns_cmp_lt_u32 s{sSPIN}, {self.o["spin"]}\ns_cbranch_scc1 {lp}', defs='vcc scc s6 s7', uses=f's14 v{vFl}'),
                I(f'{ok}:')]] + mv
    def a_part(self):
        o = []; A = lambda t, **k: o.append(I(t, **k))
        Q = vXR + 24; Yv = vXR + 28; T = vXR + 24
        A(f'v_lshrrev_b32 v28, 5, v{vL}'); A(f'v_bfe_u32 v29, v{vL}, 2, 2'); A('v_lshl_or_b32 v28, v28, 2, v29'); A('v_lshlrev_b32 v28, 7, v28')
        A(f'v_bfe_u32 v29, v{vL}, 4, 1'); A('v_lshl_or_b32 v28, v29, 5, v28'); A(f'v_and_b32 v29, 3, v{vL}'); A('v_lshl_or_b32 v28, v29, 3, v28')
        A('s_lshl_b32 s6, s10, 11'); A(f's_add_u32 s6, s6, {L_Y}'); A('v_add_u32 v28, s6, v28')
        A(f'v_bfe_u32 v29, v{vL}, 1, 3'); A('s_lshl_b32 s6, s10, 1'); A('v_xor_b32 v29, s6, v29')
        A(f'v_and_b32 v30, 31, v{vL}'); A('v_lshlrev_b32 v30, 7, v30'); A(f'v_lshrrev_b32 v31, 5, v{vL}'); A('v_lshl_or_b32 v30, v31, 3, v30'); A(f'v_add_u32 v30, {L_Q}, v30')
        A('v_xor_b32 v31, 1, v29'); A('v_lshl_add_u32 v29, v29, 4, v30'); A('v_lshl_add_u32 v30, v31, 4, v30')
        o.append(WAITVM('y'))
        QY = 120
        GF = 31
        for p in range(2):
            for gq in range(2):
                A(f'ds_read_b64 {vr(QY+2*gq,2)}, v{29+gq} offset:{4096*p}')
                A(f'ds_read_b64_tr_b16 {vr(QY+4+2*gq,2)}, v28 offset:{1024*gq + 64*p}')
            A(f'v_lshlrev_b32 v{GF}, 16, v{vGG+p}'); A(f'v_and_b32 v{vGG+p}, s{sMASK}, v{vGG+p}')
            for gq in range(2):
                for h in range(2):
                    d = vGA + 8 * p + 4 * gq + 2 * h
                    q, y = QY + 2 * gq + h, QY + 4 + 2 * gq + h
                    A(f'v_lshlrev_b32 v{d}, 16, v{q}'); A(f'v_and_b32 v{d+1}, s{sMASK}, v{q}')
                    A(f'v_lshlrev_b32 v{q}, 16, v{y}'); A(f'v_and_b32 v{y}, s{sMASK}, v{y}')
                    A(f'v_mul_f32 v{d}, v{d}, v{q}'); A(f'v_mul_f32 v{d+1}, v{d+1}, v{y}')
                    A(f'v_mul_f32 v{d}, v{d}, v{GF}'); A(f'v_mul_f32 v{d+1}, v{d+1}, v{GF}')
        return o
    def out_addr(self):
        o = []; A = lambda t, **k: o.append(I(t, **k))
        A(f'v_and_b32 v28, 31, v{vL}'); A('v_lshlrev_b32 v28, 10, v28'); A(f'v_lshrrev_b32 v29, 5, v{vL}'); A(f'v_lshl_or_b32 v{vE+4}, v29, 4, v28')
        A(f's_lshl_b32 s15, s{sTB}, 16'); A(f's_lshl_b32 s5, s{sDB}, 7'); A('s_add_u32 s15, s15, s5'); A('s_lshl_b32 s5, s10, 5'); A('s_add_u32 s15, s15, s5')
        A('s_add_u32 s9, s15, 32768')
        return o
    def out_store(self, p, B):
        o = []; A = lambda t, **k: o.append(I(t, **k))
        G = vGA + 8 * p
        for e in range(8): A(f'v_fmac_f32 v{G+e}, v{vGG+p}, v{B+e}')
        for q in range(4): A(f'v_cvt_pk_bf16_f32 v{B+q}, v{G+2*q}, v{G+2*q+1}')
        A(f'v_permlane32_swap_b32 v{B}, v{B+2}'); A(f'v_permlane32_swap_b32 v{B+1}, v{B+3}')
        A(f'buffer_store_dwordx4 {vr(B,4)}, v{vE+4}, {srd(SOUT)}, s{15 if p == 0 else 9} offen')
        return o

    def tail(self):
        O = self.o
        W = Weave()
        for i in range(O['nA']): W.mfma(None)
        cb = self.conv(W)
        gb = len(W.spine)
        for i in range(56):
            p, s = divmod(i, 28)
            for dt in range(2):
                acc = ACC2 + 32 * p + 16 * dt
                c = '0' if s == 0 else vr(acc, 16)
                W.mfma(I(f'v_mfma_f32_32x32x16_bf16 {vr(acc,16)}, {ar(aWD+8*s+4*dt,4)}, {vr(HR+4*(i%NHR),4)}, {c}',
                         expect=[(regs('a', aWD+8*s+4*dt, 4), f'wd{s}_{dt}'), (regs('v', HR+4*(i%NHR), 4), f'h{i}')]))
        cg = lambda st: cb + 2 * st
        g = W.place(stream('kvp', [self.poll_check(14)] + self.kv_loads()), 0)
        ge = W.place(self.h_epilogue(), g)
        assert ge < cb, ge
        dpos = lambda k: cb + O['a0'] + (k - 4) * O['a1'] if k < O['k1'] else cb + O['b0'] + ((k - O['k1']) * O['b1']) // 2
        rpos = lambda k: 4 + 4 * k if k < 4 else max(dpos(k) + O['lag'], cb + O['c0'] + 3 * (k - 4))
        ev = [(rpos(k), 0, k) for k in range(28)]
        for k in range(4, 28): ev.append((max(dpos(k), rpos(k - 8) if k >= 8 else 0), 1, k))
        ev.sort()
        g = 0; gl = {}
        for pos, kind, k in ev:
            if kind == 0: g = max(g, W.place(stream('wd', self.wd_read(k)), max(g, pos), per_gap=3, extra=12))
            else: g = W.place(stream('wd', self.wd_dma(k)), max(g, pos), extra=12); gl[k] = g
        gwd = g
        assert g < gb - 1, (g, gb)
        g = W.place(stream('uw', self.u_writes()), cb - 4, end=cb - 1, extra=40)
        assert g < cb, (g, cb)
        g = W.place(stream('gate', self.gate_compute()), cb)
        g = W.place(stream('hfl', [self.flag_store('hst', 13, SHS)]), max(g, cb + O['hflag']), extra=12)
        assert g < cg(O['hpoll']), g
        W.place(stream('fa', self.final_addr()), g + 1)
        W.place(stream('hp', self.h_poll_addr() + [self.poll_issue(14, 'hp')]), cg(O['hpoll']))
        g = W.place(stream('hp', [self.poll_check(14)]), cg(O['hcheck']), extra=12)
        addr, wr, addr2, post = [stream('ce', z) for z in self.conv_epilogue()]
        g2 = W.place(addr + addr2, g + 1)
        assert g2 < gb
        npre = 0; g = max(g + 1, gl[27] + 1)
        while g < gb and npre < NHR:
            W.place([self.h_load(npre)], g, extra=12); npre += 1; g += O['hrate']
        for i in range(npre, 56):
            earliest = gb + 2 * (i - NHR) + 1 if i >= NHR else gb
            pos = max(earliest, gb + 2 * (i - npre))
            W.place([self.h_load(i)], pos)
        g = W.place(wr, gb + 1)
        g = W.place([[WAITLGKM0(), I('s_barrier')]], g + 2)
        g = W.place(post, g)
        W.place(self.stamp(5), g)
        g = W.place(stream('fa', self.q_dma()), g)
        g = W.place(stream('gp', self.g_issue()), max(g, gb + O['gpoll']))
        g = W.place(stream('ce', [self.flag_store('yst', 11)]), g + O['yflag'])
        g = W.place(stream('gp', self.g_check()), g + 1)
        g = W.place(stream('y', self.y_poll_addr() + [self.poll_issue(14, 'yp')]), max(g, gb + O['ypoll']))
        g = W.place(self.exch_write(0), max(g, gb + 56 + 3))
        g = W.place([[WAITLGKM0(), WAITVM('q'), I('s_barrier')]], g + 3)
        g = W.place(self.exch_read(0), g)
        g = W.place(self.exch_sum(0, vBS), g + 2)
        g = W.place(stream('y', [self.poll_check(14)] + self.y_dma()), max(g, gb + O['ycheck']))
        g = W.place(stream('y', self.out_addr()), g)
        g = W.place(stream('y', self.a_part()), max(g + 10, gb + O['apart']))
        W.gaps[cb] += self.stamp(3); W.gaps[gb] += self.stamp(4)
        for k in range(8):
            W.gaps[cb + 16 * k] += self.stamp(k, 'conv'); W.gaps[gb + 14 * k] += self.stamp(k, 'g2')
        o = W.flatten()
        o += self.stamp(6)
        o += stream('y', self.out_store(0, vBS))
        o += self.exch_write(1) + [WAITLGKM0(), I('s_barrier')] + self.exch_read(1) + self.exch_sum(1, vBS) + stream('y', self.out_store(1, vBS))
        if O.get('fixend'):
            o += [RAW(f's_or_b32 s3, s2, s{sW}\ns_cmp_lg_u32 s3, 0\ns_cbranch_scc1 L_fe2\ns_add_u32 s0, s0, {O["fixend"]}\nL_fe:\ns_memrealtime s[6:7]\ns_waitcnt lgkmcnt(0)\ns_sub_u32 s6, s6, s0\ns_cmp_lt_i32 s6, 0\ns_cbranch_scc1 L_fe\nL_fe2:')]
        if O['prof']:
            o += self.stamp(7) + [DRAIN()] + self.stamp(8) + [I('s_waitcnt lgkmcnt(0)')]
            o += [I('s_lshl_b32 s5, s2, 2'), I(f's_add_u32 s5, s5, s{sW}'), I('s_lshl_b32 s5, s5, 6'), I(f's_add_u32 s5, s5, {WS_PROF}'), I('v_mov_b32 v28, 0'), I('s_mov_b64 exec, 1')]
            for k, r in enumerate(STAMPS):
                o += [I(f'v_mov_b32 v29, s{r}'), I(f'buffer_store_dword v29, v28, {srd(SWS)}, s5 offen offset:{4*k}')]
            o += [I('s_memrealtime s[6:7]'), I('s_waitcnt lgkmcnt(0)'), I('v_mov_b32 v29, s6'), I(f'buffer_store_dword v29, v28, {srd(SWS)}, s5 offen offset:40')]
            if O.get('dbgtime'):
                o += [I('v_not_b32 v30, s0'), I(f'global_atomic_umax v28, v30, {sp(P_DBG)} offset:16'), I(f'global_atomic_umax v28, v29, {sp(P_DBG)} offset:20')]
                for k, r in enumerate(STAMPS[:8]):
                    o += [I(f's_sub_u32 s6, s{r}, s1'), I('v_mov_b32 v31, s6'), I(f'global_atomic_umax v28, v31, {sp(P_DBG)} offset:{24+4*k}')]
            o += [I('v_mov_b32 v30, s0'), I(f'buffer_store_dword v30, v28, {srd(SWS)}, s5 offen offset:36'), I('v_mov_b32 v31, s1'), I(f'buffer_store_dword v31, v28, {srd(SWS)}, s5 offen offset:44')]
        return o

    def helper(self):
        O = self.o
        o = []; A = lambda t, **k: o.append(I(t, **k))
        A('L_helper:')
        A('s_and_b32 s8, s2, 7'); A('s_lshr_b32 s9, s2, 3')
        VB = 65 * 1088
        A(f'v_lshrrev_b32 v28, 3, v{vL}'); A(f'v_and_b32 v29, 7, v{vL}'); A('v_lshlrev_b32 v30, 10, v28'); A('v_lshl_add_u32 v32, v29, 4, v30')
        A('s_lshl_b32 s11, s9, 19'); A('s_lshl_b32 s13, s8, 7'); A('s_add_u32 s11, s11, s13')
        A(f's_lshl_b32 s12, s{sW}, 15'); A('s_add_u32 s12, s12, s11')
        A(f's_mul_i32 s10, s{sW}, {4*1088}')
        kvs = 8192
        if O.get('kvcontig'):
            kvs = 1024
            A(f'v_lshlrev_b32 v32, 4, v{vL}'); A('s_lshl_b32 s11, s2, 16'); A(f's_lshl_b32 s12, s{sW}, 12'); A('s_add_u32 s12, s12, s11')
        A('s_cmp_eq_u32 s9, 0'); A('s_cselect_b32 s13, 0x80000000, 0'); A('v_or_b32 v33, s13, v32')
        A('s_cselect_b32 s13, 0, 8192'); A('s_sub_u32 s13, s11, s13')
        A('v_lshlrev_b32 v30, 6, v28'); A('s_lshl_b32 s15, s8, 9'); A(f's_and_b32 s14, s{sW}, 1'); A('s_lshl_b32 s14, s14, 5'); A('s_add_u32 s15, s15, s14'); A('v_add_u32 v30, s15, v30')
        A('s_waitcnt lgkmcnt(0)')
        o += self.ws_base()
        if self.o['prof']: A('s_mov_b32 s0, s74'); A('s_mov_b32 s1, s76')
        o += self.mk_srd(SA, P_K, 0x200000) + self.mk_srd(SB, P_V, 0x200000)
        fl = O['ldkv']
        def dmas(sg):
            r = []
            for j in range(4):
                b = 16 * sg + j
                r.append([I(f's_add_u32 m0, s10, {(b+1)*1088}'), I(f's_add_u32 s14, s12, {b*kvs}'),
                          I(f'buffer_load_dwordx4 v32, {srd(SA)}, s14 offen {fl} lds', tag=f'kv{sg}')])
                r.append([I(f's_add_u32 m0, s10, {VB + b*1088}'), I(f'buffer_load_dwordx4 v32, {srd(SB)}, s14 offen {fl} lds', tag=f'kv{sg}')])
            return r
        flat = lambda L: [y for x in L for y in (x if isinstance(x, list) else [x])]
        sk = self.lab('h0')
        A(f's_cmp_lg_u32 s{sW}, 0'); A(f's_cbranch_scc1 {sk}')
        o.append(RAW(f's_mov_b32 m0, 0\ns_nop 0\nbuffer_load_dwordx4 v33, {srd(SA)}, s13 offen {fl} lds'))
        A(f'{sk}:')
        o += flat(dmas(0))
        for i in range(2): A(f'global_load_dwordx4 {vr(64+4*i,4)}, v30, {sp(P_SK)} offset:{16*i}')
        o += self.mk_srd(SWS, P_WS, WS_SIZE) + self.mk_srd(SX, P_Q, 0x200000)
        sk = self.lab('np')
        A(f's_or_b32 s3, s2, s{sW}'); A('s_cmp_lg_u32 s3, 0'); A(f's_cbranch_scc1 {sk}')
        o.append(RAW(f'v_mov_b32 v28, {FL_KV}\nbuffer_load_dwordx2 v[24:25], v28, {srd(SWS)}, 0 offen sc1\ns_waitcnt vmcnt(0)\n'
                     'v_add_u32 v24, 0x9E3779B8, v24\nv_or_b32 v24, 1, v24\nv_add_u32 v25, 0x7F4A7C15, v25\nv_mov_b32 v28, 0\n'
                     f's_mov_b64 exec, 1\nglobal_store_dwordx2 v28, v[24:25], {sp(P_DBG)} sc1\ns_mov_b64 exec, -1'))
        A(f'{sk}:')
        o += flat(dmas(1))
        if O['codepf']: o += stream('pf', self.code_prefetch())
        o += self.stamp(0)
        A(f'v_lshrrev_b32 v28, 3, v{vL}'); A(f'v_and_b32 v29, 7, v{vL}')
        A(f's_lshr_b32 s3, s{sW}, 1'); A(f's_and_b32 s4, s{sW}, 1'); A('s_mul_i32 s5, s3, 8704'); A('s_lshl_b32 s6, s4, 3'); A('s_add_u32 s5, s5, s6')
        A('v_mul_u32_u24 v31, 1088, v29'); A('v_lshl_add_u32 v31, v28, 4, v31'); A('v_add_u32 v34, s5, v31'); A(f'v_add_u32 v35, {VB}, v34')
        A('v_lshlrev_b32 v30, 15, v28'); A('v_lshl_add_u32 v30, v29, 4, v30'); A('s_lshl_b32 s5, s4, 14'); A('s_lshl_b32 s6, s3, 7'); A('s_add_u32 s5, s5, s6'); A('v_add_u32 v36, s5, v30')
        A('s_lshl_b32 s4, s8, 18'); A('s_lshl_b32 s5, s9, 10'); A('s_add_u32 s4, s4, s5'); A(f's_add_u32 s4, s4, {WS_KVT}')
        A('s_lshl_b32 s13, s8, 4'); A('s_lshl_b32 s5, s9, 2'); A('s_add_u32 s13, s13, s5'); A(f's_add_u32 s13, s13, s{sW}'); A('s_lshl_b32 s13, s13, 7'); A(f's_add_u32 s13, s13, {FL_KV}')
        S0 = 40; KR = 128; VR = 150; KF = 168; VF = 184; RS = 188; PO = 196
        for e in range(4):
            for j in range(4):
                src = 64 + 2 * e + (j >> 1)
                if j & 1: A(f'v_and_b32 v{S0+4*j+e}, s{sMASK}, v{src}')
                else: A(f'v_lshlrev_b32 v{S0+4*j+e}, 16, v{src}')
        for sg in range(4):
            o += [WAITVM(f'kv{sg}'), I('s_barrier')]
            c = []; C = lambda t, **k: c.append(I(t, **k))
            for i in range(-3, 8):
                off = (16*sg + 1) * 1088 + i * 128 if i >= 0 else 16*sg * 1088 + (8 + i) * 128
                C(f'ds_read_b64 {vr(KR+2*(i+3),2)}, v34 offset:{off}')
                if i >= 0: C(f'ds_read_b64 {vr(VR+2*i,2)}, v35 offset:{16*sg*1088 + i*128}')
            def unpackk(i):
                for m in range(2):
                    d = KF + 4 * ((i + 4) & 3) + 2 * m
                    C(f'v_lshlrev_b32 v{d}, 16, v{KR+2*(i+3)+m}'); C(f'v_and_b32 v{d+1}, s{sMASK}, v{KR+2*(i+3)+m}')
            for i in range(-3, 0): unpackk(i)
            for i in range(8):
                unpackk(i)
                for m in range(2):
                    C(f'v_lshlrev_b32 v{VF+2*m}, 16, v{VR+2*i+m}'); C(f'v_and_b32 v{VF+2*m+1}, s{sMASK}, v{VR+2*i+m}')
                R = RS + 4 * (i & 1)
                kf = lambda j, m: vr(KF + 4 * ((i - j + 4) & 3) + 2 * m, 2)
                for m in range(2): C(f'v_pk_mul_f32 {vr(R+2*m,2)}, {kf(3,m)}, {vr(S0+12+2*m,2)}')
                for j in (2, 1, 0):
                    for m in range(2): C(f'v_pk_fma_f32 {vr(R+2*m,2)}, {kf(j,m)}, {vr(S0+4*j+2*m,2)}, {vr(R+2*m,2)}')
                for m in range(2): C(f'v_pk_mul_f32 {vr(R+2*m,2)}, {vr(R+2*m,2)}, {vr(VF+2*m,2)}')
                if i & 1:
                    q = (7 - i) // 2
                    for e in range(4): C(f'v_cvt_pk_bf16_f32 v{PO+4*e+q}, v{RS+4+e}, v{RS+e}')
            for e in range(4):
                C(f's_add_u32 s6, s4, {e*4096 + 256*sg}')
                C(f'buffer_store_dwordx4 {vr(PO+4*e,4)}, v36, {srd(SWS)}, s6 offen sc1', tag='kvst')
            ld = dmas(sg + 2) if sg < 2 else []
            if sg == 2: ld = [stream('late', self.late_setup())] + [stream('ssm', self.ssm_loads())]
            body = c[:19]; rest = c[19:]
            step = max(1, (len(rest) - 10) // max(1, len(ld)))
            k = 0
            for n, x in enumerate(rest):
                if n % step == 0 and k < len(ld): body += ld[k]; k += 1
                body.append(x)
            while k < len(ld): body += ld[k]; k += 1
            o += body
            if sg == 0: o += stream('nonce', self.nonce_issue())
            if sg == 1: o += stream('nonce', self.nonce_check())
        o += self.stamp(1)
        o += stream('fl', self.flag_store('kvst', 13))
        o += self.stamp(2)
        o += [WAITLGKM0(), I('s_barrier')]
        o += stream('stg', self.stage_setup())
        for k in range(2): o += flat(stream('wd', self.wd_dma(k)))
        o += stream('kvp', self.kv_poll_addr() + [self.poll_issue(14, 'kvp')])
        o += stream('zero', self.zero_fill()) + stream('cop', self.copies_build()) + stream('gate', self.gate_loads())
        for k in range(2, 4): o += flat(stream('wd', self.wd_dma(k)))
        o += self.mk_srd(SHS, P_WS, 0)
        A(f's_mov_b32 s{sHo0}, 0'); A(f's_mov_b32 s{sHo1}, 0'); A('s_mov_b32 s13, 0')
        o += [WAITLGKM0(), I('s_nop 7'), I('s_branch L_join')]
        return flat(o)

    def build(self):
        flat = lambda L: [y for x in L for y in (x if isinstance(x, list) else [x])]
        main = self.prologue() + flat(self.gemm1()) + [I('L_join:')] + self.tail() + [I('L_end:'), I('s_endpgm')]
        main = flat(main)
        hel = [RESET()] + self.helper()
        allc = main + hel
        def after_sd0(L, stop):
            i = next(n for n, x in enumerate(L) if x.tag == 'sd0'); r = []
            for x in L[i:]:
                if stop(x): break
                if x.kind == 'vmem' or (x.pseudo == 'raw' and ('load' in x.text or 'store' in x.text)): r.append(x.text)
            return r
        assert after_sd0(main, lambda x: x.text == 'L_join:') == after_sd0(hel, lambda x: 'L_join' in x.text)
        check_tags(allc)
        temps = set(regs('s', 3, 13)) | set(regs('v', 28, 4)) | {('scc', 0), ('vcc_lo', 0), ('m0', 0), ('v', vFl), ('v', vP), ('v', vP+1), ('v', vU0), ('v', vU1)}
        check_streams(allc, temps, allow={(None, 'hfl'), (None, 'dma'), (None, 'fl')})
        allc = insert_nops(insert_waits(allc))
        self.ins = allc
        hdr = open('cdna_kernels/' + NAME + '.s.ref').read().split('\n')
        head = [l for l in hdr if l.startswith(';') and '@launch' not in l and 'Override launch' not in l and 'grid=ceil' not in l]
        txt = '\n'.join(head) + '\n' + f'; @launch grid=(256,1,1) block=(256,1,1) lds={LDS_BYTES}\n'
        txt += f'.amdgcn_target "amdgcn-amd-amdhsa--gfx950"\n.text\n.globl {NAME}_kernel\n.p2align 12\n.type {NAME}_kernel,@function\n{NAME}_kernel:\n'
        txt += render(allc) + 'L_codeend:\n'
        txt += f'''.section .rodata,"a"
.p2align 6
.amdhsa_kernel {NAME}_kernel
  .amdhsa_next_free_vgpr 512
  .amdhsa_next_free_sgpr 102
  .amdhsa_accum_offset 256
  .amdhsa_group_segment_fixed_size 0
  .amdhsa_kernarg_size 112
  .amdhsa_user_sgpr_count 2
  .amdhsa_user_sgpr_kernarg_segment_ptr 1
  .amdhsa_system_sgpr_workgroup_id_x 1
  .amdhsa_float_denorm_mode_32 3
.end_amdhsa_kernel
'''
        return txt

if __name__ == '__main__':
    out = sys.argv[1]
    kw = {}
    for a in sys.argv[2:]:
        k, v = a.split('=')
        try: v = int(v)
        except ValueError: pass
        kw[k] = v
    open(out, 'w').write(Gen(**kw).build())
```

```python
import sys, json
from asmlib import *

NAME = 'gated_mix__ssm_conv_h3__glu_gated_reglu__prompt'
WS_H   = 0
WS_KVT = 0x900000
WS_YT  = 0xB00000
WS_G   = 0xD00000
FL_H   = 0xD40000
FL_KV  = 0xD60000
FL_G   = 0xD68000
FL_Y   = 0xD80000
WS_PROF= 0xD20000
WS_SIZE= 0xE00000
L_W = 0
L_X = 81920
L_C = 32768
L_S = 98304
L_X0 = 0
L_X1 = 32768
L_Q = 147456
L_Y = 155648
LDS_BYTES = 163840
CSTR = 2368
UOFF = 9280

P_Q, P_K, P_V, P_SK, P_SSM, P_D, P_BX, P_WG, P_WU, P_WD, P_GW, P_OUT, P_DBG, P_WS = [16 + 2 * i for i in range(14)]
SX, SA, SB, SWS, SHS, SSM, SOUT = 44, 48, 52, 56, 60, 64, 68
sN = 72
sG = 74
sW, sW4K, sC0, sXb, sWb, sWo, sXo, sHo0, sHo1, sTB, sDB, sMASK, sSPIN, sD = range(88, 102)
STAMPS = [28, 30, 32, 24, 26, 38, 40, 42, 34]
sPW, sPX = 16, 20
def srd(n): return f's[{n}:{n+3}]'
def sp(n): return f's[{n}:{n+1}]'
def vr(n, k): return f'v[{n}:{n+k-1}]' if k > 1 else f'v{n}'
def ar(n, k): return f'a[{n}:{n+k-1}]'
def regs(t, n, k): return [(t, i) for i in range(n, n + k)]
vL, vL16 = 0, 1
vX, vW, vA, vB = 2, 6, 10, 14
vCA, vCB, vG0, vG1, vHl, vFl, vP, vN = 18, 19, 20, 21, 22, 23, 24, 26
vT = 28
vS = 2
vR0, vR1 = 20, 21
SWD = SSM; sSB = sXb
vQ = 12
vGW = 144 - 144 + 98; vGX = 102
vGL = 116
FA = [32, 56]; FB = [48, 72]
vD = 80; vCT = 98; vU0 = 110; vU1 = 111; vKV = 112
ACC1 = 128
CA = 32; CBR = 56
ACC2 = 32
HR = 160; NHR = 24
vBS = 128; vGA = 136; vGG = 152; vE = 154
vXR = 96
aWD = 0; aCV = 224

DEF = dict(prof=0, E=2, dma_gap=1, p_nonce=6, p_ssm=8, nA=44, wdgap=4, hflag=24, hpoll=40, hcheck=52,
           k1=7, a0=-35, a1=11, b0=1, b1=10, lag=24, c0=14, sleep=4, hrate=2,
           yflag=16, ypoll=68, ycheck=88, apart=100, gpoll=6, ldx='', ldw='', ldkv='nt', ldwd='', ldssm='nt', codepf=1, spin=200000, rot2='dx')

class Gen:
    def __init__(self, **kw):
        self.o = dict(DEF); self.o.update(kw)
        self.nlab = 0
        self.nstamp = 0
    def lab(self, base):
        self.nlab += 1; return f'L_{base}_{self.nlab}'
    def stamp(self, k, st='std'):
        if not self.o['prof'] or (self.o.get('stampset', 'std') != st and k < 8): return []
        x = I(f's_memtime {sp(STAMPS[k])}'); x.note = 'stamp'; return [x]
    def mk_srd(self, d, p, size, bias=0):
        o = []
        if bias:
            o += [I(f's_sub_u32 s{d}, s{p}, {bias}'), I(f's_subb_u32 s{d+1}, s{p+1}, 0')]
        else:
            o += [I(f's_mov_b64 {sp(d)}, {sp(p)}')]
        o += [I(f's_mov_b32 s{d+2}, {size + bias}'), I(f's_mov_b32 s{d+3}, 0x20000')]
        return o
    def ws_base(self):
        b = self.o.get('wsbase', 0) << 20
        return [I(f's_add_u32 s{P_WS}, s{P_WS}, {b}'), I(f's_addc_u32 s{P_WS+1}, s{P_WS+1}, 0')] if b else []
    def poll_issue(self, soff_reg, tag):
        return I(f'buffer_load_dwordx2 {vr(vP,2)}, v{vFl}, {srd(SWS)}, s{soff_reg} offen sc1', tag=tag)
    def poll_check(self, soff_reg):
        ok = self.lab('ok'); lp = self.lab('lp')
        if self.o.get('nopoll'): return [I(f'v_cmp_eq_u64 vcc, {sp(sN)}, {vr(vP,2)}')]
        return [I(f'v_cmp_eq_u64 vcc, {sp(sN)}, {vr(vP,2)}'), I('s_cmp_eq_u64 vcc, exec'), I(f's_cbranch_scc1 {ok}'),
                RAW(f's_mov_b32 s{sSPIN}, 0\n{lp}:\nbuffer_load_dwordx2 {vr(vP,2)}, v{vFl}, {srd(SWS)}, s{soff_reg} offen sc1\ns_waitcnt vmcnt(0)\n'
                    f'v_cmp_eq_u64 vcc, {sp(sN)}, {vr(vP,2)}\ns_add_u32 s{sSPIN}, s{sSPIN}, 1\ns_nop 1\ns_cmp_eq_u64 vcc, exec\ns_cbranch_scc1 {ok}\n'
                    f's_sleep {self.o["sleep"]}\ns_cmp_lt_u32 s{sSPIN}, {self.o["spin"]}\ns_cbranch_scc1 {lp}', defs=f'vcc scc', uses=f's{soff_reg} v{vFl}'),
                I(f'{ok}:')]
    def nonce_issue(self):
        return [I(f'v_mov_b32 v{vT}, 0'), I(f'global_load_dwordx2 {vr(vN,2)}, v{vT}, {sp(P_DBG)} sc1', tag='nonce')]
    def nonce_check(self):
        ok = self.lab('nok'); lp = self.lab('nlp')
        return [I(f'v_cmp_ne_u32 vcc, 0, v{vN}'), I('s_cmp_eq_u64 vcc, exec'), I(f's_cbranch_scc1 {ok}'),
                RAW(f's_mov_b32 s{sSPIN}, 0\nv_mov_b32 v{vT}, 0\n{lp}:\nglobal_load_dwordx2 {vr(vN,2)}, v{vT}, {sp(P_DBG)} sc1\ns_waitcnt vmcnt(0)\n'
                    f'v_cmp_ne_u32 vcc, 0, v{vN}\ns_add_u32 s{sSPIN}, s{sSPIN}, 1\ns_nop 1\ns_cmp_eq_u64 vcc, exec\ns_cbranch_scc1 {ok}\n'
                    f's_sleep {self.o["sleep"]}\ns_cmp_lt_u32 s{sSPIN}, {self.o["spin"]}\ns_cbranch_scc1 {lp}', defs=f'vcc scc v{vT}'),
                I(f'{ok}:'), I(f'v_readfirstlane_b32 s{sN}, v{vN}'), I(f'v_readfirstlane_b32 s{sN+1}, v{vN+1}')]
    def flag_store(self, tag, soff_reg, srdn=SWS):
        return [I(f'v_mov_b32 v{vT}, 0'), WAITVM(tag), I('s_mov_b64 exec, 1'),
                I(f'buffer_store_dwordx2 {vr(vN,2)}, v{vT}, {srd(srdn)}, s{soff_reg} offen sc1'), I('s_mov_b64 exec, -1')]

    def prologue(self):
        o = []; A = lambda t, **k: o.append(I(t, **k))
        A('s_cmp_ge_u32 s2, 256'); A('s_cbranch_scc1 L_end')
        if self.o['prof']: A('s_memrealtime s[74:75]'); A('s_memtime s[76:77]')
        if self.o.get('delay'):
            o.append(RAW(f's_mov_b32 s3, 0\nL_delay:\ns_nop 15\ns_nop 15\ns_nop 15\ns_nop 15\ns_add_u32 s3, s3, 1\ns_cmp_lt_u32 s3, {self.o["delay"]}\ns_cbranch_scc1 L_delay'))
        A('s_load_dwordx16 s[16:31], s[0:1], 0'); A('s_load_dwordx8 s[32:39], s[0:1], 64'); A('s_load_dwordx4 s[40:43], s[0:1], 96')
        A(f'v_lshrrev_b32 v1, 6, v0'); A(f'v_and_b32 v{vL}, 63, v0'); A(f'v_readfirstlane_b32 s{sW}, v1')
        A(f'v_lshlrev_b32 v{vL16}, 4, v{vL}')
        A(f's_lshl_b32 s{sW4K}, s{sW}, 12')
        A(f's_mov_b32 s{sMASK}, 0xffff0000')
        A('s_and_b32 s3, s2, 7'); A('s_lshr_b32 s4, s2, 3')
        A('s_and_b32 s5, s3, 3'); A('s_lshr_b32 s6, s3, 2')
        A('s_lshl_b32 s7, s5, 3'); A('s_lshl_b32 s8, s6, 2'); A('s_add_u32 s7, s7, s8'); A('s_and_b32 s8, s4, 3')
        A(f's_add_u32 s{sTB}, s7, s8'); A(f's_lshr_b32 s{sDB}, s4, 2')
        A('s_cmp_lt_u32 s2, 32'); A('s_cbranch_scc1 L_helper')
        return o

    def gemm_prologue(self):
        o = []; A = lambda t, **k: o.append(I(t, **k))
        A('s_sub_u32 s4, s4, 4'); A('s_and_b32 s7, s4, 3'); A('s_lshr_b32 s8, s4, 2')
        A('s_lshl_b32 s9, s5, 2'); A('s_add_u32 s9, s9, s7')
        A('s_mul_i32 s10, s6, 7'); A('s_add_u32 s10, s10, s8')
        A('s_lshl_b32 s11, s5, 1'); A('s_add_u32 s11, s11, s6')
        if self.o.get('norot'): A(f's_mov_b32 s{sC0}, 0')
        else: A(f's_and_b32 s{sC0}, s11, 7')
        A(f's_lshl_b32 s{sXb}, s9, 17'); A(f's_lshl_b32 s11, s{sW}, 15'); A(f's_add_u32 s{sXb}, s{sXb}, s11')
        A(f's_mul_i32 s{sWb}, s{sW}, {8*3584}'); A('s_lshl_b32 s11, s10, 8'); A(f's_add_u32 s{sWb}, s{sWb}, s11')
        A(f'v_lshrrev_b32 v28, 3, v{vL}'); A('v_lshlrev_b32 v28, 10, v28')
        A(f'v_and_b32 v29, 7, v{vL}'); A(f'v_lshrrev_b32 v30, 4, v{vL}'); A('v_xor_b32 v29, v29, v30'); A('v_lshl_add_u32 v28, v29, 4, v28')
        A(f'v_lshrrev_b32 v29, 4, v{vL}'); A('v_mul_u32_u24 v30, 3584, v29')
        A(f'v_bfe_u32 v31, v{vL}, 1, 3'); A('v_lshlrev_b32 v29, 1, v29'); A('v_xor_b32 v31, v31, v29')
        A(f'v_and_b32 v29, 1, v{vL}'); A('v_lshlrev_b32 v29, 4, v29'); A('v_lshl_or_b32 v31, v31, 5, v29')
        for k in range(4):
            A(f's_add_u32 s11, s8, {k}'); A('s_and_b32 s11, s11, 3')
            A('s_and_b32 s12, s11, 1'); A('s_lshl_b32 s12, s12, 6'); A('s_lshl_b32 s13, s11, 13')
            A(f'v_xor_b32 v29, s12, v28'); A(f'v_add_u32 v{vX+k}, s13, v29')
            A(f's_add_u32 s11, s7, {k}'); A('s_and_b32 s11, s11, 3')
            A('s_and_b32 s12, s11, 1'); A('s_lshl_b32 s12, s12, 5'); A('s_lshr_b32 s13, s11, 1'); A(f's_mul_i32 s13, s13, {4*3584}')
            A(f'v_xor_b32 v29, s12, v31'); A(f'v_add3_u32 v{vW+k}, v29, v30, s13')
        A(f's_lshl_b32 s{sXo}, s{sC0}, 7'); A(f's_add_u32 s{sXo}, s{sXo}, s{sXb}')
        A(f's_mul_i32 s{sWo}, s{sC0}, {64*3584}'); A(f's_add_u32 s{sWo}, s{sWo}, s{sWb}')
        A(f's_and_b32 s11, s{sW}, 1'); A(f's_lshr_b32 s12, s{sW}, 1')
        A('s_lshl_b32 s13, s9, 1'); A('s_add_u32 s13, s13, s11')
        A('s_mul_i32 s14, s13, 112'); A('s_lshl_b32 s15, s10, 3'); A('s_add_u32 s14, s14, s15'); A('s_lshl_b32 s15, s12, 2'); A('s_add_u32 s14, s14, s15')
        A(f's_lshl_b32 s{sHo0}, s14, 11'); A(f's_add_u32 s{sHo1}, s{sHo0}, 4096')
        A('s_mul_i32 s13, s13, 28'); A('s_lshl_b32 s14, s10, 1'); A('s_add_u32 s13, s13, s14'); A('s_add_u32 s13, s13, s12'); A('s_lshl_b32 s13, s13, 7')
        A(f's_add_u32 s13, s13, {FL_H}')
        o.append(WAITLGKM0())
        o += self.ws_base()
        if self.o['prof']: A('s_mov_b32 s0, s74'); A('s_mov_b32 s1, s76')
        o += self.mk_srd(SX, P_Q, 0x200000)
        A('s_and_b32 s11, s7, 1'); A('s_cmp_eq_u32 s11, 0')
        A(f's_cselect_b64 {sp(SA)}, {sp(P_WG)}, {sp(P_WU)}'); A(f's_cselect_b64 {sp(SB)}, {sp(P_WU)}, {sp(P_WG)}')
        for d in (SA, SB): A(f's_mov_b32 s{d+2}, {512*3584}'); A(f's_mov_b32 s{d+3}, 0x20000')
        for k in range(4):
            A(f's_add_u32 s11, s7, {k}'); A('s_and_b32 s11, s11, 3'); A('s_lshl_b32 s11, s11, 10'); A(f's_add_u32 s{sPW+k}, s11, s{sW4K}')
            A(f's_add_u32 s11, s8, {k}'); A('s_and_b32 s11, s11, 3'); A('s_lshl_b32 s11, s11, 10'); A(f's_add_u32 s{sPX+k}, s11, s{sW4K}')
        return [x for x in o if x is not None]

    def dma_x(self, c, ks, so):
        fl = self.o['ldx']
        return [[I(f's_add_u32 m0, s{sPX+k}, {L_X + (c % 3) * 16384}'), I(f'buffer_load_dwordx4 v{vX+k}, {srd(SX)}, s{so} offen {fl} lds', tag=f'x{c}')] for k in ks]
    def dma_w(self, H, ks, so):
        fl = self.o['ldw']
        return [[I(f's_add_u32 m0, s{sPW+k}, {L_W + ((H + 1) % 5) * 16384}'), I(f'buffer_load_dwordx4 v{vW+k}, {srd(SB if k & 1 else SA)}, s{so} offen {fl} lds', tag=f'w{H}')] for k in ks]
    def off_w(self, H, d):
        o = [I(f's_add_u32 s{d}, s{sC0}, {H>>1}'), I(f's_and_b32 s{d}, s{d}, 7'), I(f's_mul_i32 s{d}, s{d}, {64*3584}'), I(f's_add_u32 s{d}, s{d}, s{sWb}')]
        if H & 1: o.append(I(f's_add_u32 s{d}, s{d}, {32*3584}'))
        return o
    def off_x(self, c, d):
        return [I(f's_add_u32 s{d}, s{sC0}, {c}'), I(f's_and_b32 s{d}, s{d}, 7'), I(f's_lshl_b32 s{d}, s{d}, 7'), I(f's_add_u32 s{d}, s{d}, s{sXb}')]

    def gemm_addr(self):
        o = []; A = lambda t, **k: o.append(I(t, **k))
        A(f's_lshr_b32 s3, s{sW}, 1'); A('s_lshl_b32 s3, s3, 2')
        A(f'v_bfe_u32 v28, v{vL}, 2, 2')
        A(f'v_bfe_u32 v29, v{vL}, 1, 1')
        A('v_lshl_or_b32 v30, v28, 1, v29')
        A('v_lshlrev_b32 v28, 8, v28'); A('v_lshl_or_b32 v28, v29, 10, v28')
        A(f'v_lshrrev_b32 v29, 5, v{vL}'); A('v_lshl_or_b32 v28, v29, 12, v28')
        A(f'v_bfe_u32 v29, v{vL}, 4, 1'); A('v_lshl_or_b32 v28, v29, 4, v28')
        A(f'v_and_b32 v29, 1, v{vL}'); A('v_lshl_or_b32 v28, v29, 3, v28')
        A('v_xor_b32 v30, s3, v30')
        for a in range(4):
            A(f'v_xor_b32 v29, {a}, v30'); A(f'v_lshl_or_b32 v{vA+a}, v29, 5, v28')
        A(f's_and_b32 s3, s{sW}, 1'); A('s_lshl_b32 s3, s3, 13'); A(f's_add_u32 s3, s3, {L_X}')
        A(f'v_and_b32 v28, 31, v{vL}'); A('v_lshlrev_b32 v28, 7, v28'); A('v_add_u32 v28, s3, v28')
        A(f'v_bfe_u32 v29, v{vL}, 1, 3'); A(f'v_lshrrev_b32 v30, 5, v{vL}'); A('v_xor_b32 v29, v29, v30')
        for s in range(4):
            A(f'v_xor_b32 v30, {2*s}, v29'); A(f'v_lshl_add_u32 v{vB+s}, v30, 4, v28')
        return o

    def frag_reads(self, S):
        st = S & 1; H = S >> 1; c = S >> 2
        fa, fb = FA[st], FB[st]
        wo = L_W + ((H + 1) % 5) * 16384 + st * 8192
        xo = (c % 3) * 16384
        def rb(b): return I(f'ds_read_b128 {vr(fb+4*b,4)}, v{vB+(S&3)} offset:{xo + 4096*b}', tag=f'B{S}_{b}')
        def ra(a): return [I(f'ds_read_b64_tr_b16 {vr(fa+4*a+2*j,2)}, v{vA+a} offset:{wo + 2048*j}', tag=f'A{S}_{a}') for j in range(2)]
        pre = []
        hi = (H + 1) % 5 == 4
        if hi: wo -= 65536
        if st == 0 and hi: pre = [I(f'v_add_u32 v{vA+a}, 0x10000, v{vA+a}') for a in range(4)]
        if st == 0 and H > 0 and H % 5 == 4: pre = [I(f'v_subrev_u32 v{vA+a}, 0x10000, v{vA+a}') for a in range(4)]
        return [rb(0)] + pre + ra(0) + [rb(1)] + ra(1) + ra(2) + ra(3)

    def late_setup(self):
        o = []; A = lambda t, **k: o.append(I(t, **k))
        o += self.mk_srd(SWS, P_WS, WS_SIZE) + self.mk_srd(SOUT, P_OUT, 0x200000)
        A(f's_lshr_b32 s5, s{sW}, 1'); A('s_lshl_b32 s6, s2, 1'); A('s_add_u32 s5, s5, s6')
        A('s_lshl_b32 s6, s5, 12')
        A(f's_add_u32 s{SSM}, s{P_SSM}, s6'); A(f's_addc_u32 s{SSM+1}, s{P_SSM+1}, 0'); A(f's_mov_b32 s{SSM+2}, 4096'); A(f's_mov_b32 s{SSM+3}, 0x20000')
        A('s_lshl_b32 s6, s2, 2'); A(f'v_mov_b32 v{vT}, s6')
        A(f'global_load_dword v{vT+1}, v{vT}, {sp(P_D)}', tag='dval')
        A(f's_lshl_b32 s6, s{sW}, 14'); A(f's_add_u32 s6, s6, {L_C}')
        A(f'v_and_b32 v30, 3, v{vL}'); A(f'v_mul_u32_u24 v30, {CSTR}, v30')
        A(f'v_and_b32 v31, 28, v{vL}'); A('v_lshl_add_u32 v30, v31, 1, v30')
        A(f'v_lshrrev_b32 v31, 5, v{vL}'); A('v_lshlrev_b32 v31, 4, v31')
        A('v_sub_u32 v30, v30, v31'); A('s_add_u32 s7, s6, 16'); A(f'v_add_u32 v{vCA}, s7, v30')
        A(f'v_and_b32 v30, 31, v{vL}'); A('v_mul_u32_u24 v30, 144, v30'); A(f's_add_u32 s7, s6, {UOFF}'); A(f'v_add3_u32 v{vCB}, v30, v31, s7')
        A(f's_mul_i32 s9, s{sTB}, {112*2048}'); A(f'v_add_u32 v{vHl}, s9, v{vL16}')
        r2 = self.o['rot2']
        A('s_mov_b32 s7, 0')
        if 'd' in r2: A(f's_mul_i32 s8, s{sDB}, 7'); A('s_add_u32 s8, s8, 2'); A('s_lshr_b32 s7, s8, 2')
        if 't' in r2: A(f's_and_b32 s8, s{sTB}, 3'); A('s_mul_i32 s8, s8, 7'); A('s_add_u32 s8, s8, 1'); A('s_lshr_b32 s8, s8, 1'); A('s_add_u32 s7, s7, s8')
        if 'x' in r2: A('s_and_b32 s8, s2, 7'); A('s_mul_i32 s8, s8, 7'); A('s_lshr_b32 s8, s8, 2'); A('s_add_u32 s7, s7, s8')
        A('s_sub_u32 s8, s7, 14'); A('s_cmp_ge_u32 s7, 14'); A('s_cselect_b32 s7, s8, s7')
        A(f's_mul_i32 s8, s{sW}, {28*2048}'); A('s_lshl_b32 s7, s7, 12')
        A(f's_add_u32 s9, s8, {14*4096}')
        A(f's_add_u32 s{sG}, s7, s8')
        for g in range(1, 14):
            A(f's_add_u32 s{sG+g}, s{sG+g-1}, 4096'); A(f's_cmp_eq_u32 s{sG+g}, s9'); A(f's_cselect_b32 s{sG+g}, s8, s{sG+g}')
        A(f'v_readfirstlane_b32 s{sD}, v{vT+1}'); A(f's_lshr_b32 s7, s{sW}, 1'); A('s_lshl_b32 s7, s7, 4'); A(f's_lshr_b32 s{sD}, s{sD}, s7'); A(f's_lshl_b32 s{sD}, s{sD}, 16')
        return o

    def zero_fill(self):
        o = []; A = lambda t, **k: o.append(I(t, **k))
        A(f's_lshl_b32 s6, s{sW}, 14'); A(f's_add_u32 s6, s6, {L_C + UOFF}'); A(f'v_add_u32 v{vU0}, s6, v{vL16}')
        for i in range(4): A(f'v_mov_b32 v{vCT+i}, 0')
        for i in range(5): A(f'ds_write_b128 v{vU0}, {vr(vCT,4)} offset:{1024*i}')
        return o
    def ssm_loads(self):
        o = []; A = lambda t, **k: o.append(I(t, **k))
        fl = self.o['ldssm']
        A(f's_and_b32 s6, s{sW}, 1'); A('s_mul_i32 s6, s6, 2048'); A('s_sub_u32 s6, s6, 128')
        A(f'v_add_u32 v30, s6, v{vL16}')
        A('v_add_u32 v31, 16, v30'); A('v_add_u32 v29, 1024, v30')
        A(f'v_cmp_gt_i32 vcc, 0, v30'); A('v_bfrev_b32 v28, 1'); A('v_cndmask_b32 v30, v30, v28, vcc')
        A(f'v_cmp_gt_i32 vcc, 0, v31'); A('v_cndmask_b32 v31, v31, v28, vcc')
        A(f'buffer_load_dwordx4 {vr(vD,4)}, v30, {srd(SSM)}, 0 offen {fl}')
        A(f'buffer_load_dwordx2 {vr(vD+4,2)}, v31, {srd(SSM)}, 0 offen {fl}')
        A(f'buffer_load_dwordx4 {vr(vD+6,4)}, v29, {srd(SSM)}, 0 offen {fl}')
        A(f'buffer_load_dwordx2 {vr(vD+10,2)}, v29, {srd(SSM)}, 0 offen offset:16 {fl}')
        A(f'buffer_load_dwordx4 {vr(vD+12,4)}, v29, {srd(SSM)}, 0 offen offset:1024 {fl}')
        A(f'buffer_load_dwordx2 {vr(vD+16,2)}, v29, {srd(SSM)}, 0 offen offset:1040 {fl}')
        return o
    def copies_build(self):
        o = []; A = lambda t, **k: o.append(I(t, **k))
        A(f's_lshl_b32 s6, s{sW}, 14'); A(f's_add_u32 s6, s6, {L_C}'); A(f'v_add_u32 v{vU1}, s6, v{vL16}')
        for p in range(3):
            d = vD + 6 * p
            for i in range(4): A(f'v_alignbyte_b32 v{vCT+i}, v{d+i+1}, v{d+i}, 2')
            for i in range(4): A(f'v_mov_b32 v{vCT+4+i}, v{d+i+1}')
            for i in range(4): A(f'v_alignbyte_b32 v{vCT+8+i}, v{d+i+2}, v{d+i+1}, 2')
            w = [I(f'ds_write_b128 v{vU1}, {vr(vCT+4*c,4)} offset:{c*CSTR + 1024*p}') for c in range(3)]
            w.append(I(f'ds_write_b128 v{vU1}, {vr(d+2,4)} offset:{3*CSTR + 1024*p}'))
            if p < 2: o += w
            else: o.append([I('s_mov_b64 exec, 0xff')] + w + [I('s_mov_b64 exec, -1')])
        return o
    def kv_poll_addr(self):
        return [I(f'v_and_b32 v{vFl}, 7, v{vL}'), I(f'v_lshlrev_b32 v{vFl}, 8, v{vFl}'),
                I('s_lshr_b32 s14, s2, 5'), I('s_lshl_b32 s14, s14, 11'), I('s_and_b32 s15, s2, 2'), I('s_lshl_b32 s15, s15, 6'), I('s_add_u32 s14, s14, s15'), I(f's_add_u32 s14, s14, {FL_KV}')]
    def kv_loads(self):
        o = []; A = lambda t, **k: o.append(I(t, **k))
        A(f's_lshr_b32 s5, s{sW}, 1'); A('s_lshl_b32 s6, s2, 1'); A('s_add_u32 s5, s5, s6'); A('s_lshl_b32 s5, s5, 12'); A(f's_add_u32 s5, s5, {WS_KVT}')
        for i in range(4): A(f'buffer_load_dwordx4 {vr(vKV+4*i,4)}, v{vL16}, {srd(SWS)}, s5 offen offset:{1024*i} sc1')
        return o
    def u_writes(self):
        o = []; A = lambda t, **k: o.append(I(t, **k))
        A(f's_and_b32 s5, s{sW}, 1'); A('s_mul_i32 s7, s5, 2304')
        A(f's_lshl_b32 s6, s{sW}, 14'); A(f's_add_u32 s6, s6, {L_C + UOFF + 15*144}'); A('s_add_u32 s6, s6, s7')
        A(f'v_lshrrev_b32 v30, 3, v{vL}'); A('v_mul_u32_u24 v30, 144, v30'); A(f'v_and_b32 v31, 7, v{vL}'); A('v_lshl_add_u32 v30, v31, 4, v30')
        A(f'v_add_u32 v{vU0}, s6, v30'); A('s_sub_u32 s7, 2304, s7'); A(f'v_add_u32 v{vU1}, s7, v{vU0}')
        for i in (2, 3): A(f'ds_write_b128 v{vU1}, {vr(vKV+4*i,4)} offset:{1152*(i-2)}')
        for i in (0, 1): A(f'ds_write_b128 v{vU0}, {vr(vKV+4*i,4)} offset:{1152*i}')
        return o
    def stage_setup(self):
        o = []; A = lambda t, **k: o.append(I(t, **k))
        o += self.mk_srd(SWD, P_WD, 1792 * 1024)
        A(f'v_lshrrev_b32 v28, 3, v{vL}'); A(f'v_bfe_u32 v29, v{vL}, 4, 1'); A('v_lshlrev_b32 v29, 2, v29'); A(f'v_and_b32 v30, 7, v{vL}'); A('v_xor_b32 v29, v29, v30')
        A('v_lshlrev_b32 v28, 10, v28'); A('v_lshl_add_u32 v28, v29, 4, v28'); A(f's_lshl_b32 s5, s{sDB}, 7'); A(f'v_add_u32 v{vS}, s5, v28')
        A(f'v_add_u32 v{vS+1}, {8192 - 1024}, v{vS}'); A(f'v_add_u32 v{vS+2}, 16384, v{vS}'); A(f'v_add_u32 v{vS+3}, {24576 - 1024}, v{vS}')
        A(f's_lshl_b32 s5, s{sW}, 13'); A(f's_add_u32 s{sSB}, s5, {L_S}')
        A(f'v_lshrrev_b32 v28, 5, v{vL}'); A(f'v_bfe_u32 v29, v{vL}, 2, 2'); A('v_lshl_or_b32 v28, v28, 2, v29'); A('v_lshlrev_b32 v28, 7, v28'); A(f'v_add_u32 v28, s{sSB}, v28')
        A(f'v_and_b32 v29, 1, v{vL}'); A('v_lshl_add_u32 v28, v29, 3, v28')
        A(f'v_bfe_u32 v29, v{vL}, 4, 1'); A(f'v_bfe_u32 v30, v{vL}, 1, 1'); A('v_lshl_or_b32 v29, v29, 1, v30')
        A(f'v_bfe_u32 v30, v{vL}, 3, 1'); A('v_lshl_or_b32 v29, v30, 2, v29')
        A(f's_and_b32 s5, s{sW}, 1'); A('s_lshl_b32 s5, s5, 2'); A(f's_and_b32 s6, s{sW}, 2'); A('s_or_b32 s5, s5, s6'); A('v_xor_b32 v29, s5, v29')
        A(f'v_lshl_add_u32 v{vR0}, v29, 4, v28'); A('v_xor_b32 v29, 4, v29'); A(f'v_lshl_add_u32 v{vR1}, v29, 4, v28')
        return o
    def slot(self, k):
        sg = (k + 4) % 8
        return (sg & 3) * 2048 + (sg >> 2) * 32768
    def wd_dma(self, s_):
        fl = self.o['ldwd']
        o = []
        if s_ % 2 == 0: o.append(I(f's_lshl_b32 s{sXo}, s{sG+(s_>>1)}, 3'))
        o.append(I(f's_add_u32 m0, s{sSB}, {self.slot(s_)}'))
        L = [I(f'buffer_load_dwordx4 v{vS+2*(s_&1)+j}, {srd(SWD)}, s{sXo} offen offset:{1024*j} {fl} lds', tag=f'sd{s_}') for j in range(2)]
        if s_ >= 8: o.insert(0, NEED(regs('a', aWD + 8 * (s_ - 8), 8)))
        return [o + L]
    def wd_read(self, s_):
        return [WAITVM(f'sd{s_}')] + [I(f'ds_read_b64_tr_b16 {ar(aWD+8*s_+4*dt+2*j,2)}, v{vR0+dt} offset:{self.slot(s_) + 1024*j}', tag=f'wd{s_}_{dt}') for dt in range(2) for j in range(2)]

    def gemm1(self):
        O = self.o; E = O['E']
        o = self.gemm_prologue()
        flat = lambda L: [y for x in L for y in (x if isinstance(x, list) else [x])]
        if O.get('ptouch') and O.get('ptfirst'): o += self.page_touch()
        o += flat(self.dma_x(0, range(4), sXo)) + flat(self.dma_w(0, range(4), sWo)) + self.off_w(1, sWo) + flat(self.dma_w(1, range(4), sWo))
        if O['codepf']: o += self.code_prefetch()
        if O.get('ptouch') and not O.get('ptfirst'): o += self.page_touch()
        if E:
            o += self.off_x(1, 4) + flat(self.dma_x(1, [0], 4))
            for U in range(2, 2 + E): o += self.off_w(U, 3) + flat(self.dma_w(U, [0], 3))
        o += self.stamp(0)
        o += self.gemm_addr()
        o += self.mk_srd(SHS, P_WS, WS_SIZE)
        o += [WAITVM(['x0', 'w0']), I('s_barrier')] + self.stamp(1) + self.frag_reads(0)
        W = Weave()
        for S in range(32):
            st = S & 1
            for i in range(8):
                a, b = i >> 1, i & 1
                acc = ACC1 + 32 * a + 16 * b
                c = '0' if S == 0 else vr(acc, 16)
                m = I(f'v_mfma_f32_32x32x16_bf16 {vr(acc,16)}, {vr(FA[st]+4*a,4)}, {vr(FB[st]+4*b,4)}, {c}',
                      expect=[(regs('v', FA[st]+4*a, 4), f'A{S}_{a}'), (regs('v', FB[st]+4*b, 4), f'B{S}_{b}')])
                pre = []
                if i == 0 and st == 1:
                    H = (S + 1) >> 1
                    pre = [WAITLGKM0(), WAITVM([f'w{H}', f'x{H>>1}']), I('s_barrier')]
                W.mfma(m, pre)
        for S in range(31): W.place(self.frag_reads(S + 1), 8 * S, per_gap=2)
        pstart = lambda H: max(0, 8 * (2 * H - 1))
        late = [1, 2, 3] if E else [0, 1, 2, 3]
        g = 0
        for H in range(14):
            items = []
            if H % 2 == 0 and H // 2 + 1 < 8: items += [[x] for x in self.off_x(H // 2 + 1, sXo)] + self.dma_x(H // 2 + 1, late, sXo)
            items += [[x] for x in self.off_w(H + 2, sWo)] + self.dma_w(H + 2, late, sWo)
            nlate = len(items)
            if E and H + 2 + E < 16: items += [[x] for x in self.off_w(H + 2 + E, 3)] + self.dma_w(H + 2 + E, [0], 3)
            if E and H % 2 == 0 and H // 2 + 2 < 8: items += [[x] for x in self.off_x(H // 2 + 2, 4)] + self.dma_x(H // 2 + 2, [0], 4)
            stream('dma', items)
            g = max(g, pstart(H))
            for it in items:
                isd = any(x.kind == 'vmem' for x in it)
                g = W.place([it], g)
                if any(x.tag == 'x7' for x in it): gx = g
                if isd and H > 0: g += O['dma_gap']
            assert g <= pstart(H + 2), (H, g)
        gd = g
        g = W.place(stream('late', self.late_setup()), pstart(1) + 8)
        assert g < pstart(O['p_nonce']), g
        W.place(stream('nonce', [self.nonce_issue()]), pstart(O['p_nonce']) + 13)
        W.place(stream('nonce', [self.nonce_check()]), pstart(O['p_nonce'] + 2) + 5)
        W.place(stream('ssm', self.ssm_loads()), pstart(O['p_ssm']) + 13)
        g = W.place(stream('stg', self.stage_setup()), max(gx + 1, pstart(O['p_ssm'] + 2)))
        gw = max(g, gd + 1)
        g = W.place(stream('zero', self.zero_fill()), max(g, pstart(14)))
        g = W.place(stream('cop', self.copies_build()), g)
        for k in range(2): gw = W.place(stream('wd', self.wd_dma(k)), gw, extra=4) + O['wdgap']
        gw = W.place(stream('kvp', self.kv_poll_addr() + [self.poll_issue(14, 'kvp')]), max(gw, O.get('kvg', 8 * 29 + 4)), extra=8)
        gw = W.place(stream('gate', self.gate_loads()), max(gw, g), extra=8)
        for k in range(2, 4): gw = W.place(stream('wd', self.wd_dma(k)), gw, extra=8) + 2
        for k in range(8): W.gaps[32 * k] += self.stamp(k, 'g1')
        o += W.flatten()
        o += self.stamp(2)
        return o

    def page_touch(self):
        o = []; A = lambda t, **k: o.append(I(t, **k))
        sk = self.lab('pt')
        A(f's_cmp_lg_u32 s{sW}, {self.o["ptouch"] - 1}'); A(f's_cbranch_scc1 {sk}')
        A(f'v_min_u32 v28, 6, v{vL}'); A('v_lshlrev_b32 v28, 21, v28'); A('v_mov_b32 v29, 0')
        t = ['s_mov_b64 exec, 0x7f', f'global_load_dword v126, v28, {sp(P_WS)}', 's_mov_b64 exec, 1']
        for p in (P_OUT, P_WD, P_SSM, P_D, P_GW, P_DBG): t.append(f'global_load_dword v126, v29, {sp(p)}')
        t.append('s_mov_b64 exec, -1')
        o.append(RAW('\n'.join(t)))
        A(f'{sk}:')
        return o

    def code_prefetch(self):
        o = []; A = lambda t, **k: o.append(I(t, **k))
        sk = self.lab('pf'); pc = self.lab('pc')
        A(f's_cmp_lg_u32 s{sW}, 3'); A(f's_cbranch_scc1 {sk}')
        A('s_getpc_b64 s[6:7]'); A(f'{pc}:')
        A(f's_sub_u32 s6, s6, {pc}-{NAME}_kernel'); A('s_subb_u32 s7, s7, 0')
        A('s_lshr_b32 s3, s2, 3'); A('s_and_b32 s3, s3, 7'); A('s_mul_i32 s3, s3, 5120')
        A(f'v_min_u32 v28, 39, v{vL}'); A('v_lshlrev_b32 v28, 7, v28'); A('v_add_u32 v28, s3, v28')
        A(f'v_min_u32 v28, L_codeend-{NAME}_kernel-4, v28')
        o.append(RAW('global_load_dword v127, v28, s[6:7]'))
        A(f'{sk}:')
        return o

    def conv(self, W):
        O = self.o
        pre = []
        def ra(sg):
            d = CA + 4 * (sg % 6)
            return [I(f'ds_read_b64 {vr(d+2*j,2)}, v{vCA} offset:{32*sg + 8*j}', tag=f'cA{sg}') for j in range(2)]
        def rb(st):
            d = CBR + 4 * (st % 4)
            return I(f'ds_read_b128 {vr(d,4)}, v{vCB} offset:{(15-(st>>2))*144 + 32*(3-(st&3))}', tag=f'cB{st}')
        pre += ra(0) + [rb(0)] + ra(2) + ra(1) + [rb(1)] + ra(3)
        base = len(W.spine)
        for st in range(64):
            for m in range(2):
                sg = st + 2 * m
                acc = aCV + 16 * m
                c = '0' if st == 0 else ar(acc, 16)
                W.mfma(I(f'v_mfma_f32_32x32x16_bf16 {ar(acc,16)}, {vr(CA+4*(sg%6),4)}, {vr(CBR+4*(st%4),4)}, {c}',
                         expect=[(regs('v', CA+4*(sg%6), 4), f'cA{sg}'), (regs('v', CBR+4*(st%4), 4), f'cB{st}')]), pre if (st == 0 and m == 0) else None)
        for st in range(64):
            it = []
            if st + 2 < 64: it.append(rb(st + 2))
            if st + 4 < 66: it += ra(st + 4)
            W.place(it[:2], base + 2 * st); W.place(it[2:], base + 2 * st + 1)
        return base

    def h_epilogue(self):
        o = []
        for a in range(4):
            for b in range(2):
                R = ACC1 + 32 * a + 16 * b
                for h in (0, 8):
                    for i in range(4): o.append(I(f'v_max_f32 v{R+h+i}, 0, v{R+h+i}'))
                    for i in range(4): o.append(I(f'v_mul_f32 v{R+h+i}, v{R+h+i}, v{R+h+4+i}'))
                for q, src in enumerate((0, 2, 8, 10)): o.append(I(f'v_cvt_pk_bf16_f32 v{R+4+q}, v{R+src}, v{R+src+1}'))
                so = sHo0 if a < 2 else sHo1
                if self.o.get('nohst'): continue
                o.append(I(f'buffer_store_dwordx4 {vr(R+4,4)}, v{vL16}, {srd(SHS)}, s{so} offen offset:{(a&1)*2048 + b*1024} {self.o.get("sth", "sc1")}', tag='hst'))
        return o
    def h_load(self, i):
        p, s = divmod(i, 28)
        return I(f'buffer_load_dwordx4 {vr(HR+4*(i%NHR),4)}, v{vHl}, {srd(SWS)}, s{sG+(s>>1)} offen offset:{(s&1)*2048 + p*1024} {self.o.get("ldh", "sc1")}', tag=f'h{i}')
    def h_poll_addr(self):
        return [I(f'v_min_u32 v{vFl}, 6, v{vL}'), I(f'v_lshlrev_b32 v{vFl}, 7, v{vFl}'),
                I(f's_mul_i32 s14, s{sTB}, {28*128}'), I(f's_mul_i32 s15, s{sW}, {7*128}'), I('s_add_u32 s14, s14, s15'), I(f's_add_u32 s14, s14, {FL_H}')]

    def conv_epilogue(self):
        a = []; A = lambda t, **k: a.append(I(t, **k))
        A(f's_lshl_b32 s6, s{sW}, 14'); A(f's_add_u32 s6, s6, {L_C}')
        A(f'v_and_b32 v30, 31, v{vL}'); A('v_mul_u32_u24 v30, 272, v30'); A(f'v_lshrrev_b32 v31, 5, v{vL}'); A('v_lshl_add_u32 v30, v31, 4, v30'); A('v_add_u32 v30, s6, v30')
        addr = a; a = []
        for m in range(2):
            for g in range(4): A(f'ds_write_b128 v30, {ar(aCV+16*m+4*g,4)} offset:{(32*m+8*g)*4}')
        wr = a; a = []
        A(f's_and_b32 s5, s{sW}, 2'); A('s_lshl_b32 s5, s5, 14'); A(f's_add_u32 s5, s5, {L_C}')
        A(f's_and_b32 s7, s{sW}, 1'); A('s_lshl_b32 s7, s7, 4')
        A(f'v_lshrrev_b32 v28, 3, v{vL}'); A('v_add_u32 v28, s7, v28'); A(f'v_and_b32 v29, 7, v{vL}')
        A('v_mul_u32_u24 v31, 272, v28'); A('v_lshl_add_u32 v31, v29, 5, v31'); A(f'v_add_u32 v{vGG}, s5, v31')
        A('v_mul_u32_u24 v31, 144, v28'); A('v_lshl_add_u32 v31, v29, 4, v31'); A(f's_add_u32 s5, s5, {UOFF + 15*144}'); A(f'v_add_u32 v{vGG+1}, s5, v31')
        A(f's_lshr_b32 s5, s{sW}, 1'); A('s_lshl_b32 s6, s2, 1'); A('s_add_u32 s5, s5, s6')
        A(f's_and_b32 s7, s{sW}, 1'); A('s_lshl_b32 s12, s5, 12'); A('s_lshl_b32 s8, s7, 11'); A('s_add_u32 s12, s12, s8'); A(f's_add_u32 s12, s12, {WS_YT}')
        A('s_lshr_b32 s8, s5, 6'); A('s_lshl_b32 s8, s8, 1'); A('s_add_u32 s8, s8, s7'); A('s_lshl_b32 s8, s8, 13'); A('s_and_b32 s11, s5, 63'); A('s_lshl_b32 s11, s11, 7')
        A('s_add_u32 s11, s11, s8'); A(f's_add_u32 s11, s11, {FL_Y}')
        addr2 = a; a = []
        P0 = vXR; P1 = vXR + 8; U = vXR + 16; T = vXR + 20; Y = vXR + 24
        for rho in range(2):
            for x in range(2): A(f'ds_read_b128 {vr(P0+4*x,4)}, v{vGG} offset:{rho*2176 + 16*x}')
            for x in range(2): A(f'ds_read_b128 {vr(P1+4*x,4)}, v{vGG} offset:{16384 + rho*2176 + 16*x}')
            A(f'ds_read_b128 {vr(U,4)}, v{vGG+1} offset:{rho*1152}')
            for e in range(8): A(f'v_add_f32 v{P0+e}, v{P0+e}, v{P1+e}')
            for q in range(4):
                A(f'v_lshlrev_b32 v{T}, 16, v{U+q}'); A(f'v_and_b32 v{T+1}, s{sMASK}, v{U+q}')
                A(f'v_fmac_f32 v{P0+7-2*q}, s{sD}, v{T}'); A(f'v_fmac_f32 v{P0+6-2*q}, s{sD}, v{T+1}')
            for q in range(4): A(f'v_cvt_pk_bf16_f32 v{Y+4*rho+q}, v{P0+2*q}, v{P0+2*q+1}')
            A(f'buffer_store_dwordx4 {vr(Y+4*rho,4)}, v{vL16}, {srd(SWS)}, s12 offen offset:{1024*rho} sc1', tag='yst')
        return addr, wr, addr2, a

    def exch_write(self, p):
        o = []
        for j, (dt, gp, m) in enumerate(((0, 1, 2), (1, 0, 1), (1, 1, 3))):
            R = ACC2 + 32 * p + 16 * dt + 8 * gp
            for x in range(2): o.append(I(f'ds_write_b128 v{vE+j}, {vr(R+4*x,4)} offset:{(L_X1 if p else L_X0) + j*2048 + 1024*x}'))
        return o
    def exch_read(self, p):
        return [I(f'ds_read_b128 {vr(vXR+8*j+4*x,4)}, v{vE+3} offset:{(L_X1 if p else L_X0) + j*2048 + 1024*x}') for j in range(3) for x in range(2)]
    def exch_sum(self, p, dst):
        o = []; R = ACC2 + 32 * p
        for e in range(8): o.append(I(f'v_add_f32 v{vXR+e}, v{vXR+e}, v{vXR+8+e}'))
        for e in range(8): o.append(I(f'v_add_f32 v{dst+e}, v{R+e}, v{vXR+16+e}'))
        for e in range(8): o.append(I(f'v_add_f32 v{dst+e}, v{dst+e}, v{vXR+e}'))
        return o
    def final_addr(self):
        o = []; A = lambda t, **k: o.append(I(t, **k))
        for j, m in enumerate((2, 1, 3)):
            A(f's_xor_b32 s5, s{sW}, {m}'); A('s_mul_i32 s5, s5, 6144'); A(f'v_add_u32 v{vE+j}, s5, v{vL16}')
        A(f's_mul_i32 s5, s{sW}, 6144'); A(f'v_add_u32 v{vE+3}, s5, v{vL16}')
        return o
    def q_dma(self):
        o = []; A = lambda t, **k: o.append(I(t, **k))
        A(f'v_lshrrev_b32 v28, 3, v{vL}'); A('v_lshlrev_b32 v28, 10, v28'); A(f'v_and_b32 v29, 7, v{vL}'); A(f'v_lshrrev_b32 v30, 4, v{vL}'); A('v_xor_b32 v29, v29, v30')
        A(f'v_lshl_add_u32 v{vQ}, v29, 4, v28'); A(f'v_xor_b32 v{vQ+1}, 64, v{vQ}'); A(f'v_add_u32 v{vQ+1}, 7168, v{vQ+1}')
        A(f's_lshl_b32 s5, s{sTB}, 16'); A(f's_lshl_b32 s6, s{sW}, 14'); A('s_add_u32 s5, s5, s6'); A(f's_lshl_b32 s6, s{sDB}, 7'); A('s_add_u32 s5, s5, s6')
        A(f's_lshr_b32 s6, s{sW4K}, 1'); A(f's_add_u32 m0, s6, {L_Q}')
        for n in range(2): A(f'buffer_load_dwordx4 v{vQ+n}, {srd(SX)}, s5 offen offset:{1024*n} lds', tag='q')
        return o[:-3] + [o[-3:]]
    def y_poll_addr(self):
        o = []; A = lambda t, **k: o.append(I(t, **k))
        A(f's_and_b32 s10, s{sW}, 1'); A('s_lshl_b32 s10, s10, 1'); A(f's_lshr_b32 s15, s{sW}, 1'); A('s_add_u32 s10, s10, s15')
        A(f'v_and_b32 v{vFl}, 15, v{vL}'); A(f'v_lshlrev_b32 v{vFl}, 7, v{vFl}')
        A(f's_lshl_b32 s14, s{sDB}, 1'); A(f's_lshr_b32 s15, s{sTB}, 4'); A('s_add_u32 s14, s14, s15'); A('s_lshl_b32 s14, s14, 13')
        A('s_lshl_b32 s15, s10, 11'); A('s_add_u32 s14, s14, s15'); A(f's_add_u32 s14, s14, {FL_Y}')
        return o
    def y_dma(self):
        o = []; A = lambda t, **k: o.append(I(t, **k))
        A(f'v_lshrrev_b32 v28, 3, v{vL}'); A('v_lshlrev_b32 v28, 12, v28'); A(f'v_and_b32 v29, 7, v{vL}'); A('v_lshl_add_u32 v28, v29, 4, v28')
        A(f'v_add_u32 v29, {8*4096 - 1024}, v28')
        A(f's_lshl_b32 s5, s{sDB}, 18'); A('s_lshl_b32 s6, s10, 16'); A('s_add_u32 s5, s5, s6'); A(f's_lshl_b32 s6, s{sTB}, 7'); A('s_add_u32 s5, s5, s6'); A(f's_add_u32 s5, s5, {WS_YT}')
        A('s_lshl_b32 s6, s10, 11'); A(f's_add_u32 m0, s6, {L_Y}')
        for n in range(2): A(f'buffer_load_dwordx4 v{28+n}, {srd(SWS)}, s5 offen offset:{1024*n} sc1 lds', tag='y')
        return o[:-3] + [o[-3:]]
    def gate_loads(self):
        o = []; A = lambda t, **k: o.append(I(t, **k))
        A(f's_lshl_b32 s5, s{sTB}, 3'); A(f's_add_u32 s5, s5, s{sDB}'); A('s_lshl_b32 s5, s5, 2'); A(f's_add_u32 s5, s5, s{sW}'); A('s_lshl_b32 s5, s5, 11')
        A(f'global_load_dwordx4 {vr(vGW,4)}, v{vL16}, {sp(P_GW)}')
        for i in range(2): A(f'buffer_load_dwordx4 {vr(vGX+4*i,4)}, v{vL16}, {srd(SX)}, s5 offen offset:{1024*i}')
        return o
    def gate_compute(self):
        o = []; A = lambda t, **k: o.append(I(t, **k))
        Z = vGX
        for i in range(2):
            R = vGX + 4 * i
            A(f'v_dot2_f32_bf16 v{R}, v{R}, v{vGW}, 0')
            for m in range(1, 4): A(f'v_dot2_f32_bf16 v{R}, v{R+m}, v{vGW+m}, v{R}')
        A(f'v_permlane32_swap_b32 v{Z}, v{Z+4}'); A(f'v_add_f32 v{Z}, v{Z}, v{Z+4}')
        A(f'v_mov_b32 v{Z+1}, v{Z}'); A(f'v_permlane16_swap_b32 v{Z}, v{Z+1}'); A(f'v_add_f32 v{Z}, v{Z}, v{Z+1}')
        for sh in (8, 4, 2, 1): A(f'v_add_f32_dpp v{Z}, v{Z}, v{Z} row_ror:{sh} row_mask:0xf bank_mask:0xf')
        A(f'v_cvt_pk_bf16_f32 v{Z}, v{Z}, v{Z}'); A(f'v_and_b32 v{Z}, s{sMASK}, v{Z}')
        A(f'v_mul_f32 v{Z}, 0xbfb8aa3b, v{Z}'); A(f'v_exp_f32 v{Z}, v{Z}'); A(f'v_add_f32 v{Z}, 1.0, v{Z}'); A(f'v_rcp_f32 v{Z}, v{Z}')
        A(f'v_cvt_pk_bf16_f32 v{Z}, v{Z}, v{Z}'); A(f'v_and_b32 v{Z}, s{sMASK}, v{Z}'); A(f'v_sub_f32 v{Z+1}, 1.0, v{Z}'); A(f'v_cvt_pk_bf16_f32 v{Z}, v{Z}, v{Z+1}')
        A(f'v_mov_b32 v{Z+1}, s{sN}')
        A(f'v_lshrrev_b32 v{Z+2}, 5, v{vL}'); A(f'v_lshlrev_b32 v{Z+2}, 3, v{Z+2}')
        A(f's_lshl_b32 s5, s{sTB}, 3'); A(f's_add_u32 s5, s5, s{sDB}'); A('s_lshl_b32 s5, s5, 2'); A(f's_add_u32 s5, s5, s{sW}'); A('s_lshl_b32 s5, s5, 4'); A(f's_add_u32 s5, s5, {WS_G}')
        o.append([I('s_mov_b32 exec_lo, 1'), I('s_mov_b32 exec_hi, 1'), I(f'buffer_store_dwordx2 {vr(Z,2)}, v{Z+2}, {srd(SWS)}, s5 offen sc1'), I('s_mov_b64 exec, -1')])
        return o
    def g_issue(self):
        o = []; A = lambda t, **k: o.append(I(t, **k))
        A(f'v_and_b32 v{vFl}, 31, v{vL}'); A(f'v_lshlrev_b32 v{vFl}, 3, v{vFl}'); A(f's_lshl_b32 s14, s{sTB}, 9'); A(f's_add_u32 s14, s14, {WS_G}')
        for p in range(2): A(f'buffer_load_dwordx2 {vr(vGL+2*p,2)}, v{vFl}, {srd(SWS)}, s14 offen offset:{256*p} sc1')
        return o
    def g_check(self):
        ok = self.lab('gok'); lp = self.lab('glp')
        cmpx = f'v_cmp_eq_u32 vcc, s{sN}, v{vGL+1}\nv_cmp_eq_u32 s[6:7], s{sN}, v{vGL+3}\ns_add_u32 s{sSPIN}, s{sSPIN}, 1\ns_nop 1\ns_and_b64 vcc, vcc, s[6:7]'
        ld = '\n'.join(f'buffer_load_dwordx2 {vr(vGL+2*p,2)}, v{vFl}, {srd(SWS)}, s14 offen offset:{256*p} sc1' for p in range(2))
        mv = [I(f'v_mov_b32 v{vGG+p}, v{vGL+2*p}') for p in range(2)]
        if self.o.get('nopoll'): return mv
        return [[I(f'v_cmp_eq_u32 vcc, s{sN}, v{vGL+1}'), I(f'v_cmp_eq_u32 s[6:7], s{sN}, v{vGL+3}'), I('s_and_b64 vcc, vcc, s[6:7]'), I('s_cmp_eq_u64 vcc, exec'), I(f's_cbranch_scc1 {ok}'),
                RAW(f's_mov_b32 s{sSPIN}, 0\n{lp}:\n{ld}\ns_waitcnt vmcnt(0)\n{cmpx}\ns_cmp_eq_u64 vcc, exec\ns_cbranch_scc1 {ok}\n'
                    f's_sleep {self.o["sleep"]}\ns_cmp_lt_u32 s{sSPIN}, {self.o["spin"]}\ns_cbranch_scc1 {lp}', defs='vcc scc s6 s7', uses=f's14 v{vFl}'),
                I(f'{ok}:')]] + mv
    def a_part(self):
        o = []; A = lambda t, **k: o.append(I(t, **k))
        Q = vXR + 24; Yv = vXR + 28; T = vXR + 24
        A(f'v_lshrrev_b32 v28, 5, v{vL}'); A(f'v_bfe_u32 v29, v{vL}, 2, 2'); A('v_lshl_or_b32 v28, v28, 2, v29'); A('v_lshlrev_b32 v28, 7, v28')
        A(f'v_bfe_u32 v29, v{vL}, 4, 1'); A('v_lshl_or_b32 v28, v29, 5, v28'); A(f'v_and_b32 v29, 3, v{vL}'); A('v_lshl_or_b32 v28, v29, 3, v28')
        A('s_lshl_b32 s6, s10, 11'); A(f's_add_u32 s6, s6, {L_Y}'); A('v_add_u32 v28, s6, v28')
        A(f'v_bfe_u32 v29, v{vL}, 1, 3'); A('s_lshl_b32 s6, s10, 1'); A('v_xor_b32 v29, s6, v29')
        A(f'v_and_b32 v30, 31, v{vL}'); A('v_lshlrev_b32 v30, 7, v30'); A(f'v_lshrrev_b32 v31, 5, v{vL}'); A('v_lshl_or_b32 v30, v31, 3, v30'); A(f'v_add_u32 v30, {L_Q}, v30')
        A('v_xor_b32 v31, 1, v29'); A('v_lshl_add_u32 v29, v29, 4, v30'); A('v_lshl_add_u32 v30, v31, 4, v30')
        o.append(WAITVM('y'))
        QY = 120
        GF = 31
        for p in range(2):
            for gq in range(2):
                A(f'ds_read_b64 {vr(QY+2*gq,2)}, v{29+gq} offset:{4096*p}')
                A(f'ds_read_b64_tr_b16 {vr(QY+4+2*gq,2)}, v28 offset:{1024*gq + 64*p}')
            A(f'v_lshlrev_b32 v{GF}, 16, v{vGG+p}'); A(f'v_and_b32 v{vGG+p}, s{sMASK}, v{vGG+p}')
            for gq in range(2):
                for h in range(2):
                    d = vGA + 8 * p + 4 * gq + 2 * h
                    q, y = QY + 2 * gq + h, QY + 4 + 2 * gq + h
                    A(f'v_lshlrev_b32 v{d}, 16, v{q}'); A(f'v_and_b32 v{d+1}, s{sMASK}, v{q}')
                    A(f'v_lshlrev_b32 v{q}, 16, v{y}'); A(f'v_and_b32 v{y}, s{sMASK}, v{y}')
                    A(f'v_mul_f32 v{d}, v{d}, v{q}'); A(f'v_mul_f32 v{d+1}, v{d+1}, v{y}')
                    A(f'v_mul_f32 v{d}, v{d}, v{GF}'); A(f'v_mul_f32 v{d+1}, v{d+1}, v{GF}')
        return o
    def out_addr(self):
        o = []; A = lambda t, **k: o.append(I(t, **k))
        A(f'v_and_b32 v28, 31, v{vL}'); A('v_lshlrev_b32 v28, 10, v28'); A(f'v_lshrrev_b32 v29, 5, v{vL}'); A(f'v_lshl_or_b32 v{vE+4}, v29, 4, v28')
        A(f's_lshl_b32 s15, s{sTB}, 16'); A(f's_lshl_b32 s5, s{sDB}, 7'); A('s_add_u32 s15, s15, s5'); A('s_lshl_b32 s5, s10, 5'); A('s_add_u32 s15, s15, s5')
        A('s_add_u32 s9, s15, 32768')
        return o
    def out_store(self, p, B):
        o = []; A = lambda t, **k: o.append(I(t, **k))
        G = vGA + 8 * p
        for e in range(8): A(f'v_fmac_f32 v{G+e}, v{vGG+p}, v{B+e}')
        for q in range(4): A(f'v_cvt_pk_bf16_f32 v{B+q}, v{G+2*q}, v{G+2*q+1}')
        A(f'v_permlane32_swap_b32 v{B}, v{B+2}'); A(f'v_permlane32_swap_b32 v{B+1}, v{B+3}')
        A(f'buffer_store_dwordx4 {vr(B,4)}, v{vE+4}, {srd(SOUT)}, s{15 if p == 0 else 9} offen {self.o.get("stout", "")}')
        return o

    def tail(self):
        O = self.o
        W = Weave()
        for i in range(O['nA']): W.mfma(None)
        cb = self.conv(W)
        gb = len(W.spine)
        for i in range(56):
            p, s = divmod(i, 28)
            for dt in range(2):
                acc = ACC2 + 32 * p + 16 * dt
                c = '0' if s == 0 else vr(acc, 16)
                W.mfma(I(f'v_mfma_f32_32x32x16_bf16 {vr(acc,16)}, {ar(aWD+8*s+4*dt,4)}, {vr(HR+4*(i%NHR),4)}, {c}',
                         expect=[(regs('a', aWD+8*s+4*dt, 4), f'wd{s}_{dt}'), (regs('v', HR+4*(i%NHR), 4), f'h{i}')]))
        cg = lambda st: cb + 2 * st
        g = W.place(stream('kvp', [self.poll_check(14)] + self.kv_loads()), 0)
        ge = W.place(self.h_epilogue(), g)
        assert ge < cb, ge
        dpos = lambda k: cb + O['a0'] + (k - 4) * O['a1'] if k < O['k1'] else cb + O['b0'] + ((k - O['k1']) * O['b1']) // 2
        rpos = lambda k: 4 + 4 * k if k < 4 else max(dpos(k) + O['lag'], cb + O['c0'] + 3 * (k - 4))
        ev = [(rpos(k), 0, k) for k in range(28)]
        for k in range(4, 28): ev.append((max(dpos(k), rpos(k - 8) if k >= 8 else 0), 1, k))
        ev.sort()
        g = 0; gl = {}
        for pos, kind, k in ev:
            if kind == 0: g = max(g, W.place(stream('wd', self.wd_read(k)), max(g, pos), per_gap=3, extra=12))
            else: g = W.place(stream('wd', self.wd_dma(k)), max(g, pos), extra=12); gl[k] = g
        gwd = g
        assert g < gb - 1, (g, gb)
        g = W.place(stream('uw', self.u_writes()), cb - 4, end=cb - 1, extra=40)
        assert g < cb, (g, cb)
        g = W.place(stream('gate', self.gate_compute()), cb)
        g = W.place(stream('hfl', [self.flag_store('hst', 13, SHS)]), max(g, cb + O['hflag']), extra=12)
        assert g < cg(O['hpoll']), g
        W.place(stream('fa', self.final_addr()), g + 1)
        W.place(stream('hp', self.h_poll_addr() + [self.poll_issue(14, 'hp')]), cg(O['hpoll']))
        g = W.place(stream('hp', [self.poll_check(14)]), cg(O['hcheck']), extra=12)
        addr, wr, addr2, post = [stream('ce', z) for z in self.conv_epilogue()]
        g2 = W.place(addr + addr2, g + 1)
        assert g2 < gb
        npre = 0; g = max(g + 1, gl[27] + 1)
        while g < gb and npre < NHR:
            W.place([self.h_load(npre)], g, extra=12); npre += 1; g += O['hrate']
        for i in range(npre, 56):
            earliest = gb + 2 * (i - NHR) + 1 if i >= NHR else gb
            pos = max(earliest, gb + 2 * (i - npre))
            W.place([self.h_load(i)], pos)
        g = W.place(wr, gb + 1)
        g = W.place([[WAITLGKM0(), I('s_barrier')]], g + 2)
        g = W.place(post, g)
        W.place(self.stamp(5), g)
        g = W.place(stream('fa', self.q_dma()), g)
        g = W.place(stream('gp', self.g_issue()), max(g, gb + O['gpoll']))
        g = W.place(stream('ce', [self.flag_store('yst', 11)]), g + O['yflag'])
        g = W.place(stream('gp', self.g_check()), g + 1)
        g = W.place(stream('y', self.y_poll_addr() + [self.poll_issue(14, 'yp')]), max(g, gb + O['ypoll']))
        g = W.place(self.exch_write(0), max(g, gb + 56 + 3))
        g = W.place([[WAITLGKM0(), WAITVM('q'), I('s_barrier')]], g + 3)
        g = W.place(self.exch_read(0), g)
        g = W.place(self.exch_sum(0, vBS), g + 2)
        g = W.place(stream('y', [self.poll_check(14)] + self.y_dma()), max(g, gb + O['ycheck']))
        g = W.place(stream('y', self.out_addr()), g)
        g = W.place(stream('y', self.a_part()), max(g + 10, gb + O['apart']))
        W.gaps[cb] += self.stamp(3); W.gaps[gb] += self.stamp(4)
        for k in range(8):
            W.gaps[cb + 16 * k] += self.stamp(k, 'conv'); W.gaps[gb + 14 * k] += self.stamp(k, 'g2')
        o = W.flatten()
        o += self.stamp(6)
        o += stream('y', self.out_store(0, vBS))
        o += self.exch_write(1) + [WAITLGKM0(), I('s_barrier')] + self.exch_read(1) + self.exch_sum(1, vBS) + stream('y', self.out_store(1, vBS))
        if O.get('fixend'):
            o += [RAW(f's_or_b32 s3, s2, s{sW}\ns_cmp_lg_u32 s3, 0\ns_cbranch_scc1 L_fe2\ns_add_u32 s0, s0, {O["fixend"]}\nL_fe:\ns_memrealtime s[6:7]\ns_waitcnt lgkmcnt(0)\ns_sub_u32 s6, s6, s0\ns_cmp_lt_i32 s6, 0\ns_cbranch_scc1 L_fe\nL_fe2:')]
        if O['prof']:
            o += self.stamp(7) + [DRAIN()] + self.stamp(8) + [I('s_waitcnt lgkmcnt(0)')]
            o += [I('s_lshl_b32 s5, s2, 2'), I(f's_add_u32 s5, s5, s{sW}'), I('s_lshl_b32 s5, s5, 6'), I(f's_add_u32 s5, s5, {WS_PROF}'), I('v_mov_b32 v28, 0'), I('s_mov_b64 exec, 1')]
            for k, r in enumerate(STAMPS):
                o += [I(f'v_mov_b32 v29, s{r}'), I(f'buffer_store_dword v29, v28, {srd(SWS)}, s5 offen offset:{4*k}')]
            o += [I('s_memrealtime s[6:7]'), I('s_waitcnt lgkmcnt(0)'), I('v_mov_b32 v29, s6'), I(f'buffer_store_dword v29, v28, {srd(SWS)}, s5 offen offset:40')]
            if O.get('dbgtime'):
                o += [I('v_not_b32 v30, s0'), I(f'global_atomic_umax v28, v30, {sp(P_DBG)} offset:16'), I(f'global_atomic_umax v28, v29, {sp(P_DBG)} offset:20')]
                for k, r in enumerate(STAMPS[:8]):
                    o += [I(f's_sub_u32 s6, s{r}, s1'), I('v_mov_b32 v31, s6'), I(f'global_atomic_umax v28, v31, {sp(P_DBG)} offset:{24+4*k}')]
            o += [I('v_mov_b32 v30, s0'), I(f'buffer_store_dword v30, v28, {srd(SWS)}, s5 offen offset:36'), I('v_mov_b32 v31, s1'), I(f'buffer_store_dword v31, v28, {srd(SWS)}, s5 offen offset:44')]
        return o

    def helper(self):
        O = self.o
        o = []; A = lambda t, **k: o.append(I(t, **k))
        A('L_helper:')
        A('s_and_b32 s8, s2, 7'); A('s_lshr_b32 s9, s2, 3')
        VB = 65 * 1088
        A(f'v_lshrrev_b32 v28, 3, v{vL}'); A(f'v_and_b32 v29, 7, v{vL}'); A('v_lshlrev_b32 v30, 10, v28'); A('v_lshl_add_u32 v32, v29, 4, v30')
        A('s_lshl_b32 s11, s9, 19'); A('s_lshl_b32 s13, s8, 7'); A('s_add_u32 s11, s11, s13')
        A(f's_lshl_b32 s12, s{sW}, 15'); A('s_add_u32 s12, s12, s11')
        A(f's_mul_i32 s10, s{sW}, {4*1088}')
        kvs = 8192
        if O.get('kvcontig'):
            kvs = 1024
            A(f'v_lshlrev_b32 v32, 4, v{vL}'); A('s_lshl_b32 s11, s2, 16'); A(f's_lshl_b32 s12, s{sW}, 12'); A('s_add_u32 s12, s12, s11')
        A('s_cmp_eq_u32 s9, 0'); A('s_cselect_b32 s13, 0x80000000, 0'); A('v_or_b32 v33, s13, v32')
        A('s_cselect_b32 s13, 0, 8192'); A('s_sub_u32 s13, s11, s13')
        A('v_lshlrev_b32 v30, 6, v28'); A('s_lshl_b32 s15, s8, 9'); A(f's_and_b32 s14, s{sW}, 1'); A('s_lshl_b32 s14, s14, 5'); A('s_add_u32 s15, s15, s14'); A('v_add_u32 v30, s15, v30')
        A('s_waitcnt lgkmcnt(0)')
        o += self.ws_base()
        if self.o['prof']: A('s_mov_b32 s0, s74'); A('s_mov_b32 s1, s76')
        o += self.mk_srd(SA, P_K, 0x200000) + self.mk_srd(SB, P_V, 0x200000)
        fl = O['ldkv']
        def dmas(sg):
            r = []
            for j in range(4):
                b = 16 * sg + j
                r.append([I(f's_add_u32 m0, s10, {(b+1)*1088}'), I(f's_add_u32 s14, s12, {b*kvs}'),
                          I(f'buffer_load_dwordx4 v32, {srd(SA)}, s14 offen {fl} lds', tag=f'kv{sg}')])
                r.append([I(f's_add_u32 m0, s10, {VB + b*1088}'), I(f'buffer_load_dwordx4 v32, {srd(SB)}, s14 offen {fl} lds', tag=f'kv{sg}')])
            return r
        flat = lambda L: [y for x in L for y in (x if isinstance(x, list) else [x])]
        sk = self.lab('h0')
        A(f's_cmp_lg_u32 s{sW}, 0'); A(f's_cbranch_scc1 {sk}')
        o.append(RAW(f's_mov_b32 m0, 0\ns_nop 0\nbuffer_load_dwordx4 v33, {srd(SA)}, s13 offen {fl} lds'))
        A(f'{sk}:')
        o += flat(dmas(0))
        for i in range(2): A(f'global_load_dwordx4 {vr(64+4*i,4)}, v30, {sp(P_SK)} offset:{16*i}')
        o += self.mk_srd(SWS, P_WS, WS_SIZE) + self.mk_srd(SX, P_Q, 0x200000)
        sk = self.lab('np')
        A(f's_or_b32 s3, s2, s{sW}'); A('s_cmp_lg_u32 s3, 0'); A(f's_cbranch_scc1 {sk}')
        o.append(RAW(f'v_mov_b32 v28, {FL_KV}\nbuffer_load_dwordx2 v[24:25], v28, {srd(SWS)}, 0 offen sc1\ns_waitcnt vmcnt(0)\n'
                     'v_add_u32 v24, 0x9E3779B8, v24\nv_or_b32 v24, 1, v24\nv_add_u32 v25, 0x7F4A7C15, v25\nv_mov_b32 v28, 0\n'
                     f's_mov_b64 exec, 1\nglobal_store_dwordx2 v28, v[24:25], {sp(P_DBG)} sc1\ns_mov_b64 exec, -1'))
        A(f'{sk}:')
        o += flat(dmas(1))
        if O['codepf']: o += stream('pf', self.code_prefetch())
        o += self.stamp(0)
        A(f'v_lshrrev_b32 v28, 3, v{vL}'); A(f'v_and_b32 v29, 7, v{vL}')
        A(f's_lshr_b32 s3, s{sW}, 1'); A(f's_and_b32 s4, s{sW}, 1'); A('s_mul_i32 s5, s3, 8704'); A('s_lshl_b32 s6, s4, 3'); A('s_add_u32 s5, s5, s6')
        A('v_mul_u32_u24 v31, 1088, v29'); A('v_lshl_add_u32 v31, v28, 4, v31'); A('v_add_u32 v34, s5, v31'); A(f'v_add_u32 v35, {VB}, v34')
        A('v_lshlrev_b32 v30, 15, v28'); A('v_lshl_add_u32 v30, v29, 4, v30'); A('s_lshl_b32 s5, s4, 14'); A('s_lshl_b32 s6, s3, 7'); A('s_add_u32 s5, s5, s6'); A('v_add_u32 v36, s5, v30')
        A('s_lshl_b32 s4, s8, 18'); A('s_lshl_b32 s5, s9, 10'); A('s_add_u32 s4, s4, s5'); A(f's_add_u32 s4, s4, {WS_KVT}')
        A('s_lshl_b32 s13, s8, 4'); A('s_lshl_b32 s5, s9, 2'); A('s_add_u32 s13, s13, s5'); A(f's_add_u32 s13, s13, s{sW}'); A('s_lshl_b32 s13, s13, 7'); A(f's_add_u32 s13, s13, {FL_KV}')
        S0 = 40; KR = 128; VR = 150; KF = 168; VF = 184; RS = 188; PO = 196
        for e in range(4):
            for j in range(4):
                src = 64 + 2 * e + (j >> 1)
                if j & 1: A(f'v_and_b32 v{S0+4*j+e}, s{sMASK}, v{src}')
                else: A(f'v_lshlrev_b32 v{S0+4*j+e}, 16, v{src}')
        for sg in range(4):
            o += [WAITVM(f'kv{sg}'), I('s_barrier')]
            c = []; C = lambda t, **k: c.append(I(t, **k))
            for i in range(-3, 8):
                off = (16*sg + 1) * 1088 + i * 128 if i >= 0 else 16*sg * 1088 + (8 + i) * 128
                C(f'ds_read_b64 {vr(KR+2*(i+3),2)}, v34 offset:{off}')
                if i >= 0: C(f'ds_read_b64 {vr(VR+2*i,2)}, v35 offset:{16*sg*1088 + i*128}')
            def unpackk(i):
                for m in range(2):
                    d = KF + 4 * ((i + 4) & 3) + 2 * m
                    C(f'v_lshlrev_b32 v{d}, 16, v{KR+2*(i+3)+m}'); C(f'v_and_b32 v{d+1}, s{sMASK}, v{KR+2*(i+3)+m}')
            for i in range(-3, 0): unpackk(i)
            for i in range(8):
                unpackk(i)
                for m in range(2):
                    C(f'v_lshlrev_b32 v{VF+2*m}, 16, v{VR+2*i+m}'); C(f'v_and_b32 v{VF+2*m+1}, s{sMASK}, v{VR+2*i+m}')
                R = RS + 4 * (i & 1)
                kf = lambda j, m: vr(KF + 4 * ((i - j + 4) & 3) + 2 * m, 2)
                for m in range(2): C(f'v_pk_mul_f32 {vr(R+2*m,2)}, {kf(3,m)}, {vr(S0+12+2*m,2)}')
                for j in (2, 1, 0):
                    for m in range(2): C(f'v_pk_fma_f32 {vr(R+2*m,2)}, {kf(j,m)}, {vr(S0+4*j+2*m,2)}, {vr(R+2*m,2)}')
                for m in range(2): C(f'v_pk_mul_f32 {vr(R+2*m,2)}, {vr(R+2*m,2)}, {vr(VF+2*m,2)}')
                if i & 1:
                    q = (7 - i) // 2
                    for e in range(4): C(f'v_cvt_pk_bf16_f32 v{PO+4*e+q}, v{RS+4+e}, v{RS+e}')
            for e in range(4):
                C(f's_add_u32 s6, s4, {e*4096 + 256*sg}')
                C(f'buffer_store_dwordx4 {vr(PO+4*e,4)}, v36, {srd(SWS)}, s6 offen sc1', tag='kvst')
            ld = dmas(sg + 2) if sg < 2 else []
            if sg == 2: ld = [stream('late', self.late_setup())] + [stream('ssm', self.ssm_loads())]
            body = c[:19]; rest = c[19:]
            step = max(1, (len(rest) - 10) // max(1, len(ld)))
            k = 0
            for n, x in enumerate(rest):
                if n % step == 0 and k < len(ld): body += ld[k]; k += 1
                body.append(x)
            while k < len(ld): body += ld[k]; k += 1
            o += body
            if sg == 0: o += stream('nonce', self.nonce_issue())
            if sg == 1: o += stream('nonce', self.nonce_check())
        o += self.stamp(1)
        o += stream('fl', self.flag_store('kvst', 13))
        o += self.stamp(2)
        o += [WAITLGKM0(), I('s_barrier')]
        o += stream('stg', self.stage_setup())
        for k in range(2): o += flat(stream('wd', self.wd_dma(k)))
        o += stream('kvp', self.kv_poll_addr() + [self.poll_issue(14, 'kvp')])
        o += stream('zero', self.zero_fill()) + stream('cop', self.copies_build()) + stream('gate', self.gate_loads())
        for k in range(2, 4): o += flat(stream('wd', self.wd_dma(k)))
        o += self.mk_srd(SHS, P_WS, 0)
        A(f's_mov_b32 s{sHo0}, 0'); A(f's_mov_b32 s{sHo1}, 0'); A('s_mov_b32 s13, 0')
        o += [WAITLGKM0(), I('s_nop 7'), I('s_branch L_join')]
        return flat(o)

    def build(self):
        flat = lambda L: [y for x in L for y in (x if isinstance(x, list) else [x])]
        main = self.prologue() + flat(self.gemm1()) + [I('L_join:')] + self.tail() + [I('L_end:'), I('s_endpgm')]
        main = flat(main)
        hel = [RESET()] + self.helper()
        allc = main + hel
        def after_sd0(L, stop):
            i = next(n for n, x in enumerate(L) if x.tag == 'sd0'); r = []
            for x in L[i:]:
                if stop(x): break
                if x.kind == 'vmem' or (x.pseudo == 'raw' and ('load' in x.text or 'store' in x.text)): r.append(x.text)
            return r
        assert after_sd0(main, lambda x: x.text == 'L_join:') == after_sd0(hel, lambda x: 'L_join' in x.text)
        check_tags(allc)
        temps = set(regs('s', 3, 13)) | set(regs('v', 28, 4)) | {('scc', 0), ('vcc_lo', 0), ('m0', 0), ('v', vFl), ('v', vP), ('v', vP+1), ('v', vU0), ('v', vU1)}
        check_streams(allc, temps, allow={(None, 'hfl'), (None, 'dma'), (None, 'fl')})
        allc = insert_nops(insert_waits(allc))
        self.ins = allc
        hdr = open('cdna_kernels/' + NAME + '.s.ref').read().split('\n')
        head = [l for l in hdr if l.startswith(';') and '@launch' not in l and 'Override launch' not in l and 'grid=ceil' not in l]
        txt = '\n'.join(head) + '\n' + f'; @launch grid=(256,1,1) block=(256,1,1) lds={LDS_BYTES}\n'
        txt += f'.amdgcn_target "amdgcn-amd-amdhsa--gfx950"\n.text\n.globl {NAME}_kernel\n.p2align 12\n.type {NAME}_kernel,@function\n{NAME}_kernel:\n'
        txt += render(allc) + 'L_codeend:\n'
        txt += f'''.section .rodata,"a"
.p2align 6
.amdhsa_kernel {NAME}_kernel
  .amdhsa_next_free_vgpr 512
  .amdhsa_next_free_sgpr 102
  .amdhsa_accum_offset 256
  .amdhsa_group_segment_fixed_size 0
  .amdhsa_kernarg_size 112
  .amdhsa_user_sgpr_count 2
  .amdhsa_user_sgpr_kernarg_segment_ptr 1
  .amdhsa_system_sgpr_workgroup_id_x 1
  .amdhsa_float_denorm_mode_32 3
.end_amdhsa_kernel
'''
        return txt

if __name__ == '__main__':
    out = sys.argv[1]
    kw = {}
    for a in sys.argv[2:]:
        k, v = a.split('=')
        try: v = int(v)
        except ValueError: pass
        kw[k] = v
    open(out, 'w').write(Gen(**kw).build())
```

```python
import sys, json
from asmlib import *

NAME = 'gated_mix__ssm_conv_h3__glu_gated_reglu__prompt'
WS_H   = 0
WS_KVT = 0x900000
WS_YT  = 0xB00000
WS_G   = 0xD00000
FL_H   = 0xD40000
FL_KV  = 0xD60000
FL_G   = 0xD68000
FL_Y   = 0xD80000
WS_PROF= 0xD20000
WS_SIZE= 0xE00000
L_W = 0
L_X = 81920
L_C = 32768
L_S = 98304
L_X0 = 0
L_X1 = 32768
L_Q = 147456
L_Y = 155648
LDS_BYTES = 163840
CSTR = 2368
UOFF = 9280

P_Q, P_K, P_V, P_SK, P_SSM, P_D, P_BX, P_WG, P_WU, P_WD, P_GW, P_OUT, P_DBG, P_WS = [16 + 2 * i for i in range(14)]
SX, SA, SB, SWS, SHS, SSM, SOUT = 44, 48, 52, 56, 60, 64, 68
sN = 72
sG = 74
sW, sW4K, sC0, sXb, sWb, sWo, sXo, sHo0, sHo1, sTB, sDB, sMASK, sSPIN, sD = range(88, 102)
STAMPS = [28, 30, 32, 24, 26, 38, 40, 42, 34]
sPW, sPX = 16, 20
sCP = sW4K
def srd(n): return f's[{n}:{n+3}]'
def sp(n): return f's[{n}:{n+1}]'
def vr(n, k): return f'v[{n}:{n+k-1}]' if k > 1 else f'v{n}'
def ar(n, k): return f'a[{n}:{n+k-1}]'
def regs(t, n, k): return [(t, i) for i in range(n, n + k)]
vL, vL16 = 0, 1
vX, vW, vA, vB = 2, 6, 10, 14
vCA, vCB, vG0, vG1, vHl, vFl, vP, vN = 18, 19, 20, 21, 22, 23, 24, 26
vT = 28
vS = 2
vR0, vR1 = 20, 21
SWD = SSM; sSB = sXb
vQ = 12
vGW = 144 - 144 + 98; vGX = 102
vGL = 116
vDV = 21
FA = [32, 56]; FB = [48, 72]
vD = 80; vCT = 98; vU0 = 110; vU1 = 111; vKV = 112
ACC1 = 128
CA = 32; CBR = 56
ACC2 = 32
HR = 160; NHR = 24
vBS = 128; vGA = 136; vGG = 152; vE = 154
vXR = 96
aWD = 0; aCV = 224

DEF = dict(prof=0, E=2, dma_gap=1, p_nonce=6, p_ssm=8, nA=50, wdgap=4, stfirst=1, hflag=0, hpoll=22, hcheck=32, htouch=1, hstart=53,
           k1=6, a0=-7, a1=3, b0=1, b1=9, lag=24, c0=6, r0=20, sleep=4, hrate=2,
           yflag=16, ypoll=68, ycheck=88, apart=100, gpoll=6, ldx='', ldw='', ldkv='nt', ldwd='', ldssm='nt', codepf=1, spin=200000, rot2='x', wdtouch=1, cswap=0)

class Gen:
    def __init__(self, **kw):
        self.o = dict(DEF); self.o.update(kw)
        self.nlab = 0
        self.nstamp = 0
    def lab(self, base):
        self.nlab += 1; return f'L_{base}_{self.nlab}'
    def stamp(self, k, st='std'):
        if not self.o['prof'] or (self.o.get('stampset', 'std') != st and k < 8): return []
        x = I(f's_memtime {sp(STAMPS[k])}'); x.note = 'stamp'; return [x]
    def mk_srd(self, d, p, size, bias=0):
        o = []
        if bias:
            o += [I(f's_sub_u32 s{d}, s{p}, {bias}'), I(f's_subb_u32 s{d+1}, s{p+1}, 0')]
        else:
            o += [I(f's_mov_b64 {sp(d)}, {sp(p)}')]
        o += [I(f's_mov_b32 s{d+2}, {size + bias}'), I(f's_mov_b32 s{d+3}, 0x20000')]
        return o
    def ws_base(self):
        b = self.o.get('wsbase', 0) << 20
        return [I(f's_add_u32 s{P_WS}, s{P_WS}, {b}'), I(f's_addc_u32 s{P_WS+1}, s{P_WS+1}, 0')] if b else []
    def poll_issue(self, soff_reg, tag):
        return I(f'buffer_load_dwordx2 {vr(vP,2)}, v{vFl}, {srd(SWS)}, s{soff_reg} offen sc1', tag=tag)
    def poll_check(self, soff_reg):
        ok = self.lab('ok'); lp = self.lab('lp')
        if self.o.get('nopoll'): return [I(f'v_cmp_eq_u64 vcc, {sp(sN)}, {vr(vP,2)}')]
        return [I(f'v_cmp_eq_u64 vcc, {sp(sN)}, {vr(vP,2)}'), I('s_cmp_eq_u64 vcc, exec'), I(f's_cbranch_scc1 {ok}'),
                RAW(f's_mov_b32 s{sSPIN}, 0\n{lp}:\nbuffer_load_dwordx2 {vr(vP,2)}, v{vFl}, {srd(SWS)}, s{soff_reg} offen sc1\ns_waitcnt vmcnt(0)\n'
                    f'v_cmp_eq_u64 vcc, {sp(sN)}, {vr(vP,2)}\ns_add_u32 s{sSPIN}, s{sSPIN}, 1\ns_nop 1\ns_cmp_eq_u64 vcc, exec\ns_cbranch_scc1 {ok}\n'
                    f's_sleep {self.o["sleep"]}\ns_cmp_lt_u32 s{sSPIN}, {self.o["spin"]}\ns_cbranch_scc1 {lp}', defs=f'vcc scc', uses=f's{soff_reg} v{vFl}'),
                I(f'{ok}:')]
    def nonce_issue(self):
        return [I(f'v_mov_b32 v{vT}, 0'), I(f'global_load_dwordx2 {vr(vN,2)}, v{vT}, {sp(P_DBG)} sc1', tag='nonce')]
    def nonce_check(self):
        ok = self.lab('nok'); lp = self.lab('nlp')
        return [I(f'v_cmp_ne_u32 vcc, 0, v{vN}'), I('s_cmp_eq_u64 vcc, exec'), I(f's_cbranch_scc1 {ok}'),
                RAW(f's_mov_b32 s{sSPIN}, 0\nv_mov_b32 v{vT}, 0\n{lp}:\nglobal_load_dwordx2 {vr(vN,2)}, v{vT}, {sp(P_DBG)} sc1\ns_waitcnt vmcnt(0)\n'
                    f'v_cmp_ne_u32 vcc, 0, v{vN}\ns_add_u32 s{sSPIN}, s{sSPIN}, 1\ns_nop 1\ns_cmp_eq_u64 vcc, exec\ns_cbranch_scc1 {ok}\n'
                    f's_sleep {self.o["sleep"]}\ns_cmp_lt_u32 s{sSPIN}, {self.o["spin"]}\ns_cbranch_scc1 {lp}', defs=f'vcc scc v{vT}'),
                I(f'{ok}:'), I(f'v_readfirstlane_b32 s{sN}, v{vN}'), I(f'v_readfirstlane_b32 s{sN+1}, v{vN+1}')]
    def flag_store(self, tag, soff_reg, srdn=SWS):
        return [I(f'v_mov_b32 v{vT}, 0'), WAITVM(tag), I('s_mov_b64 exec, 1'),
                I(f'buffer_store_dwordx2 {vr(vN,2)}, v{vT}, {srd(srdn)}, s{soff_reg} offen sc1'), I('s_mov_b64 exec, -1')]

    def prologue(self):
        o = []; A = lambda t, **k: o.append(I(t, **k))
        A('s_cmp_ge_u32 s2, 256'); A('s_cbranch_scc1 L_end')
        if self.o['prof']: A('s_memrealtime s[74:75]'); A('s_memtime s[76:77]')
        if self.o.get('delay'):
            o.append(RAW(f's_mov_b32 s3, 0\nL_delay:\ns_nop 15\ns_nop 15\ns_nop 15\ns_nop 15\ns_add_u32 s3, s3, 1\ns_cmp_lt_u32 s3, {self.o["delay"]}\ns_cbranch_scc1 L_delay'))
        A('s_load_dwordx16 s[16:31], s[0:1], 0'); A('s_load_dwordx8 s[32:39], s[0:1], 64'); A('s_load_dwordx4 s[40:43], s[0:1], 96')
        A(f'v_lshrrev_b32 v1, 6, v0'); A(f'v_and_b32 v{vL}, 63, v0'); A(f'v_readfirstlane_b32 s{sW}, v1')
        A(f'v_lshlrev_b32 v{vL16}, 4, v{vL}')
        A(f's_lshl_b32 s{sW4K}, s{sW}, 12')
        A(f's_mov_b32 s{sMASK}, 0xffff0000')
        A('s_and_b32 s3, s2, 7'); A('s_lshr_b32 s4, s2, 3')
        A('s_and_b32 s5, s3, 3'); A('s_lshr_b32 s6, s3, 2')
        A('s_lshl_b32 s7, s5, 3'); A('s_lshl_b32 s8, s6, 2'); A('s_add_u32 s7, s7, s8'); A('s_and_b32 s8, s4, 3')
        A(f's_add_u32 s{sTB}, s7, s8'); A(f's_lshr_b32 s{sDB}, s4, 2')
        A('s_cmp_lt_u32 s2, 32'); A('s_cbranch_scc1 L_helper')
        return o

    def gemm_prologue(self):
        o = []; A = lambda t, **k: o.append(I(t, **k))
        A('s_sub_u32 s4, s4, 4'); A('s_and_b32 s7, s4, 3'); A('s_lshr_b32 s8, s4, 2')
        A('s_lshl_b32 s9, s5, 2'); A('s_add_u32 s9, s9, s7')
        A('s_mul_i32 s10, s6, 7'); A('s_add_u32 s10, s10, s8')
        A('s_lshl_b32 s11, s5, 1'); A('s_add_u32 s11, s11, s6')
        if self.o.get('norot'): A(f's_mov_b32 s{sC0}, 0')
        else: A(f's_and_b32 s{sC0}, s11, 7')
        A(f's_lshl_b32 s{sXb}, s9, 17'); A(f's_lshl_b32 s11, s{sW}, 15'); A(f's_add_u32 s{sXb}, s{sXb}, s11')
        A(f's_mul_i32 s{sWb}, s{sW}, {8*3584}'); A('s_lshl_b32 s11, s10, 8'); A(f's_add_u32 s{sWb}, s{sWb}, s11')
        A(f'v_lshrrev_b32 v28, 3, v{vL}'); A('v_lshlrev_b32 v28, 10, v28')
        A(f'v_and_b32 v29, 7, v{vL}'); A(f'v_lshrrev_b32 v30, 4, v{vL}'); A('v_xor_b32 v29, v29, v30'); A('v_lshl_add_u32 v28, v29, 4, v28')
        A(f'v_lshrrev_b32 v29, 4, v{vL}'); A('v_mul_u32_u24 v30, 3584, v29')
        A(f'v_bfe_u32 v31, v{vL}, 1, 3'); A('v_lshlrev_b32 v29, 1, v29'); A('v_xor_b32 v31, v31, v29')
        A(f'v_and_b32 v29, 1, v{vL}'); A('v_lshlrev_b32 v29, 4, v29'); A('v_lshl_or_b32 v31, v31, 5, v29')
        for k in range(4):
            A(f's_add_u32 s11, s8, {k}'); A('s_and_b32 s11, s11, 3')
            A('s_and_b32 s12, s11, 1'); A('s_lshl_b32 s12, s12, 6'); A('s_lshl_b32 s13, s11, 13')
            A(f'v_xor_b32 v29, s12, v28'); A(f'v_add_u32 v{vX+k}, s13, v29')
            A(f's_add_u32 s11, s7, {k}'); A('s_and_b32 s11, s11, 3')
            A('s_and_b32 s12, s11, 1'); A('s_lshl_b32 s12, s12, 5'); A('s_lshr_b32 s13, s11, 1'); A(f's_mul_i32 s13, s13, {4*3584}')
            A(f'v_xor_b32 v29, s12, v31'); A(f'v_add3_u32 v{vW+k}, v29, v30, s13')
        A(f's_lshl_b32 s{sXo}, s{sC0}, 7'); A(f's_add_u32 s{sXo}, s{sXo}, s{sXb}')
        A(f's_mul_i32 s{sWo}, s{sC0}, {64*3584}'); A(f's_add_u32 s{sWo}, s{sWo}, s{sWb}')
        A(f's_and_b32 s11, s{sW}, 1'); A(f's_lshr_b32 s12, s{sW}, 1')
        A('s_lshl_b32 s13, s9, 1'); A('s_add_u32 s13, s13, s11')
        A('s_mul_i32 s14, s13, 112'); A('s_lshl_b32 s15, s10, 3'); A('s_add_u32 s14, s14, s15'); A('s_lshl_b32 s15, s12, 2'); A('s_add_u32 s14, s14, s15')
        A(f's_lshl_b32 s{sHo0}, s14, 11'); A(f's_add_u32 s{sHo1}, s{sHo0}, 4096')
        A('s_mul_i32 s13, s13, 28'); A('s_lshl_b32 s14, s10, 1'); A('s_add_u32 s13, s13, s14'); A('s_add_u32 s13, s13, s12'); A('s_lshl_b32 s13, s13, 7')
        A(f's_add_u32 s13, s13, {FL_H}')
        o.append(WAITLGKM0())
        o += self.ws_base()
        if self.o['prof']: A('s_mov_b32 s0, s74'); A('s_mov_b32 s1, s76')
        o += self.mk_srd(SX, P_Q, 0x200000)
        A('s_and_b32 s11, s7, 1'); A('s_cmp_eq_u32 s11, 0')
        A(f's_cselect_b64 {sp(SA)}, {sp(P_WG)}, {sp(P_WU)}'); A(f's_cselect_b64 {sp(SB)}, {sp(P_WU)}, {sp(P_WG)}')
        for d in (SA, SB): A(f's_mov_b32 s{d+2}, {512*3584}'); A(f's_mov_b32 s{d+3}, 0x20000')
        for k in range(4):
            A(f's_add_u32 s11, s7, {k}'); A('s_and_b32 s11, s11, 3'); A('s_lshl_b32 s11, s11, 10'); A(f's_add_u32 s{sPW+k}, s11, s{sW4K}')
            A(f's_add_u32 s11, s8, {k}'); A('s_and_b32 s11, s11, 3'); A('s_lshl_b32 s11, s11, 10'); A(f's_add_u32 s{sPX+k}, s11, s{sW4K}')
        return [x for x in o if x is not None]

    def dma_x(self, c, ks, so):
        fl = self.o['ldx']
        return [[I(f's_add_u32 m0, s{sPX+k}, {L_X + (c % 3) * 16384}'), I(f'buffer_load_dwordx4 v{vX+k}, {srd(SX)}, s{so} offen {fl} lds', tag=f'x{c}')] for k in ks]
    def dma_w(self, H, ks, so):
        fl = self.o['ldw']
        return [[I(f's_add_u32 m0, s{sPW+k}, {L_W + ((H + 1) % 5) * 16384}'), I(f'buffer_load_dwordx4 v{vW+k}, {srd(SB if k & 1 else SA)}, s{so} offen {fl} lds', tag=f'w{H}')] for k in ks]
    def off_w(self, H, d):
        o = [I(f's_add_u32 s{d}, s{sC0}, {H>>1}'), I(f's_and_b32 s{d}, s{d}, 7'), I(f's_mul_i32 s{d}, s{d}, {64*3584}'), I(f's_add_u32 s{d}, s{d}, s{sWb}')]
        if H & 1: o.append(I(f's_add_u32 s{d}, s{d}, {32*3584}'))
        return o
    def off_x(self, c, d):
        return [I(f's_add_u32 s{d}, s{sC0}, {c}'), I(f's_and_b32 s{d}, s{d}, 7'), I(f's_lshl_b32 s{d}, s{d}, 7'), I(f's_add_u32 s{d}, s{d}, s{sXb}')]

    def gemm_addr(self):
        o = []; A = lambda t, **k: o.append(I(t, **k))
        A(f's_lshr_b32 s3, s{sW}, 1'); A('s_lshl_b32 s3, s3, 2')
        A(f'v_bfe_u32 v28, v{vL}, 2, 2')
        A(f'v_bfe_u32 v29, v{vL}, 1, 1')
        A('v_lshl_or_b32 v30, v28, 1, v29')
        A('v_lshlrev_b32 v28, 8, v28'); A('v_lshl_or_b32 v28, v29, 10, v28')
        A(f'v_lshrrev_b32 v29, 5, v{vL}'); A('v_lshl_or_b32 v28, v29, 12, v28')
        A(f'v_bfe_u32 v29, v{vL}, 4, 1'); A('v_lshl_or_b32 v28, v29, 4, v28')
        A(f'v_and_b32 v29, 1, v{vL}'); A('v_lshl_or_b32 v28, v29, 3, v28')
        A('v_xor_b32 v30, s3, v30')
        for a in range(4):
            A(f'v_xor_b32 v29, {a}, v30'); A(f'v_lshl_or_b32 v{vA+a}, v29, 5, v28')
        A(f's_and_b32 s3, s{sW}, 1'); A('s_lshl_b32 s3, s3, 13'); A(f's_add_u32 s3, s3, {L_X}')
        A(f'v_and_b32 v28, 31, v{vL}'); A('v_lshlrev_b32 v28, 7, v28'); A('v_add_u32 v28, s3, v28')
        A(f'v_bfe_u32 v29, v{vL}, 1, 3'); A(f'v_lshrrev_b32 v30, 5, v{vL}'); A('v_xor_b32 v29, v29, v30')
        for s in range(4):
            A(f'v_xor_b32 v30, {2*s}, v29'); A(f'v_lshl_add_u32 v{vB+s}, v30, 4, v28')
        return o

    def frag_reads(self, S):
        st = S & 1; H = S >> 1; c = S >> 2
        fa, fb = FA[st], FB[st]
        wo = L_W + ((H + 1) % 5) * 16384 + st * 8192
        xo = (c % 3) * 16384
        def rb(b): return I(f'ds_read_b128 {vr(fb+4*b,4)}, v{vB+(S&3)} offset:{xo + 4096*b}', tag=f'B{S}_{b}')
        def ra(a): return [I(f'ds_read_b64_tr_b16 {vr(fa+4*a+2*j,2)}, v{vA+a} offset:{wo + 2048*j}', tag=f'A{S}_{a}') for j in range(2)]
        pre = []
        hi = (H + 1) % 5 == 4
        if hi: wo -= 65536
        if st == 0 and hi: pre = [I(f'v_add_u32 v{vA+a}, 0x10000, v{vA+a}') for a in range(4)]
        if st == 0 and H > 0 and H % 5 == 4: pre = [I(f'v_subrev_u32 v{vA+a}, 0x10000, v{vA+a}') for a in range(4)]
        return [rb(0)] + pre + ra(0) + [rb(1)] + ra(1) + ra(2) + ra(3)

    def late_setup(self): return self.late_a() + self.late_b() + self.late_c()
    def late_a(self):
        o = []; A = lambda t, **k: o.append(I(t, **k))
        A('s_lshr_b32 s5, s2, 5'); A('s_mul_i32 s5, s5, 3'); A('s_and_b32 s5, s5, 7'); A('s_cmp_lt_u32 s5, 2')
        A(f's_cselect_b32 s5, {96 if self.o.get("cswap", 1) else 0}, 0'); A(f's_xor_b32 s{sCP}, s2, s5')
        o += self.mk_srd(SWS, P_WS, WS_SIZE) + self.mk_srd(SOUT, P_OUT, 0x200000)
        A(f's_lshr_b32 s5, s{sW}, 1'); A(f's_lshl_b32 s6, s{sCP}, 1'); A('s_add_u32 s5, s5, s6')
        A('s_lshl_b32 s6, s5, 12')
        A(f's_add_u32 s{SSM}, s{P_SSM}, s6'); A(f's_addc_u32 s{SSM+1}, s{P_SSM+1}, 0'); A(f's_mov_b32 s{SSM+2}, 4096'); A(f's_mov_b32 s{SSM+3}, 0x20000')
        A(f's_lshl_b32 s6, s{sCP}, 2'); A(f'v_mov_b32 v{vT}, s6')
        A(f'global_load_dword v{vDV}, v{vT}, {sp(P_D)}', tag='dval')
        return o
    def late_b(self):
        o = []; A = lambda t, **k: o.append(I(t, **k))
        A(f's_lshl_b32 s6, s{sW}, 14'); A(f's_add_u32 s6, s6, {L_C}')
        A(f'v_and_b32 v30, 3, v{vL}'); A(f'v_mul_u32_u24 v30, {CSTR}, v30')
        A(f'v_and_b32 v31, 28, v{vL}'); A('v_lshl_add_u32 v30, v31, 1, v30')
        A(f'v_lshrrev_b32 v31, 5, v{vL}'); A('v_lshlrev_b32 v31, 4, v31')
        A('v_sub_u32 v30, v30, v31'); A('s_add_u32 s7, s6, 16'); A(f'v_add_u32 v{vCA}, s7, v30')
        A(f'v_and_b32 v30, 31, v{vL}'); A('v_mul_u32_u24 v30, 144, v30'); A(f's_add_u32 s7, s6, {UOFF}'); A(f'v_add3_u32 v{vCB}, v30, v31, s7')
        A(f's_mul_i32 s9, s{sTB}, {112*2048}'); A(f'v_add_u32 v{vHl}, s9, v{vL16}')
        r2 = self.o['rot2']
        A('s_mov_b32 s7, 0')
        if 'd' in r2: A(f's_mul_i32 s8, s{sDB}, 7'); A('s_add_u32 s8, s8, 2'); A('s_lshr_b32 s7, s8, 2')
        if 't' in r2: A(f's_and_b32 s8, s{sTB}, 3'); A('s_mul_i32 s8, s8, 7'); A('s_add_u32 s8, s8, 1'); A('s_lshr_b32 s8, s8, 1'); A('s_add_u32 s7, s7, s8')
        if 'x' in r2: A('s_and_b32 s8, s2, 7'); A('s_mul_i32 s8, s8, 7'); A('s_lshr_b32 s8, s8, 2'); A('s_add_u32 s7, s7, s8')
        A('s_sub_u32 s8, s7, 14'); A('s_cmp_ge_u32 s7, 14'); A('s_cselect_b32 s7, s8, s7')
        A(f's_mul_i32 s8, s{sW}, {28*2048}'); A('s_lshl_b32 s7, s7, 12')
        A(f's_add_u32 s9, s8, {14*4096}')
        A(f's_add_u32 s{sG}, s7, s8')
        for g in range(1, 14):
            A(f's_add_u32 s{sG+g}, s{sG+g-1}, 4096'); A(f's_cmp_eq_u32 s{sG+g}, s9'); A(f's_cselect_b32 s{sG+g}, s8, s{sG+g}')
        return o
    def late_c(self):
        o = []; A = lambda t, **k: o.append(I(t, **k))
        A(f'v_readfirstlane_b32 s{sD}, v{vDV}'); A(f's_lshr_b32 s7, s{sW}, 1'); A('s_lshl_b32 s7, s7, 4'); A(f's_lshr_b32 s{sD}, s{sD}, s7'); A(f's_lshl_b32 s{sD}, s{sD}, 16')
        return o

    def zero_fill(self):
        o = []; A = lambda t, **k: o.append(I(t, **k))
        A(f's_lshl_b32 s6, s{sW}, 14'); A(f's_add_u32 s6, s6, {L_C + UOFF}'); A(f'v_add_u32 v{vU0}, s6, v{vL16}')
        for i in range(4): A(f'v_mov_b32 v{vCT+i}, 0')
        for i in range(5): A(f'ds_write_b128 v{vU0}, {vr(vCT,4)} offset:{1024*i}')
        return o
    def ssm_loads(self):
        o = []; A = lambda t, **k: o.append(I(t, **k))
        fl = self.o['ldssm']
        A(f's_and_b32 s6, s{sW}, 1'); A('s_mul_i32 s6, s6, 2048'); A('s_sub_u32 s6, s6, 128')
        A(f'v_add_u32 v30, s6, v{vL16}')
        A('v_add_u32 v31, 16, v30'); A('v_add_u32 v29, 1024, v30')
        A(f'v_cmp_gt_i32 vcc, 0, v30'); A('v_bfrev_b32 v28, 1'); A('v_cndmask_b32 v30, v30, v28, vcc')
        A(f'v_cmp_gt_i32 vcc, 0, v31'); A('v_cndmask_b32 v31, v31, v28, vcc')
        A(f'buffer_load_dwordx4 {vr(vD,4)}, v30, {srd(SSM)}, 0 offen {fl}')
        A(f'buffer_load_dwordx2 {vr(vD+4,2)}, v31, {srd(SSM)}, 0 offen {fl}')
        A(f'buffer_load_dwordx4 {vr(vD+6,4)}, v29, {srd(SSM)}, 0 offen {fl}')
        A(f'buffer_load_dwordx2 {vr(vD+10,2)}, v29, {srd(SSM)}, 0 offen offset:16 {fl}')
        A(f'buffer_load_dwordx4 {vr(vD+12,4)}, v29, {srd(SSM)}, 0 offen offset:1024 {fl}')
        A(f'buffer_load_dwordx2 {vr(vD+16,2)}, v29, {srd(SSM)}, 0 offen offset:1040 {fl}')
        return o
    def copies_build(self):
        o = []; A = lambda t, **k: o.append(I(t, **k))
        A(f's_lshl_b32 s6, s{sW}, 14'); A(f's_add_u32 s6, s6, {L_C}'); A(f'v_add_u32 v{vU1}, s6, v{vL16}')
        for p in range(3):
            d = vD + 6 * p
            for i in range(4): A(f'v_alignbyte_b32 v{vCT+i}, v{d+i+1}, v{d+i}, 2')
            for i in range(4): A(f'v_mov_b32 v{vCT+4+i}, v{d+i+1}')
            for i in range(4): A(f'v_alignbyte_b32 v{vCT+8+i}, v{d+i+2}, v{d+i+1}, 2')
            w = [I(f'ds_write_b128 v{vU1}, {vr(vCT+4*c,4)} offset:{c*CSTR + 1024*p}') for c in range(3)]
            w.append(I(f'ds_write_b128 v{vU1}, {vr(d+2,4)} offset:{3*CSTR + 1024*p}'))
            if p < 2: o += w
            else: o.append([I('s_mov_b64 exec, 0xff')] + w + [I('s_mov_b64 exec, -1')])
        return o
    def kv_poll_addr(self):
        return [I(f's_lshr_b32 s14, s{sCP}, 5'), I(f'v_and_b32 v{vFl}, 3, v{vL}'), I(f'v_sub_u32 v{vFl}, s14, v{vFl}'), I(f'v_and_b32 v{vFl}, 7, v{vFl}'),
                I(f'v_lshlrev_b32 v{vFl}, 7, v{vFl}'), I(f's_lshl_b32 s14, s{sW}, 10'), I(f's_add_u32 s14, s14, {FL_KV}')]
    def kv_loads(self):
        o = []; A = lambda t, **k: o.append(I(t, **k))
        A(f's_lshr_b32 s5, s{sW}, 1'); A(f's_lshl_b32 s6, s{sCP}, 1'); A('s_add_u32 s5, s5, s6'); A('s_lshl_b32 s5, s5, 12'); A(f's_add_u32 s5, s5, {WS_KVT}')
        for i in range(4): A(f'buffer_load_dwordx4 {vr(vKV+4*i,4)}, v{vL16}, {srd(SWS)}, s5 offen offset:{1024*i} sc1')
        return o
    def u_writes(self):
        o = []; A = lambda t, **k: o.append(I(t, **k))
        A(f's_and_b32 s5, s{sW}, 1'); A('s_mul_i32 s7, s5, 2304')
        A(f's_lshl_b32 s6, s{sW}, 14'); A(f's_add_u32 s6, s6, {L_C + UOFF + 15*144}'); A('s_add_u32 s6, s6, s7')
        A(f'v_lshrrev_b32 v30, 3, v{vL}'); A('v_mul_u32_u24 v30, 144, v30'); A(f'v_and_b32 v31, 7, v{vL}'); A('v_lshl_add_u32 v30, v31, 4, v30')
        A(f'v_add_u32 v{vU0}, s6, v30'); A('s_sub_u32 s7, 2304, s7'); A(f'v_add_u32 v{vU1}, s7, v{vU0}')
        for i in (2, 3): A(f'ds_write_b128 v{vU1}, {vr(vKV+4*i,4)} offset:{1152*(i-2)}')
        for i in (0, 1): A(f'ds_write_b128 v{vU0}, {vr(vKV+4*i,4)} offset:{1152*i}')
        return o
    def wd_touch(self, part):
        o = []; A = lambda t, **k: o.append(I(t, **k))
        mode = self.o['wdtouch']
        A('s_lshr_b32 s5, s2, 3'); A('s_lshl_b32 s5, s5, 2'); A(f's_add_u32 s5, s5, s{sW}')
        if mode == 1:
            A('s_mul_i32 s5, s5, 14'); A(f'v_min_u32 v28, 13, v{vL}'); A('v_add_u32 v28, s5, v28'); A('v_lshlrev_b32 v28, 10, v28'); A('v_add_u32 v28, 384, v28')
        else:
            A('s_mul_i32 s5, s5, 112'); A(f's_add_u32 s5, s5, {56*part}'); A(f'v_min_u32 v28, 55, v{vL}'); A('v_add_u32 v28, s5, v28'); A('v_lshlrev_b32 v28, 7, v28')
        A(f'global_load_dword v{vDV}, v28, {sp(P_WD)}')
        return o
    def stage_setup(self):
        o = []; A = lambda t, **k: o.append(I(t, **k))
        o += self.mk_srd(SWD, P_WD, 1792 * 1024)
        A(f'v_lshrrev_b32 v28, 3, v{vL}'); A(f'v_bfe_u32 v29, v{vL}, 4, 1'); A('v_lshlrev_b32 v29, 2, v29'); A(f'v_and_b32 v30, 7, v{vL}'); A('v_xor_b32 v29, v29, v30')
        A('v_lshlrev_b32 v28, 10, v28'); A('v_lshl_add_u32 v28, v29, 4, v28'); A(f's_lshl_b32 s5, s{sDB}, 7'); A(f'v_add_u32 v{vS}, s5, v28')
        A(f'v_add_u32 v{vS+1}, {8192 - 1024}, v{vS}'); A(f'v_add_u32 v{vS+2}, 16384, v{vS}'); A(f'v_add_u32 v{vS+3}, {24576 - 1024}, v{vS}')
        A(f's_lshl_b32 s5, s{sW}, 13'); A(f's_add_u32 s{sSB}, s5, {L_S}')
        A(f'v_lshrrev_b32 v28, 5, v{vL}'); A(f'v_bfe_u32 v29, v{vL}, 2, 2'); A('v_lshl_or_b32 v28, v28, 2, v29'); A('v_lshlrev_b32 v28, 7, v28'); A(f'v_add_u32 v28, s{sSB}, v28')
        A(f'v_and_b32 v29, 1, v{vL}'); A('v_lshl_add_u32 v28, v29, 3, v28')
        A(f'v_bfe_u32 v29, v{vL}, 4, 1'); A(f'v_bfe_u32 v30, v{vL}, 1, 1'); A('v_lshl_or_b32 v29, v29, 1, v30')
        A(f'v_bfe_u32 v30, v{vL}, 3, 1'); A('v_lshl_or_b32 v29, v30, 2, v29')
        A(f's_and_b32 s5, s{sW}, 1'); A('s_lshl_b32 s5, s5, 2'); A(f's_and_b32 s6, s{sW}, 2'); A('s_or_b32 s5, s5, s6'); A('v_xor_b32 v29, s5, v29')
        A(f'v_lshl_add_u32 v{vR0}, v29, 4, v28'); A('v_xor_b32 v29, 4, v29'); A(f'v_lshl_add_u32 v{vR1}, v29, 4, v28')
        return o
    def slot(self, k):
        sg = (k + 4) % 8
        return (sg & 3) * 2048 + (sg >> 2) * 32768
    def wd_dma(self, s_):
        fl = self.o['ldwd']
        o = []
        if s_ % 2 == 0: o.append(I(f's_lshl_b32 s{sXo}, s{sG+(s_>>1)}, 3'))
        o.append(I(f's_add_u32 m0, s{sSB}, {self.slot(s_)}'))
        L = [I(f'buffer_load_dwordx4 v{vS+2*(s_&1)+j}, {srd(SWD)}, s{sXo} offen offset:{1024*j} {fl} lds', tag=f'sd{s_}') for j in range(2)]
        if s_ >= 8: o.insert(0, NEED(regs('a', aWD + 8 * (s_ - 8), 8)))
        return [o + L]
    def wd_read(self, s_):
        return [WAITVM(f'sd{s_}')] + [I(f'ds_read_b64_tr_b16 {ar(aWD+8*s_+4*dt+2*j,2)}, v{vR0+dt} offset:{self.slot(s_) + 1024*j}', tag=f'wd{s_}_{dt}') for dt in range(2) for j in range(2)]

    def gemm1(self):
        O = self.o; E = O['E']
        o = self.gemm_prologue()
        flat = lambda L: [y for x in L for y in (x if isinstance(x, list) else [x])]
        if O.get('ptouch') and O.get('ptfirst'): o += self.page_touch()
        o += flat(self.dma_x(0, range(4), sXo)) + flat(self.dma_w(0, range(4), sWo)) + self.off_w(1, sWo) + flat(self.dma_w(1, range(4), sWo))
        if O['codepf']: o += self.code_prefetch()
        if O.get('ptouch') and not O.get('ptfirst'): o += self.page_touch()
        if E:
            o += self.off_x(1, 4) + flat(self.dma_x(1, [0], 4))
            for U in range(2, 2 + E): o += self.off_w(U, 3) + flat(self.dma_w(U, [0], 3))
        o += self.stamp(0)
        o += self.gemm_addr()
        o += self.mk_srd(SHS, P_WS, WS_SIZE)
        o += [WAITVM(['x0', 'w0']), I('s_barrier')] + self.stamp(1) + self.frag_reads(0)
        W = Weave()
        for S in range(32):
            st = S & 1
            for i in range(8):
                a, b = i >> 1, i & 1
                acc = ACC1 + 32 * a + 16 * b
                c = '0' if S == 0 else vr(acc, 16)
                m = I(f'v_mfma_f32_32x32x16_bf16 {vr(acc,16)}, {vr(FA[st]+4*a,4)}, {vr(FB[st]+4*b,4)}, {c}',
                      expect=[(regs('v', FA[st]+4*a, 4), f'A{S}_{a}'), (regs('v', FB[st]+4*b, 4), f'B{S}_{b}')])
                pre = []
                if i == 0 and st == 1:
                    H = (S + 1) >> 1
                    pre = [WAITLGKM0(), WAITVM([f'w{H}', f'x{H>>1}']), I('s_barrier')]
                W.mfma(m, pre)
        for S in range(31): W.place(self.frag_reads(S + 1), 8 * S, per_gap=2)
        pstart = lambda H: max(0, 8 * (2 * H - 1))
        late = [1, 2, 3] if E else [0, 1, 2, 3]
        g = 0
        for H in range(14):
            items = []
            if H % 2 == 0 and H // 2 + 1 < 8: items += [[x] for x in self.off_x(H // 2 + 1, sXo)] + self.dma_x(H // 2 + 1, late, sXo)
            items += [[x] for x in self.off_w(H + 2, sWo)] + self.dma_w(H + 2, late, sWo)
            nlate = len(items)
            if E and H + 2 + E < 16: items += [[x] for x in self.off_w(H + 2 + E, 3)] + self.dma_w(H + 2 + E, [0], 3)
            if E and H % 2 == 0 and H // 2 + 2 < 8: items += [[x] for x in self.off_x(H // 2 + 2, 4)] + self.dma_x(H // 2 + 2, [0], 4)
            stream('dma', items)
            g = max(g, pstart(H))
            for it in items:
                isd = any(x.kind == 'vmem' for x in it)
                g = W.place([it], g)
                if any(x.tag == 'x7' for x in it): gx = g
                if isd and H > 0: g += O['dma_gap']
            assert g <= pstart(H + 2), (H, g)
        gd = g
        g = W.place(stream('late', self.late_a() + self.late_b()), pstart(1) + 8)
        W.place(stream('late', self.late_c()), pstart(O['p_ssm'] + 1))
        assert g < pstart(O['p_nonce']), g
        W.place(stream('nonce', [self.nonce_issue()]), pstart(O['p_nonce']) + 13)
        W.place(stream('nonce', [self.nonce_check()]), pstart(O['p_nonce'] + 2) + 5)
        W.place(stream('ssm', self.ssm_loads()), pstart(O['p_ssm']) + 13)
        if O.get('wdtouch'):
            for part in range(O['wdtouch']): gt = W.place(stream(f'wt{part}', self.wd_touch(part)), pstart(O.get('p_wt', 10) + part * O.get('p_wtd', 1)) + 12)
            assert gt < gx
        g = W.place(stream('stg', self.stage_setup()), max(gx + 1, pstart(O['p_ssm'] + 2)))
        gw = max(g, gd + 1)
        g = W.place(stream('zero', self.zero_fill()), max(g, pstart(14)))
        g = W.place(stream('cop', self.copies_build()), g)
        for k in range(2): gw = W.place(stream('wd', self.wd_dma(k)), gw, extra=4) + O['wdgap']
        gw = W.place(stream('kvp', self.kv_poll_addr() + [self.poll_issue(14, 'kvp')]), max(gw, O.get('kvg', 8 * 29 + 4)), extra=8)
        gw = W.place(stream('gate', self.gate_loads()), max(gw, g), extra=8)
        for k in range(2, 4): gw = W.place(stream('wd', self.wd_dma(k)), gw, extra=8) + 2
        for k in range(8): W.gaps[32 * k] += self.stamp(k, 'g1')
        o += W.flatten()
        o += self.stamp(2)
        return o

    def page_touch(self):
        o = []; A = lambda t, **k: o.append(I(t, **k))
        sk = self.lab('pt')
        A(f's_cmp_lg_u32 s{sW}, {self.o["ptouch"] - 1}'); A(f's_cbranch_scc1 {sk}')
        A(f'v_min_u32 v28, 6, v{vL}'); A('v_lshlrev_b32 v28, 21, v28'); A('v_mov_b32 v29, 0')
        t = ['s_mov_b64 exec, 0x7f', f'global_load_dword v126, v28, {sp(P_WS)}', 's_mov_b64 exec, 1']
        for p in (P_OUT, P_WD, P_SSM, P_D, P_GW, P_DBG): t.append(f'global_load_dword v126, v29, {sp(p)}')
        t.append('s_mov_b64 exec, -1')
        o.append(RAW('\n'.join(t)))
        A(f'{sk}:')
        return o

    def code_prefetch(self):
        o = []; A = lambda t, **k: o.append(I(t, **k))
        sk = self.lab('pf'); pc = self.lab('pc')
        A(f's_cmp_lg_u32 s{sW}, 3'); A(f's_cbranch_scc1 {sk}')
        A('s_getpc_b64 s[6:7]'); A(f'{pc}:')
        A(f's_sub_u32 s6, s6, {pc}-{NAME}_kernel'); A('s_subb_u32 s7, s7, 0')
        A('s_lshr_b32 s3, s2, 3'); A('s_and_b32 s3, s3, 7'); A('s_mul_i32 s3, s3, 5120')
        A(f'v_min_u32 v28, 39, v{vL}'); A('v_lshlrev_b32 v28, 7, v28'); A('v_add_u32 v28, s3, v28')
        A(f'v_min_u32 v28, L_codeend-{NAME}_kernel-4, v28')
        o.append(RAW('global_load_dword v127, v28, s[6:7]'))
        A(f'{sk}:')
        return o

    def conv(self, W):
        O = self.o
        pre = []
        def ra(sg):
            d = CA + 4 * (sg % 6)
            return [I(f'ds_read_b64 {vr(d+2*j,2)}, v{vCA} offset:{32*sg + 8*j}', tag=f'cA{sg}') for j in range(2)]
        def rb(st):
            d = CBR + 4 * (st % 4)
            return I(f'ds_read_b128 {vr(d,4)}, v{vCB} offset:{(15-(st>>2))*144 + 32*(3-(st&3))}', tag=f'cB{st}')
        pre += ra(0) + [rb(0)] + ra(2) + ra(1) + [rb(1)] + ra(3)
        base = len(W.spine)
        for st in range(64):
            for m in range(2):
                sg = st + 2 * m
                acc = aCV + 16 * m
                c = '0' if st == 0 else ar(acc, 16)
                W.mfma(I(f'v_mfma_f32_32x32x16_bf16 {ar(acc,16)}, {vr(CA+4*(sg%6),4)}, {vr(CBR+4*(st%4),4)}, {c}',
                         expect=[(regs('v', CA+4*(sg%6), 4), f'cA{sg}'), (regs('v', CBR+4*(st%4), 4), f'cB{st}')]), pre if (st == 0 and m == 0) else None)
        for st in range(64):
            it = []
            if st + 2 < 64: it.append(rb(st + 2))
            if st + 4 < 66: it += ra(st + 4)
            W.place(it[:2], base + 2 * st); W.place(it[2:], base + 2 * st + 1)
        return base

    def h_epilogue(self):
        o = []
        for a in range(4):
            for b in range(2):
                R = ACC1 + 32 * a + 16 * b
                for h in (0, 8):
                    for i in range(4): o.append(I(f'v_max_f32 v{R+h+i}, 0, v{R+h+i}'))
                    for i in range(4): o.append(I(f'v_mul_f32 v{R+h+i}, v{R+h+i}, v{R+h+4+i}'))
                for q, src in enumerate((0, 2, 8, 10)): o.append(I(f'v_cvt_pk_bf16_f32 v{R+4+q}, v{R+src}, v{R+src+1}'))
                so = sHo0 if a < 2 else sHo1
                if self.o.get('nohst'): continue
                o.append(I(f'buffer_store_dwordx4 {vr(R+4,4)}, v{vL16}, {srd(SHS)}, s{so} offen offset:{(a&1)*2048 + b*1024} {self.o.get("sth", "sc1")}', tag='hst'))
        return o
    def h_load(self, i):
        p, s = divmod(i, 28)
        return I(f'buffer_load_dwordx4 {vr(HR+4*(i%NHR),4)}, v{vHl}, {srd(SWS)}, s{sG+(s>>1)} offen offset:{(s&1)*2048 + p*1024} {self.o.get("ldh", "sc1")}', tag=f'h{i}')
    def h_poll_addr(self):
        return [I(f'v_min_u32 v{vFl}, 6, v{vL}'), I(f'v_lshlrev_b32 v{vFl}, 7, v{vFl}'),
                I(f's_mul_i32 s14, s{sTB}, {28*128}'), I(f's_mul_i32 s15, s{sW}, {7*128}'), I('s_add_u32 s14, s14, s15'), I(f's_add_u32 s14, s14, {FL_H}')]

    def h_touch(self):
        o = []; A = lambda t, **k: o.append(I(t, **k))
        A(f's_mul_i32 s5, s{sTB}, {112*2048}'); A(f's_mul_i32 s6, s{sW}, {28*2048}'); A('s_add_u32 s5, s5, s6'); A(f's_mul_i32 s6, s{sDB}, {56*128}'); A('s_add_u32 s5, s5, s6')
        A(f'v_min_u32 v28, 55, v{vL}'); A('v_lshlrev_b32 v28, 7, v28')
        A(f'buffer_load_dword v{vP}, v28, {srd(SWS)}, s5 offen sc1', tag='ht')
        return o

    def conv_epilogue(self):
        a = []; A = lambda t, **k: a.append(I(t, **k))
        A(f's_lshl_b32 s6, s{sW}, 14'); A(f's_add_u32 s6, s6, {L_C}')
        A(f'v_and_b32 v30, 31, v{vL}'); A('v_mul_u32_u24 v30, 272, v30'); A(f'v_lshrrev_b32 v31, 5, v{vL}'); A('v_lshl_add_u32 v30, v31, 4, v30'); A('v_add_u32 v30, s6, v30')
        addr = a; a = []
        for m in range(2):
            for g in range(4): A(f'ds_write_b128 v30, {ar(aCV+16*m+4*g,4)} offset:{(32*m+8*g)*4}')
        wr = a; a = []
        A(f's_and_b32 s5, s{sW}, 2'); A('s_lshl_b32 s5, s5, 14'); A(f's_add_u32 s5, s5, {L_C}')
        A(f's_and_b32 s7, s{sW}, 1'); A('s_lshl_b32 s7, s7, 4')
        A(f'v_lshrrev_b32 v28, 3, v{vL}'); A('v_add_u32 v28, s7, v28'); A(f'v_and_b32 v29, 7, v{vL}')
        A('v_mul_u32_u24 v31, 272, v28'); A('v_lshl_add_u32 v31, v29, 5, v31'); A(f'v_add_u32 v{vGG}, s5, v31')
        A('v_mul_u32_u24 v31, 144, v28'); A('v_lshl_add_u32 v31, v29, 4, v31'); A(f's_add_u32 s5, s5, {UOFF + 15*144}'); A(f'v_add_u32 v{vGG+1}, s5, v31')
        A(f's_lshr_b32 s5, s{sW}, 1'); A(f's_lshl_b32 s6, s{sCP}, 1'); A('s_add_u32 s5, s5, s6')
        A(f's_and_b32 s7, s{sW}, 1'); A('s_lshl_b32 s12, s5, 12'); A('s_lshl_b32 s8, s7, 11'); A('s_add_u32 s12, s12, s8'); A(f's_add_u32 s12, s12, {WS_YT}')
        A('s_lshr_b32 s8, s5, 6'); A('s_lshl_b32 s8, s8, 1'); A('s_add_u32 s8, s8, s7'); A('s_lshl_b32 s8, s8, 13'); A('s_and_b32 s11, s5, 63'); A('s_lshl_b32 s11, s11, 7')
        A('s_add_u32 s11, s11, s8'); A(f's_add_u32 s11, s11, {FL_Y}')
        addr2 = a; a = []
        P0 = vXR; P1 = vXR + 8; U = vXR + 16; T = vXR + 20; Y = vXR + 24
        for rho in range(2):
            for x in range(2): A(f'ds_read_b128 {vr(P0+4*x,4)}, v{vGG} offset:{rho*2176 + 16*x}')
            for x in range(2): A(f'ds_read_b128 {vr(P1+4*x,4)}, v{vGG} offset:{16384 + rho*2176 + 16*x}')
            A(f'ds_read_b128 {vr(U,4)}, v{vGG+1} offset:{rho*1152}')
            for e in range(8): A(f'v_add_f32 v{P0+e}, v{P0+e}, v{P1+e}')
            for q in range(4):
                A(f'v_lshlrev_b32 v{T}, 16, v{U+q}'); A(f'v_and_b32 v{T+1}, s{sMASK}, v{U+q}')
                A(f'v_fmac_f32 v{P0+7-2*q}, s{sD}, v{T}'); A(f'v_fmac_f32 v{P0+6-2*q}, s{sD}, v{T+1}')
            for q in range(4): A(f'v_cvt_pk_bf16_f32 v{Y+4*rho+q}, v{P0+2*q}, v{P0+2*q+1}')
            A(f'buffer_store_dwordx4 {vr(Y+4*rho,4)}, v{vL16}, {srd(SWS)}, s12 offen offset:{1024*rho} sc1', tag='yst')
        return addr, wr, addr2, a

    def exch_write(self, p):
        o = []
        for j, (dt, gp, m) in enumerate(((0, 1, 2), (1, 0, 1), (1, 1, 3))):
            R = ACC2 + 32 * p + 16 * dt + 8 * gp
            for x in range(2): o.append(I(f'ds_write_b128 v{vE+j}, {vr(R+4*x,4)} offset:{(L_X1 if p else L_X0) + j*2048 + 1024*x}'))
        return o
    def exch_read(self, p):
        return [I(f'ds_read_b128 {vr(vXR+8*j+4*x,4)}, v{vE+3} offset:{(L_X1 if p else L_X0) + j*2048 + 1024*x}') for j in range(3) for x in range(2)]
    def exch_sum(self, p, dst):
        o = []; R = ACC2 + 32 * p
        for e in range(8): o.append(I(f'v_add_f32 v{vXR+e}, v{vXR+e}, v{vXR+8+e}'))
        for e in range(8): o.append(I(f'v_add_f32 v{dst+e}, v{R+e}, v{vXR+16+e}'))
        for e in range(8): o.append(I(f'v_add_f32 v{dst+e}, v{dst+e}, v{vXR+e}'))
        return o
    def final_addr(self):
        o = []; A = lambda t, **k: o.append(I(t, **k))
        for j, m in enumerate((2, 1, 3)):
            A(f's_xor_b32 s5, s{sW}, {m}'); A('s_mul_i32 s5, s5, 6144'); A(f'v_add_u32 v{vE+j}, s5, v{vL16}')
        A(f's_mul_i32 s5, s{sW}, 6144'); A(f'v_add_u32 v{vE+3}, s5, v{vL16}')
        return o
    def q_dma(self):
        o = []; A = lambda t, **k: o.append(I(t, **k))
        A(f'v_lshrrev_b32 v28, 3, v{vL}'); A('v_lshlrev_b32 v28, 10, v28'); A(f'v_and_b32 v29, 7, v{vL}'); A(f'v_lshrrev_b32 v30, 4, v{vL}'); A('v_xor_b32 v29, v29, v30')
        A(f'v_lshl_add_u32 v{vQ}, v29, 4, v28'); A(f'v_xor_b32 v{vQ+1}, 64, v{vQ}'); A(f'v_add_u32 v{vQ+1}, 7168, v{vQ+1}')
        A(f's_lshl_b32 s5, s{sTB}, 16'); A(f's_lshl_b32 s6, s{sW}, 14'); A('s_add_u32 s5, s5, s6'); A(f's_lshl_b32 s6, s{sDB}, 7'); A('s_add_u32 s5, s5, s6')
        A(f's_lshl_b32 s6, s{sW}, 11'); A(f's_add_u32 m0, s6, {L_Q}')
        for n in range(2): A(f'buffer_load_dwordx4 v{vQ+n}, {srd(SX)}, s5 offen offset:{1024*n} lds', tag='q')
        return o[:-3] + [o[-3:]]
    def y_poll_addr(self):
        o = []; A = lambda t, **k: o.append(I(t, **k))
        A(f's_and_b32 s10, s{sW}, 1'); A('s_lshl_b32 s10, s10, 1'); A(f's_lshr_b32 s15, s{sW}, 1'); A('s_add_u32 s10, s10, s15')
        A(f'v_and_b32 v{vFl}, 15, v{vL}'); A(f'v_lshlrev_b32 v{vFl}, 7, v{vFl}')
        A(f's_lshl_b32 s14, s{sDB}, 1'); A(f's_lshr_b32 s15, s{sTB}, 4'); A('s_add_u32 s14, s14, s15'); A('s_lshl_b32 s14, s14, 13')
        A('s_lshl_b32 s15, s10, 11'); A('s_add_u32 s14, s14, s15'); A(f's_add_u32 s14, s14, {FL_Y}')
        return o
    def y_dma(self):
        o = []; A = lambda t, **k: o.append(I(t, **k))
        A(f'v_lshrrev_b32 v28, 3, v{vL}'); A('v_lshlrev_b32 v28, 12, v28'); A(f'v_and_b32 v29, 7, v{vL}'); A('v_lshl_add_u32 v28, v29, 4, v28')
        A(f'v_add_u32 v29, {8*4096 - 1024}, v28')
        A(f's_lshl_b32 s5, s{sDB}, 18'); A('s_lshl_b32 s6, s10, 16'); A('s_add_u32 s5, s5, s6'); A(f's_lshl_b32 s6, s{sTB}, 7'); A('s_add_u32 s5, s5, s6'); A(f's_add_u32 s5, s5, {WS_YT}')
        A('s_lshl_b32 s6, s10, 11'); A(f's_add_u32 m0, s6, {L_Y}')
        for n in range(2): A(f'buffer_load_dwordx4 v{28+n}, {srd(SWS)}, s5 offen offset:{1024*n} sc1 lds', tag='y')
        return o[:-3] + [o[-3:]]
    def gate_loads(self):
        o = []; A = lambda t, **k: o.append(I(t, **k))
        A(f's_lshl_b32 s5, s{sTB}, 3'); A(f's_add_u32 s5, s5, s{sDB}'); A('s_lshl_b32 s5, s5, 2'); A(f's_add_u32 s5, s5, s{sW}'); A('s_lshl_b32 s5, s5, 11')
        A(f'global_load_dwordx4 {vr(vGW,4)}, v{vL16}, {sp(P_GW)}')
        for i in range(2): A(f'buffer_load_dwordx4 {vr(vGX+4*i,4)}, v{vL16}, {srd(SX)}, s5 offen offset:{1024*i}')
        return o
    def gate_compute(self):
        o = []; A = lambda t, **k: o.append(I(t, **k))
        Z = vGX
        for i in range(2):
            R = vGX + 4 * i
            A(f'v_dot2_f32_bf16 v{R}, v{R}, v{vGW}, 0')
            for m in range(1, 4): A(f'v_dot2_f32_bf16 v{R}, v{R+m}, v{vGW+m}, v{R}')
        A(f'v_permlane32_swap_b32 v{Z}, v{Z+4}'); A(f'v_add_f32 v{Z}, v{Z}, v{Z+4}')
        A(f'v_mov_b32 v{Z+1}, v{Z}'); A(f'v_permlane16_swap_b32 v{Z}, v{Z+1}'); A(f'v_add_f32 v{Z}, v{Z}, v{Z+1}')
        for sh in (8, 4, 2, 1): A(f'v_add_f32_dpp v{Z}, v{Z}, v{Z} row_ror:{sh} row_mask:0xf bank_mask:0xf')
        A(f'v_cvt_pk_bf16_f32 v{Z}, v{Z}, v{Z}'); A(f'v_and_b32 v{Z}, s{sMASK}, v{Z}')
        A(f'v_mul_f32 v{Z}, 0xbfb8aa3b, v{Z}'); A(f'v_exp_f32 v{Z}, v{Z}'); A(f'v_add_f32 v{Z}, 1.0, v{Z}'); A(f'v_rcp_f32 v{Z}, v{Z}')
        A(f'v_cvt_pk_bf16_f32 v{Z}, v{Z}, v{Z}'); A(f'v_and_b32 v{Z}, s{sMASK}, v{Z}'); A(f'v_sub_f32 v{Z+1}, 1.0, v{Z}'); A(f'v_cvt_pk_bf16_f32 v{Z}, v{Z}, v{Z+1}')
        A(f'v_mov_b32 v{Z+1}, s{sN}')
        A(f'v_lshrrev_b32 v{Z+2}, 5, v{vL}'); A(f'v_lshlrev_b32 v{Z+2}, 3, v{Z+2}')
        A(f's_lshl_b32 s5, s{sTB}, 3'); A(f's_add_u32 s5, s5, s{sDB}'); A('s_lshl_b32 s5, s5, 2'); A(f's_add_u32 s5, s5, s{sW}'); A('s_lshl_b32 s5, s5, 4'); A(f's_add_u32 s5, s5, {WS_G}')
        o.append([I('s_mov_b32 exec_lo, 1'), I('s_mov_b32 exec_hi, 1'), I(f'buffer_store_dwordx2 {vr(Z,2)}, v{Z+2}, {srd(SWS)}, s5 offen sc1'), I('s_mov_b64 exec, -1')])
        return o
    def g_issue(self):
        o = []; A = lambda t, **k: o.append(I(t, **k))
        A(f'v_and_b32 v{vFl}, 31, v{vL}'); A(f'v_lshlrev_b32 v{vFl}, 3, v{vFl}'); A(f's_lshl_b32 s14, s{sTB}, 9'); A(f's_add_u32 s14, s14, {WS_G}')
        for p in range(2): A(f'buffer_load_dwordx2 {vr(vGL+2*p,2)}, v{vFl}, {srd(SWS)}, s14 offen offset:{256*p} sc1')
        return o
    def g_check(self):
        ok = self.lab('gok'); lp = self.lab('glp')
        cmpx = f'v_cmp_eq_u32 vcc, s{sN}, v{vGL+1}\nv_cmp_eq_u32 s[6:7], s{sN}, v{vGL+3}\ns_add_u32 s{sSPIN}, s{sSPIN}, 1\ns_nop 1\ns_and_b64 vcc, vcc, s[6:7]'
        ld = '\n'.join(f'buffer_load_dwordx2 {vr(vGL+2*p,2)}, v{vFl}, {srd(SWS)}, s14 offen offset:{256*p} sc1' for p in range(2))
        mv = [I(f'v_mov_b32 v{vGG+p}, v{vGL+2*p}') for p in range(2)]
        if self.o.get('nopoll'): return mv
        return [[I(f'v_cmp_eq_u32 vcc, s{sN}, v{vGL+1}'), I(f'v_cmp_eq_u32 s[6:7], s{sN}, v{vGL+3}'), I('s_and_b64 vcc, vcc, s[6:7]'), I('s_cmp_eq_u64 vcc, exec'), I(f's_cbranch_scc1 {ok}'),
                RAW(f's_mov_b32 s{sSPIN}, 0\n{lp}:\n{ld}\ns_waitcnt vmcnt(0)\n{cmpx}\ns_cmp_eq_u64 vcc, exec\ns_cbranch_scc1 {ok}\n'
                    f's_sleep {self.o["sleep"]}\ns_cmp_lt_u32 s{sSPIN}, {self.o["spin"]}\ns_cbranch_scc1 {lp}', defs='vcc scc s6 s7', uses=f's14 v{vFl}'),
                I(f'{ok}:')]] + mv
    def a_part(self):
        o = []; A = lambda t, **k: o.append(I(t, **k))
        Q = vXR + 24; Yv = vXR + 28; T = vXR + 24
        A(f'v_lshrrev_b32 v28, 5, v{vL}'); A(f'v_bfe_u32 v29, v{vL}, 2, 2'); A('v_lshl_or_b32 v28, v28, 2, v29'); A('v_lshlrev_b32 v28, 7, v28')
        A(f'v_bfe_u32 v29, v{vL}, 4, 1'); A('v_lshl_or_b32 v28, v29, 5, v28'); A(f'v_and_b32 v29, 3, v{vL}'); A('v_lshl_or_b32 v28, v29, 3, v28')
        A('s_lshl_b32 s6, s10, 11'); A(f's_add_u32 s6, s6, {L_Y}'); A('v_add_u32 v28, s6, v28')
        A(f'v_bfe_u32 v29, v{vL}, 1, 3'); A('s_lshl_b32 s6, s10, 1'); A('v_xor_b32 v29, s6, v29')
        A(f'v_and_b32 v30, 31, v{vL}'); A('v_lshlrev_b32 v30, 7, v30'); A(f'v_lshrrev_b32 v31, 5, v{vL}'); A('v_lshl_or_b32 v30, v31, 3, v30'); A(f'v_add_u32 v30, {L_Q}, v30')
        A('v_xor_b32 v31, 1, v29'); A('v_lshl_add_u32 v29, v29, 4, v30'); A('v_lshl_add_u32 v30, v31, 4, v30')
        o.append(WAITVM('y'))
        QY = 120
        GF = 31
        for p in range(2):
            for gq in range(2):
                A(f'ds_read_b64 {vr(QY+2*gq,2)}, v{29+gq} offset:{4096*p}')
                A(f'ds_read_b64_tr_b16 {vr(QY+4+2*gq,2)}, v28 offset:{1024*gq + 64*p}')
            A(f'v_lshlrev_b32 v{GF}, 16, v{vGG+p}'); A(f'v_and_b32 v{vGG+p}, s{sMASK}, v{vGG+p}')
            for gq in range(2):
                for h in range(2):
                    d = vGA + 8 * p + 4 * gq + 2 * h
                    q, y = QY + 2 * gq + h, QY + 4 + 2 * gq + h
                    A(f'v_lshlrev_b32 v{d}, 16, v{q}'); A(f'v_and_b32 v{d+1}, s{sMASK}, v{q}')
                    A(f'v_lshlrev_b32 v{q}, 16, v{y}'); A(f'v_and_b32 v{y}, s{sMASK}, v{y}')
                    A(f'v_mul_f32 v{d}, v{d}, v{q}'); A(f'v_mul_f32 v{d+1}, v{d+1}, v{y}')
                    A(f'v_mul_f32 v{d}, v{d}, v{GF}'); A(f'v_mul_f32 v{d+1}, v{d+1}, v{GF}')
        return o
    def out_addr(self):
        o = []; A = lambda t, **k: o.append(I(t, **k))
        A(f'v_and_b32 v28, 31, v{vL}'); A('v_lshlrev_b32 v28, 10, v28'); A(f'v_lshrrev_b32 v29, 5, v{vL}'); A(f'v_lshl_or_b32 v{vE+4}, v29, 4, v28')
        A(f's_lshl_b32 s15, s{sTB}, 16'); A(f's_lshl_b32 s5, s{sDB}, 7'); A('s_add_u32 s15, s15, s5'); A('s_lshl_b32 s5, s10, 5'); A('s_add_u32 s15, s15, s5')
        A('s_add_u32 s9, s15, 32768')
        return o
    def out_store(self, p, B):
        o = []; A = lambda t, **k: o.append(I(t, **k))
        G = vGA + 8 * p
        for e in range(8): A(f'v_fmac_f32 v{G+e}, v{vGG+p}, v{B+e}')
        for q in range(4): A(f'v_cvt_pk_bf16_f32 v{B+q}, v{G+2*q}, v{G+2*q+1}')
        A(f'v_permlane32_swap_b32 v{B}, v{B+2}'); A(f'v_permlane32_swap_b32 v{B+1}, v{B+3}')
        A(f'buffer_store_dwordx4 {vr(B,4)}, v{vE+4}, {srd(SOUT)}, s{15 if p == 0 else 9} offen {self.o.get("stout", "")}')
        return o

    def tail(self):
        O = self.o
        W = Weave()
        for i in range(O['nA']): W.mfma(None)
        cb = self.conv(W)
        gb = len(W.spine)
        for i in range(56):
            p, s = divmod(i, 28)
            for dt in range(2):
                acc = ACC2 + 32 * p + 16 * dt
                c = '0' if s == 0 else vr(acc, 16)
                W.mfma(I(f'v_mfma_f32_32x32x16_bf16 {vr(acc,16)}, {ar(aWD+8*s+4*dt,4)}, {vr(HR+4*(i%NHR),4)}, {c}',
                         expect=[(regs('a', aWD+8*s+4*dt, 4), f'wd{s}_{dt}'), (regs('v', HR+4*(i%NHR), 4), f'h{i}')]))
        cg = lambda st: cb + 2 * st
        kvchk = stream('kvp', [self.poll_check(14) + [I('s_barrier')]] + self.kv_loads())
        if O['stfirst']:
            ge = W.place(self.h_epilogue(), 0)
            gk = W.place(kvchk, ge + 1)
        else:
            gk = W.place(kvchk, 0)
            ge = W.place(self.h_epilogue(), gk)
        assert max(ge, gk) < cb - 5, (ge, gk, cb)
        dpos = lambda k: cb + O['a0'] + (k - 4) * O['a1'] if k < O['k1'] else cb + O['b0'] + ((k - O['k1']) * O['b1']) // 2
        rpos = lambda k: O['r0'] + 4 * k if k < 4 else max(dpos(k) + O['lag'], cb + O['c0'] + 3 * (k - 4))
        ev = [(rpos(k), 0, k) for k in range(28)]
        for k in range(4, 28): ev.append((max(dpos(k), rpos(k - 8) if k >= 8 else 0), 1, k))
        ev.sort()
        g = 0; gl = {}
        for pos, kind, k in ev:
            if kind == 0: g = max(g, W.place(stream('wd', self.wd_read(k)), max(g, pos), per_gap=3, extra=12))
            else: g = W.place(stream('wd', self.wd_dma(k)), max(g, pos), extra=12); gl[k] = g
        gwd = g
        assert g < gb + 12, (g, gb)
        g = W.place(stream('uw', self.u_writes()), cb - 4, end=cb - 1, extra=40)
        assert g < cb, (g, cb)
        hf = stream('hfl', [self.flag_store('hst', 13, SHS)])
        if O['stfirst']: g = W.place(hf, cb - 1 + O['hflag'], extra=40)
        g = W.place(stream('gate', self.gate_compute()), max(g, cb))
        if not O['stfirst']: g = W.place(hf, max(g, cb + O['hflag']), extra=12)
        assert g < cg(O['hpoll']), g
        g = W.place(stream('fa', self.final_addr()), g + 1)
        addr, wr, addr2, post = [stream('ce', z) for z in self.conv_epilogue()]
        g2 = W.place(addr + addr2, g + 1)
        assert g2 < gb
        W.place(stream('hp', self.h_poll_addr() + [self.poll_issue(14, 'hp')]), cg(O['hpoll']))
        g = W.place(stream('hp', [self.poll_check(14)]), cg(O['hcheck']), extra=12)
        if O.get('htouch'): g = W.place(stream('hp', self.h_touch()), g, extra=12)
        npre = 0; g = max(g + 1, gl[27] + 1, cg(O.get('hstart', 0)))
        while g < gb and npre < NHR:
            W.place([self.h_load(npre)], g, extra=12); npre += 1; g += O['hrate']
        for i in range(npre, 56):
            earliest = gb + 2 * (i - NHR) + 1 if i >= NHR else gb
            pos = max(earliest, gb + 2 * (i - npre))
            W.place([self.h_load(i)], pos)
        g = W.place(wr, gb + 1)
        g = W.place([[WAITLGKM0(), I('s_barrier')]], max(g + 2, gwd + 1))
        g = W.place(post, g)
        W.place(self.stamp(5), g)
        g = W.place(stream('fa', self.q_dma()), g)
        g = W.place(stream('gp', self.g_issue()), max(g, gb + O['gpoll']))
        g = W.place(stream('ce', [self.flag_store('yst', 11)]), g + O['yflag'])
        g = W.place(stream('gp', self.g_check()), g + 1)
        g = W.place(stream('y', self.y_poll_addr() + [self.poll_issue(14, 'yp')]), max(g, gb + O['ypoll']))
        g = W.place(self.exch_write(0), max(g, gb + 56 + 3))
        g = W.place([[WAITLGKM0(), WAITVM('q'), I('s_barrier')]], g + 3)
        g = W.place(self.exch_read(0), g)
        g = W.place(self.exch_sum(0, vBS), g + 2)
        g = W.place(stream('y', [self.poll_check(14)] + self.y_dma()), max(g, gb + O['ycheck']))
        g = W.place(stream('y', self.out_addr()), g)
        g = W.place(stream('y', self.a_part()), max(g + 10, gb + O['apart']))
        W.gaps[cb] += self.stamp(3); W.gaps[gb] += self.stamp(4)
        for k in range(8):
            W.gaps[cb + 16 * k] += self.stamp(k, 'conv'); W.gaps[gb + 14 * k] += self.stamp(k, 'g2')
        o = W.flatten()
        o += self.stamp(6)
        o += self.exch_write(1) + stream('y', self.out_store(0, vBS)) + [WAITLGKM0(), I('s_barrier')] + self.exch_read(1) + self.exch_sum(1, vBS) + stream('y', self.out_store(1, vBS))
        if O.get('fixend'):
            o += [RAW(f's_or_b32 s3, s2, s{sW}\ns_cmp_lg_u32 s3, 0\ns_cbranch_scc1 L_fe2\ns_add_u32 s0, s0, {O["fixend"]}\nL_fe:\ns_memrealtime s[6:7]\ns_waitcnt lgkmcnt(0)\ns_sub_u32 s6, s6, s0\ns_cmp_lt_i32 s6, 0\ns_cbranch_scc1 L_fe\nL_fe2:')]
        if O['prof']:
            o += self.stamp(7) + [DRAIN()] + self.stamp(8) + [I('s_waitcnt lgkmcnt(0)')]
            o += [I('s_lshl_b32 s5, s2, 2'), I(f's_add_u32 s5, s5, s{sW}'), I('s_lshl_b32 s5, s5, 6'), I(f's_add_u32 s5, s5, {WS_PROF}'), I('v_mov_b32 v28, 0'), I('s_mov_b64 exec, 1')]
            for k, r in enumerate(STAMPS):
                o += [I(f'v_mov_b32 v29, s{r}'), I(f'buffer_store_dword v29, v28, {srd(SWS)}, s5 offen offset:{4*k}')]
            o += [I('s_memrealtime s[6:7]'), I('s_waitcnt lgkmcnt(0)'), I('v_mov_b32 v29, s6'), I(f'buffer_store_dword v29, v28, {srd(SWS)}, s5 offen offset:40')]
            if O.get('dbgtime'):
                o += [I('v_not_b32 v30, s0'), I(f'global_atomic_umax v28, v30, {sp(P_DBG)} offset:16'), I(f'global_atomic_umax v28, v29, {sp(P_DBG)} offset:20')]
                for k, r in enumerate(STAMPS[:8]):
                    o += [I(f's_sub_u32 s6, s{r}, s1'), I('v_mov_b32 v31, s6'), I(f'global_atomic_umax v28, v31, {sp(P_DBG)} offset:{24+4*k}')]
            o += [I('v_mov_b32 v30, s0'), I(f'buffer_store_dword v30, v28, {srd(SWS)}, s5 offen offset:36'), I('v_mov_b32 v31, s1'), I(f'buffer_store_dword v31, v28, {srd(SWS)}, s5 offen offset:44')]
        return o

    def helper(self):
        O = self.o
        o = []; A = lambda t, **k: o.append(I(t, **k))
        A('L_helper:')
        A('s_and_b32 s8, s2, 7'); A('s_lshr_b32 s9, s2, 3')
        VB = 68 * 1088
        A(f'v_lshrrev_b32 v28, 3, v{vL}'); A(f'v_and_b32 v29, 7, v{vL}'); A('v_lshlrev_b32 v30, 10, v28'); A('v_lshl_add_u32 v32, v29, 4, v30')
        A('s_lshl_b32 s11, s9, 19'); A(f's_lshl_b32 s12, s{sW}, 15'); A('s_add_u32 s12, s12, s11')
        A(f's_mul_i32 s10, s{sW}, {4*1088}')
        A('v_bfrev_b32 v31, 1'); A('v_cmp_gt_u32 vcc, 5, v28'); A('v_cndmask_b32 v33, v32, v31, vcc')
        A('s_cmp_eq_u32 s9, 0'); A('s_cselect_b32 s13, 0x80000000, 0'); A('v_or_b32 v37, s13, v33')
        A('s_cselect_b32 s13, 0, 8192'); A('s_sub_u32 s13, s11, s13')
        A('v_lshlrev_b32 v30, 6, v28'); A(f's_and_b32 s14, s{sW}, 1'); A('s_lshl_b32 s14, s14, 5'); A('v_add_u32 v30, s14, v30')
        A('s_waitcnt lgkmcnt(0)')
        o += self.ws_base()
        if self.o['prof']: A('s_mov_b32 s0, s74'); A('s_mov_b32 s1, s76')
        o += self.mk_srd(SA, P_K, 0x200000) + self.mk_srd(SB, P_V, 0x200000)
        fl = O['ldkv']
        def col(sg, d): return [I(f's_add_u32 s{d}, s8, {sg}'), I(f's_and_b32 s{d}, s{d}, 7')]
        def dmas(sg):
            r = [col(sg, 15) + [I('s_lshl_b32 s15, s15, 7')]]
            sk = self.lab('h0')
            ho = f's_add_u32 s14, s13, s15' if sg == 0 else f's_add_u32 s14, s11, s15\ns_add_u32 s14, s14, {sg*131072 - 8192}'
            r.append([RAW(f's_cmp_lg_u32 s{sW}, 0\ns_cbranch_scc1 {sk}\n{ho}\ns_mov_b32 m0, {sg*17*1088}\ns_nop 0\n'
                          f'buffer_load_dwordx4 v{37 if sg == 0 else 33}, {srd(SA)}, s14 offen {fl} lds\n{sk}:', defs='s14 scc m0', uses='s15'),
                      I('s_add_u32 s15, s15, s12')])
            for j in range(4):
                r.append([I(f's_add_u32 m0, s10, {(17*sg + 1 + j)*1088}'), I(f's_add_u32 s14, s15, {sg*131072 + j*8192}'),
                          I(f'buffer_load_dwordx4 v32, {srd(SA)}, s14 offen {fl} lds', tag=f'kv{sg}')])
                r.append([I(f's_add_u32 m0, s10, {VB + (16*sg + j)*1088}'), I(f'buffer_load_dwordx4 v32, {srd(SB)}, s14 offen {fl} lds', tag=f'kv{sg}')])
            return r
        flat = lambda L: [y for x in L for y in (x if isinstance(x, list) else [x])]
        SKR = 56
        def skload(sg):
            return col(sg, 5) + [I('s_lshl_b32 s5, s5, 9'), I('v_add_u32 v31, s5, v30')] + [I(f'global_load_dwordx4 {vr(SKR+8*sg+4*i,4)}, v31, {sp(P_SK)} offset:{16*i}') for i in range(2)]
        o += flat(dmas(0)) + skload(0)
        o += self.mk_srd(SWS, P_WS, WS_SIZE) + self.mk_srd(SX, P_Q, 0x200000)
        sk = self.lab('np')
        A(f's_or_b32 s3, s2, s{sW}'); A('s_cmp_lg_u32 s3, 0'); A(f's_cbranch_scc1 {sk}')
        o.append(RAW(f'v_mov_b32 v28, {FL_KV}\nbuffer_load_dwordx2 v[24:25], v28, {srd(SWS)}, 0 offen sc1\ns_waitcnt vmcnt(0)\n'
                     'v_add_u32 v24, 0x9E3779B8, v24\nv_or_b32 v24, 1, v24\nv_add_u32 v25, 0x7F4A7C15, v25\nv_mov_b32 v28, 0\n'
                     f's_mov_b64 exec, 1\nglobal_store_dwordx2 v28, v[24:25], {sp(P_DBG)} sc1\ns_mov_b64 exec, -1'))
        A(f'{sk}:')
        o += flat(dmas(1)) + skload(1) + skload(2) + skload(3)
        if O['codepf']: o += stream('pf', self.code_prefetch())
        o += self.stamp(0)
        A(f'v_lshrrev_b32 v28, 3, v{vL}'); A(f'v_and_b32 v29, 7, v{vL}')
        A(f's_lshr_b32 s3, s{sW}, 1'); A(f's_and_b32 s4, s{sW}, 1'); A('s_mul_i32 s5, s3, 8704'); A('s_lshl_b32 s6, s4, 3'); A('s_add_u32 s5, s5, s6')
        A('v_mul_u32_u24 v31, 1088, v29'); A('v_lshl_add_u32 v31, v28, 4, v31'); A('v_add_u32 v34, s5, v31'); A(f'v_add_u32 v35, {VB}, v34')
        A('v_lshlrev_b32 v30, 15, v28'); A('v_lshl_add_u32 v30, v29, 4, v30'); A('s_lshl_b32 s5, s4, 14'); A('s_lshl_b32 s6, s3, 7'); A('s_add_u32 s5, s5, s6'); A('v_add_u32 v36, s5, v30')
        A('s_lshl_b32 s4, s9, 10'); A(f's_add_u32 s4, s4, {WS_KVT}')
        S0 = 40; KR = 128; VR = 150; KF = 168; VF = 184; RS = 188; PO = 196
        for sg in range(4):
            o += [WAITVM(f'kv{sg}'), I('s_barrier')]
            c = []; C = lambda t, **k: c.append(I(t, **k))
            for i in range(-3, 8):
                off = (17*sg + 1) * 1088 + i * 128 if i >= 0 else 17*sg * 1088 + (8 + i) * 128
                C(f'ds_read_b64 {vr(KR+2*(i+3),2)}, v34 offset:{off}')
                if i >= 0: C(f'ds_read_b64 {vr(VR+2*i,2)}, v35 offset:{16*sg*1088 + i*128}')
            for e in range(4):
                for j in range(4):
                    src = SKR + 8 * sg + 2 * e + (j >> 1)
                    if j & 1: C(f'v_and_b32 v{S0+4*j+e}, s{sMASK}, v{src}')
                    else: C(f'v_lshlrev_b32 v{S0+4*j+e}, 16, v{src}')
            def unpackk(i):
                for m in range(2):
                    d = KF + 4 * ((i + 4) & 3) + 2 * m
                    C(f'v_lshlrev_b32 v{d}, 16, v{KR+2*(i+3)+m}'); C(f'v_and_b32 v{d+1}, s{sMASK}, v{KR+2*(i+3)+m}')
            for i in range(-3, 0): unpackk(i)
            for i in range(8):
                unpackk(i)
                for m in range(2):
                    C(f'v_lshlrev_b32 v{VF+2*m}, 16, v{VR+2*i+m}'); C(f'v_and_b32 v{VF+2*m+1}, s{sMASK}, v{VR+2*i+m}')
                R = RS + 4 * (i & 1)
                kf = lambda j, m: vr(KF + 4 * ((i - j + 4) & 3) + 2 * m, 2)
                for m in range(2): C(f'v_pk_mul_f32 {vr(R+2*m,2)}, {kf(3,m)}, {vr(S0+12+2*m,2)}')
                for j in (2, 1, 0):
                    for m in range(2): C(f'v_pk_fma_f32 {vr(R+2*m,2)}, {kf(j,m)}, {vr(S0+4*j+2*m,2)}, {vr(R+2*m,2)}')
                for m in range(2): C(f'v_pk_mul_f32 {vr(R+2*m,2)}, {vr(R+2*m,2)}, {vr(VF+2*m,2)}')
                if i & 1:
                    q = (7 - i) // 2
                    for e in range(4): C(f'v_cvt_pk_bf16_f32 v{PO+4*e+q}, v{RS+4+e}, v{RS+e}')
            c += col(sg, 7); C('s_lshl_b32 s7, s7, 18'); C('s_add_u32 s7, s7, s4')
            for e in range(4):
                C(f's_add_u32 s6, s7, {e*4096 + 256*sg}')
                C(f'buffer_store_dwordx4 {vr(PO+4*e,4)}, v36, {srd(SWS)}, s6 offen sc1', tag='kvst')
            ld = dmas(sg + 2) if sg < 2 else []
            body = c[:19]; rest = c[19:]
            step = max(1, (len(rest) - 14) // max(1, len(ld)))
            k = 0
            for n, x in enumerate(rest):
                if n % step == 0 and k < len(ld): body += ld[k]; k += 1
                body.append(x)
            assert k == len(ld)
            o += body
            if sg == 0: o += stream('nonce', self.nonce_issue())
            if sg == 1: o += stream('nonce', self.nonce_check())
        o += self.stamp(1)
        A('s_lshl_b32 s13, s2, 7'); A(f's_add_u32 s13, s13, {FL_KV}')
        o += stream('late', self.late_a()) + stream('ssm', self.ssm_loads()) + stream('late', self.late_b())
        o += [WAITVM('kvst'), WAITLGKM0(), I('s_barrier')]
        sk = self.lab('kf')
        o.append(RAW(f's_cmp_lg_u32 s{sW}, 0\ns_cbranch_scc1 {sk}\nv_mov_b32 v{vT}, 0\ns_mov_b64 exec, 1\n'
                     f'buffer_store_dwordx2 {vr(vN,2)}, v{vT}, {srd(SWS)}, s13 offen sc1\ns_mov_b64 exec, -1\n{sk}:', defs=f'scc v{vT}'))
        o += self.stamp(2)
        o += stream('late', self.late_c())
        if O.get('wdtouch'):
            for part in range(O['wdtouch']): o += stream(f'wt{part}', self.wd_touch(part))
        o += stream('stg', self.stage_setup())
        for k in range(2): o += flat(stream('wd', self.wd_dma(k)))
        o += stream('kvp', self.kv_poll_addr() + [self.poll_issue(14, 'kvp')])
        o += stream('zero', self.zero_fill()) + stream('cop', self.copies_build()) + stream('gate', self.gate_loads())
        for k in range(2, 4): o += flat(stream('wd', self.wd_dma(k)))
        o += self.mk_srd(SHS, P_WS, 0)
        A(f's_mov_b32 s{sHo0}, 0'); A(f's_mov_b32 s{sHo1}, 0'); A('s_mov_b32 s13, 0')
        o += [WAITLGKM0(), I('s_nop 7'), I('s_branch L_join')]
        return flat(o)

    def build(self):
        flat = lambda L: [y for x in L for y in (x if isinstance(x, list) else [x])]
        main = self.prologue() + flat(self.gemm1()) + [I('L_join:')] + self.tail() + [I('L_end:'), I('s_endpgm')]
        main = flat(main)
        hel = [RESET()] + self.helper()
        allc = main + hel
        def after_sd0(L, stop):
            i = next(n for n, x in enumerate(L) if x.tag == 'sd0'); r = []
            for x in L[i:]:
                if stop(x): break
                if x.kind == 'vmem' or (x.pseudo == 'raw' and ('load' in x.text or 'store' in x.text)): r.append(x.text)
            return r
        assert after_sd0(main, lambda x: x.text == 'L_join:') == after_sd0(hel, lambda x: 'L_join' in x.text)
        check_tags(allc)
        temps = set(regs('s', 3, 13)) | set(regs('v', 28, 4)) | {('scc', 0), ('vcc_lo', 0), ('m0', 0), ('v', vFl), ('v', vP), ('v', vP+1), ('v', vU0), ('v', vU1)}
        check_streams(allc, temps, allow={(None, 'hfl'), (None, 'dma'), (None, 'fl')})
        allc = insert_nops(insert_waits(allc))
        self.ins = allc
        hdr = open('cdna_kernels/' + NAME + '.s.ref').read().split('\n')
        head = [l for l in hdr if l.startswith(';') and '@launch' not in l and 'Override launch' not in l and 'grid=ceil' not in l]
        txt = '\n'.join(head) + '\n' + f'; @launch grid=(256,1,1) block=(256,1,1) lds={LDS_BYTES}\n'
        txt += f'.amdgcn_target "amdgcn-amd-amdhsa--gfx950"\n.text\n.globl {NAME}_kernel\n.p2align 12\n{".fill " + str(self.o["pad"]) + ", 4, 0xbf800000" if self.o.get("pad") else ""}\n.p2align 8\n.type {NAME}_kernel,@function\n{NAME}_kernel:\n'
        txt += render(allc) + 'L_codeend:\n'
        txt += f'''.section .rodata,"a"
.p2align 6
.amdhsa_kernel {NAME}_kernel
  .amdhsa_next_free_vgpr 512
  .amdhsa_next_free_sgpr 102
  .amdhsa_accum_offset 256
  .amdhsa_group_segment_fixed_size 0
  .amdhsa_kernarg_size 112
  .amdhsa_user_sgpr_count 2
  .amdhsa_user_sgpr_kernarg_segment_ptr 1
  .amdhsa_system_sgpr_workgroup_id_x 1
  .amdhsa_float_denorm_mode_32 3
.end_amdhsa_kernel
'''
        return txt

if __name__ == '__main__':
    out = sys.argv[1]
    kw = {}
    for a in sys.argv[2:]:
        k, v = a.split('=')
        try: v = int(v)
        except ValueError: pass
        kw[k] = v
    txt = Gen(**kw).build()
    open(out, 'w').write(txt)
```

```python
import sys, json
from asmlib import *

NAME = 'gated_mix__ssm_conv_h3__glu_gated_reglu__prompt'
WS_H   = 0
WS_KVT = 0x900000
WS_YT  = 0xB00000
WS_G   = 0xD00000
FL_H   = 0xD40000
FL_KV  = 0xD60000
FL_G   = 0xD68000
FL_Y   = 0xD80000
WS_PROF= 0xD20000
WS_SIZE= 0xE00000
L_W = 0
L_X = 81920
L_C = 32768
L_S = 98304
L_X0 = 0
L_X1 = 32768
L_Q = 147456
L_Y = 155648
LDS_BYTES = 163840
CSTR = 2368
UOFF = 9280

P_Q, P_K, P_V, P_SK, P_SSM, P_D, P_BX, P_WG, P_WU, P_WD, P_GW, P_OUT, P_DBG, P_WS = [16 + 2 * i for i in range(14)]
SX, SA, SB, SWS, SHS, SSM, SOUT = 44, 48, 52, 56, 60, 64, 68
sN = 72
sG = 74
sW, sW4K, sC0, sXb, sWb, sWo, sXo, sHo0, sHo1, sTB, sDB, sMASK, sSPIN, sD = range(88, 102)
STAMPS = [28, 30, 32, 24, 26, 34, 40, 42, 38]
STAMPS2 = [16, 18, 20, 22, 24, 26, 30, 32, 38]
sPW, sPX = 16, 20
sCP = sW4K
def srd(n): return f's[{n}:{n+3}]'
def sp(n): return f's[{n}:{n+1}]'
def vr(n, k): return f'v[{n}:{n+k-1}]' if k > 1 else f'v{n}'
def ar(n, k): return f'a[{n}:{n+k-1}]'
def regs(t, n, k): return [(t, i) for i in range(n, n + k)]
vL, vL16 = 0, 1
vX, vW, vA, vB = 2, 6, 10, 14
vCA, vCB, vG0, vG1, vHl, vFl, vP, vN = 18, 19, 20, 21, 22, 23, 24, 26
vT = 28
vS = 22
vR0, vR1 = 20, 21
SWD = SOUT; sSB = 29; sSO = sHo1
KG = 12
vQ = 12
vGW = 144 - 144 + 98; vGX = 102
vGL = 116
vDV = 19
FA = [32, 56]; FB = [48, 72]
vD = 80; vCT = 98; vU0 = 110; vU1 = 111; vKV = 112
ACC1 = 128
CA = 32; CBR = 56
ACC2 = 32
HR = 160; NHR = 24
vBS = 128; vGA = 136; vGG = 152; vE = 154
vXR = 96
aWD = 0; aCV = 224

DEF = dict(prof=0, E=2, dma_gap=0, p_nonce=6, p_ssm=2, nA=0, KG=12, gstep=16, p0=3, kr=10, p_kv=15, kvoff=2, epi0=1, epix=22, hflag=44, hpoll=50, hcheck=58, htouch=0, hstart=58,
           b0=28, b1=7, lag=20, c0=62, sleep=4, hrate=1,
           yflag=16, ypoll=68, ycheck=92, apart=104, gpoll=6, ldx='', ldw='', ldkv='nt', ldwd='', ldssm='nt', codepf=1, spin=200000, rot2='dx', wdtouch=1, cswap=0)

class Gen:
    def __init__(self, **kw):
        self.o = dict(DEF); self.o.update(kw)
        global KG
        KG = self.o['KG']; assert KG % 4 == 0
        self.nlab = 0
        self.nstamp = 0
    def lab(self, base):
        self.nlab += 1; return f'L_{base}_{self.nlab}'
    def stamp(self, k, st='std'):
        if not self.o['prof'] or (self.o.get('stampset', 'std') != st and k < 8): return []
        x = I(f'{"s_memrealtime" if self.o.get("rt") else "s_memtime"} {sp(self.stamps()[k])}'); x.note = 'stamp'; return [x]
    def stamps(self): return STAMPS2 if self.o.get('stampset') in ('conv', 'g2') else STAMPS
    def mk_srd(self, d, p, size, bias=0):
        o = []
        if bias:
            o += [I(f's_sub_u32 s{d}, s{p}, {bias}'), I(f's_subb_u32 s{d+1}, s{p+1}, 0')]
        else:
            o += [I(f's_mov_b64 {sp(d)}, {sp(p)}')]
        o += [I(f's_mov_b32 s{d+2}, {size + bias}'), I(f's_mov_b32 s{d+3}, 0x20000')]
        return o
    def ws_base(self):
        b = self.o.get('wsbase', 0) << 20
        return [I(f's_add_u32 s{P_WS}, s{P_WS}, {b}'), I(f's_addc_u32 s{P_WS+1}, s{P_WS+1}, 0')] if b else []
    def poll_issue(self, soff_reg, tag):
        return I(f'buffer_load_dwordx2 {vr(vP,2)}, v{vFl}, {srd(SWS)}, s{soff_reg} offen sc1', tag=tag)
    def poll_check(self, soff_reg):
        ok = self.lab('ok'); lp = self.lab('lp')
        if self.o.get('nopoll'): return [I(f'v_cmp_eq_u64 vcc, {sp(sN)}, {vr(vP,2)}')]
        return [I(f'v_cmp_eq_u64 vcc, {sp(sN)}, {vr(vP,2)}'), I('s_cmp_eq_u64 vcc, exec'), I(f's_cbranch_scc1 {ok}'),
                RAW(f's_mov_b32 s{sSPIN}, 0\n{lp}:\nbuffer_load_dwordx2 {vr(vP,2)}, v{vFl}, {srd(SWS)}, s{soff_reg} offen sc1\ns_waitcnt vmcnt(0)\n'
                    f'v_cmp_eq_u64 vcc, {sp(sN)}, {vr(vP,2)}\ns_add_u32 s{sSPIN}, s{sSPIN}, 1\ns_nop 1\ns_cmp_eq_u64 vcc, exec\ns_cbranch_scc1 {ok}\n'
                    f's_sleep {self.o["sleep"]}\ns_cmp_lt_u32 s{sSPIN}, {self.o["spin"]}\ns_cbranch_scc1 {lp}', defs=f'vcc scc', uses=f's{soff_reg} v{vFl}'),
                I(f'{ok}:')]
    def nonce_issue(self):
        return [I(f'v_mov_b32 v{vT}, 0'), I(f'global_load_dwordx2 {vr(vN,2)}, v{vT}, {sp(P_DBG)} sc1', tag='nonce')]
    def nonce_check(self):
        ok = self.lab('nok'); lp = self.lab('nlp')
        return [I(f'v_cmp_ne_u32 vcc, 0, v{vN}'), I('s_cmp_eq_u64 vcc, exec'), I(f's_cbranch_scc1 {ok}'),
                RAW(f's_mov_b32 s{sSPIN}, 0\nv_mov_b32 v{vT}, 0\n{lp}:\nglobal_load_dwordx2 {vr(vN,2)}, v{vT}, {sp(P_DBG)} sc1\ns_waitcnt vmcnt(0)\n'
                    f'v_cmp_ne_u32 vcc, 0, v{vN}\ns_add_u32 s{sSPIN}, s{sSPIN}, 1\ns_nop 1\ns_cmp_eq_u64 vcc, exec\ns_cbranch_scc1 {ok}\n'
                    f's_sleep {self.o["sleep"]}\ns_cmp_lt_u32 s{sSPIN}, {self.o["spin"]}\ns_cbranch_scc1 {lp}', defs=f'vcc scc v{vT}'),
                I(f'{ok}:'), I(f'v_readfirstlane_b32 s{sN}, v{vN}'), I(f'v_readfirstlane_b32 s{sN+1}, v{vN+1}')]
    def flag_store(self, tag, soff_reg, srdn=SWS):
        return [I(f'v_mov_b32 v{vT}, 0'), WAITVM(tag), I('s_mov_b64 exec, 1'),
                I(f'buffer_store_dwordx2 {vr(vN,2)}, v{vT}, {srd(srdn)}, s{soff_reg} offen sc1'), I('s_mov_b64 exec, -1')]

    def prologue(self):
        o = []; A = lambda t, **k: o.append(I(t, **k))
        A('s_cmp_ge_u32 s2, 256'); A('s_cbranch_scc1 L_end')
        if self.o['prof']: A('s_memrealtime s[74:75]'); A('s_memrealtime s[76:77]' if self.o.get('rt') else 's_memtime s[76:77]')
        if self.o.get('delay'):
            o.append(RAW(f's_mov_b32 s3, 0\nL_delay:\ns_nop 15\ns_nop 15\ns_nop 15\ns_nop 15\ns_add_u32 s3, s3, 1\ns_cmp_lt_u32 s3, {self.o["delay"]}\ns_cbranch_scc1 L_delay'))
        A('s_load_dwordx16 s[16:31], s[0:1], 0'); A('s_load_dwordx8 s[32:39], s[0:1], 64'); A('s_load_dwordx4 s[40:43], s[0:1], 96')
        A(f'v_lshrrev_b32 v1, 6, v0'); A(f'v_and_b32 v{vL}, 63, v0'); A(f'v_readfirstlane_b32 s{sW}, v1')
        A(f'v_lshlrev_b32 v{vL16}, 4, v{vL}')
        A(f's_lshl_b32 s{sW4K}, s{sW}, 12')
        A(f's_mov_b32 s{sMASK}, 0xffff0000')
        A('s_and_b32 s3, s2, 7'); A('s_lshr_b32 s4, s2, 3')
        A('s_and_b32 s5, s3, 3'); A('s_lshr_b32 s6, s3, 2')
        A('s_lshl_b32 s7, s5, 3'); A('s_lshl_b32 s8, s6, 2'); A('s_add_u32 s7, s7, s8'); A('s_and_b32 s8, s4, 3')
        A(f's_add_u32 s{sTB}, s7, s8'); A(f's_lshr_b32 s{sDB}, s4, 2')
        A('s_cmp_lt_u32 s2, 32'); A('s_cbranch_scc1 L_helper')
        return o

    def gemm_prologue(self):
        o = []; A = lambda t, **k: o.append(I(t, **k))
        A('s_sub_u32 s4, s4, 4'); A('s_and_b32 s7, s4, 3'); A('s_lshr_b32 s8, s4, 2')
        A('s_lshl_b32 s9, s5, 2'); A('s_add_u32 s9, s9, s7')
        A('s_mul_i32 s10, s6, 7'); A('s_add_u32 s10, s10, s8')
        A('s_lshl_b32 s11, s5, 1'); A('s_add_u32 s11, s11, s6')
        if self.o.get('norot'): A(f's_mov_b32 s{sC0}, 0')
        else: A(f's_and_b32 s{sC0}, s11, 7')
        A(f's_lshl_b32 s{sXb}, s9, 17'); A(f's_lshl_b32 s11, s{sW}, 15'); A(f's_add_u32 s{sXb}, s{sXb}, s11')
        A(f's_mul_i32 s{sWb}, s{sW}, {8*3584}'); A('s_lshl_b32 s11, s10, 8'); A(f's_add_u32 s{sWb}, s{sWb}, s11')
        A(f'v_lshrrev_b32 v28, 3, v{vL}'); A('v_lshlrev_b32 v28, 10, v28')
        A(f'v_and_b32 v29, 7, v{vL}'); A(f'v_lshrrev_b32 v30, 4, v{vL}'); A('v_xor_b32 v29, v29, v30'); A('v_lshl_add_u32 v28, v29, 4, v28')
        A(f'v_lshrrev_b32 v29, 4, v{vL}'); A('v_mul_u32_u24 v30, 3584, v29')
        A(f'v_bfe_u32 v31, v{vL}, 1, 3'); A('v_lshlrev_b32 v29, 1, v29'); A('v_xor_b32 v31, v31, v29')
        A(f'v_and_b32 v29, 1, v{vL}'); A('v_lshlrev_b32 v29, 4, v29'); A('v_lshl_or_b32 v31, v31, 5, v29')
        for k in range(4):
            A(f's_add_u32 s11, s8, {k}'); A('s_and_b32 s11, s11, 3')
            A('s_and_b32 s12, s11, 1'); A('s_lshl_b32 s12, s12, 6'); A('s_lshl_b32 s13, s11, 13')
            A(f'v_xor_b32 v29, s12, v28'); A(f'v_add_u32 v{vX+k}, s13, v29')
            A(f's_add_u32 s11, s7, {k}'); A('s_and_b32 s11, s11, 3')
            A('s_and_b32 s12, s11, 1'); A('s_lshl_b32 s12, s12, 5'); A('s_lshr_b32 s13, s11, 1'); A(f's_mul_i32 s13, s13, {4*3584}')
            A(f'v_xor_b32 v29, s12, v31'); A(f'v_add3_u32 v{vW+k}, v29, v30, s13')
        A(f's_lshl_b32 s{sXo}, s{sC0}, 7'); A(f's_add_u32 s{sXo}, s{sXo}, s{sXb}')
        A(f's_mul_i32 s{sWo}, s{sC0}, {64*3584}'); A(f's_add_u32 s{sWo}, s{sWo}, s{sWb}')
        A(f's_and_b32 s11, s{sW}, 1'); A(f's_lshr_b32 s12, s{sW}, 1')
        A('s_lshl_b32 s13, s9, 1'); A('s_add_u32 s13, s13, s11')
        A('s_mul_i32 s14, s13, 112'); A('s_lshl_b32 s15, s10, 3'); A('s_add_u32 s14, s14, s15'); A('s_lshl_b32 s15, s12, 2'); A('s_add_u32 s14, s14, s15')
        A(f's_lshl_b32 s{sHo0}, s14, 11')
        A('s_mul_i32 s13, s13, 28'); A('s_lshl_b32 s14, s10, 1'); A('s_add_u32 s13, s13, s14'); A('s_add_u32 s13, s13, s12'); A('s_lshl_b32 s13, s13, 7')
        A(f's_add_u32 s13, s13, {FL_H}')
        o.append(WAITLGKM0())
        o += self.ws_base()
        if self.o['prof']: A('s_mov_b32 s0, s74'); A('s_mov_b32 s1, s76')
        o += self.mk_srd(SX, P_Q, 0x200000)
        A('s_and_b32 s11, s7, 1'); A('s_cmp_eq_u32 s11, 0')
        A(f's_cselect_b64 {sp(SA)}, {sp(P_WG)}, {sp(P_WU)}'); A(f's_cselect_b64 {sp(SB)}, {sp(P_WU)}, {sp(P_WG)}')
        for d in (SA, SB): A(f's_mov_b32 s{d+2}, {512*3584}'); A(f's_mov_b32 s{d+3}, 0x20000')
        for k in range(4):
            A(f's_add_u32 s11, s7, {k}'); A('s_and_b32 s11, s11, 3'); A('s_lshl_b32 s11, s11, 10'); A(f's_add_u32 s{sPW+k}, s11, s{sW4K}')
            A(f's_add_u32 s11, s8, {k}'); A('s_and_b32 s11, s11, 3'); A('s_lshl_b32 s11, s11, 10'); A(f's_add_u32 s{sPX+k}, s11, s{sW4K}')
        return [x for x in o if x is not None]

    def dma_x(self, c, ks, so):
        fl = self.o['ldx']
        return [[I(f's_add_u32 m0, s{sPX+k}, {L_X + (c % 3) * 16384}'), I(f'buffer_load_dwordx4 v{vX+k}, {srd(SX)}, s{so} offen {fl} lds', tag=f'x{c}')] for k in ks]
    def dma_w(self, H, ks, so):
        fl = self.o['ldw']
        return [[I(f's_add_u32 m0, s{sPW+k}, {L_W + ((H + 1) % 5) * 16384}'), I(f'buffer_load_dwordx4 v{vW+k}, {srd(SB if k & 1 else SA)}, s{so} offen {fl} lds', tag=f'w{H}')] for k in ks]
    def off_w(self, H, d):
        o = [I(f's_add_u32 s{d}, s{sC0}, {H>>1}'), I(f's_and_b32 s{d}, s{d}, 7'), I(f's_mul_i32 s{d}, s{d}, {64*3584}'), I(f's_add_u32 s{d}, s{d}, s{sWb}')]
        if H & 1: o.append(I(f's_add_u32 s{d}, s{d}, {32*3584}'))
        return o
    def off_x(self, c, d):
        return [I(f's_add_u32 s{d}, s{sC0}, {c}'), I(f's_and_b32 s{d}, s{d}, 7'), I(f's_lshl_b32 s{d}, s{d}, 7'), I(f's_add_u32 s{d}, s{d}, s{sXb}')]

    def gemm_addr(self):
        o = []; A = lambda t, **k: o.append(I(t, **k))
        A(f's_lshr_b32 s3, s{sW}, 1'); A('s_lshl_b32 s3, s3, 2')
        A(f'v_bfe_u32 v28, v{vL}, 2, 2')
        A(f'v_bfe_u32 v29, v{vL}, 1, 1')
        A('v_lshl_or_b32 v30, v28, 1, v29')
        A('v_lshlrev_b32 v28, 8, v28'); A('v_lshl_or_b32 v28, v29, 10, v28')
        A(f'v_lshrrev_b32 v29, 5, v{vL}'); A('v_lshl_or_b32 v28, v29, 12, v28')
        A(f'v_bfe_u32 v29, v{vL}, 4, 1'); A('v_lshl_or_b32 v28, v29, 4, v28')
        A(f'v_and_b32 v29, 1, v{vL}'); A('v_lshl_or_b32 v28, v29, 3, v28')
        A('v_xor_b32 v30, s3, v30')
        for a in range(4):
            A(f'v_xor_b32 v29, {a}, v30'); A(f'v_lshl_or_b32 v{vA+a}, v29, 5, v28')
        A(f's_and_b32 s3, s{sW}, 1'); A('s_lshl_b32 s3, s3, 13'); A(f's_add_u32 s3, s3, {L_X}')
        A(f'v_and_b32 v28, 31, v{vL}'); A('v_lshlrev_b32 v28, 7, v28'); A('v_add_u32 v28, s3, v28')
        A(f'v_bfe_u32 v29, v{vL}, 1, 3'); A(f'v_lshrrev_b32 v30, 5, v{vL}'); A('v_xor_b32 v29, v29, v30')
        for s in range(4):
            A(f'v_xor_b32 v30, {2*s}, v29'); A(f'v_lshl_add_u32 v{vB+s}, v30, 4, v28')
        return o

    def frag_reads(self, S):
        st = S & 1; H = S >> 1; c = S >> 2
        fa, fb = FA[st], FB[st]
        wo = L_W + ((H + 1) % 5) * 16384 + st * 8192
        xo = (c % 3) * 16384
        def rb(b): return I(f'ds_read_b128 {vr(fb+4*b,4)}, v{vB+(S&3)} offset:{xo + 4096*b}', tag=f'B{S}_{b}')
        def ra(a): return [I(f'ds_read_b64_tr_b16 {vr(fa+4*a+2*j,2)}, v{vA+a} offset:{wo + 2048*j}', tag=f'A{S}_{a}') for j in range(2)]
        pre = []
        hi = (H + 1) % 5 == 4
        if hi: wo -= 65536
        if st == 0 and hi: pre = [I(f'v_add_u32 v{vA+a}, 0x10000, v{vA+a}') for a in range(4)]
        if st == 0 and H > 0 and H % 5 == 4: pre = [I(f'v_subrev_u32 v{vA+a}, 0x10000, v{vA+a}') for a in range(4)]
        return [rb(0)] + pre + ra(0) + [rb(1)] + ra(1) + ra(2) + ra(3)

    def late_setup(self): return self.late_a() + self.late_b() + self.late_c()
    def late_a(self):
        o = []; A = lambda t, **k: o.append(I(t, **k))
        A('s_lshr_b32 s5, s2, 5'); A('s_mul_i32 s5, s5, 3'); A('s_and_b32 s5, s5, 7'); A('s_cmp_lt_u32 s5, 2')
        A(f's_cselect_b32 s5, {96 if self.o.get("cswap", 1) else 0}, 0'); A(f's_xor_b32 s{sCP}, s2, s5')
        o += self.mk_srd(SWS, P_WS, WS_SIZE)
        A(f's_lshr_b32 s5, s{sW}, 1'); A(f's_lshl_b32 s6, s{sCP}, 1'); A('s_add_u32 s5, s5, s6')
        A('s_lshl_b32 s6, s5, 12')
        A(f's_add_u32 s{SSM}, s{P_SSM}, s6'); A(f's_addc_u32 s{SSM+1}, s{P_SSM+1}, 0'); A(f's_mov_b32 s{SSM+2}, 4096'); A(f's_mov_b32 s{SSM+3}, 0x20000')
        A(f's_lshl_b32 s6, s{sCP}, 2'); A(f'v_mov_b32 v{vT}, s6')
        A(f'global_load_dword v{vDV}, v{vT}, {sp(P_D)}', tag='dval')
        return o
    def late_b(self):
        o = []; A = lambda t, **k: o.append(I(t, **k))
        r2 = self.o['rot2']
        A('s_mov_b32 s7, 0')
        if 'd' in r2: A(f's_mul_i32 s8, s{sDB}, 7'); A('s_add_u32 s8, s8, 2'); A('s_lshr_b32 s7, s8, 2')
        if 't' in r2: A(f's_and_b32 s8, s{sTB}, 3'); A('s_mul_i32 s8, s8, 7'); A('s_add_u32 s8, s8, 1'); A('s_lshr_b32 s8, s8, 1'); A('s_add_u32 s7, s7, s8')
        if 'x' in r2: A('s_and_b32 s8, s2, 7'); A('s_mul_i32 s8, s8, 7'); A('s_lshr_b32 s8, s8, 2'); A('s_add_u32 s7, s7, s8')
        A('s_sub_u32 s8, s7, 14'); A('s_cmp_ge_u32 s7, 14'); A('s_cselect_b32 s7, s8, s7')
        A(f's_mul_i32 s8, s{sW}, {28*2048}'); A('s_lshl_b32 s7, s7, 12')
        A(f's_add_u32 s9, s8, {14*4096}')
        A(f's_add_u32 s{sG}, s7, s8')
        for g in range(1, 14):
            A(f's_add_u32 s{sG+g}, s{sG+g-1}, 4096'); A(f's_cmp_eq_u32 s{sG+g}, s9'); A(f's_cselect_b32 s{sG+g}, s8, s{sG+g}')
        return o
    def late_d(self):
        o = []; A = lambda t, **k: o.append(I(t, **k))
        A(f's_lshl_b32 s6, s{sW}, 14'); A(f's_add_u32 s6, s6, {L_C}')
        A(f'v_and_b32 v30, 3, v{vL}'); A(f'v_mul_u32_u24 v30, {CSTR}, v30')
        A(f'v_and_b32 v31, 28, v{vL}'); A('v_lshl_add_u32 v30, v31, 1, v30')
        A(f'v_lshrrev_b32 v31, 5, v{vL}'); A('v_lshlrev_b32 v31, 4, v31')
        A('v_sub_u32 v30, v30, v31'); A('s_add_u32 s7, s6, 16'); A(f'v_add_u32 v{vCA}, s7, v30')
        A(f'v_and_b32 v30, 31, v{vL}'); A('v_mul_u32_u24 v30, 144, v30'); A(f's_add_u32 s7, s6, {UOFF}'); A(f'v_add3_u32 v{vCB}, v30, v31, s7')
        return o
    def after_staging(self):
        return [I(f's_mul_i32 s9, s{sTB}, {112*2048}'), I(f'v_add_u32 v{vHl}, s9, v{vL16}')] + self.mk_srd(SOUT, P_OUT, 0x200000)
    def late_c(self):
        o = []; A = lambda t, **k: o.append(I(t, **k))
        A(f'v_readfirstlane_b32 s{sD}, v{vDV}', expect=[([('v', vDV)], 'dval')]); A(f's_lshr_b32 s7, s{sW}, 1'); A('s_lshl_b32 s7, s7, 4'); A(f's_lshr_b32 s{sD}, s{sD}, s7'); A(f's_lshl_b32 s{sD}, s{sD}, 16')
        return o

    def zero_fill(self):
        o = []; A = lambda t, **k: o.append(I(t, **k))
        A(f's_lshl_b32 s6, s{sW}, 14'); A(f's_add_u32 s6, s6, {L_C + UOFF}'); A(f'v_add_u32 v{vU0}, s6, v{vL16}')
        for i in range(4): A(f'v_mov_b32 v{vCT+i}, 0')
        for i in range(5): A(f'ds_write_b128 v{vU0}, {vr(vCT,4)} offset:{1024*i}')
        return o
    def ssm_loads(self):
        o = []; A = lambda t, **k: o.append(I(t, **k))
        fl = self.o['ldssm']
        A(f's_and_b32 s6, s{sW}, 1'); A('s_mul_i32 s6, s6, 2048'); A('s_sub_u32 s6, s6, 128')
        A(f'v_add_u32 v30, s6, v{vL16}')
        A('v_add_u32 v31, 16, v30'); A('v_add_u32 v29, 1024, v30')
        A(f'v_cmp_gt_i32 vcc, 0, v30'); A('v_bfrev_b32 v28, 1'); A('v_cndmask_b32 v30, v30, v28, vcc')
        A(f'v_cmp_gt_i32 vcc, 0, v31'); A('v_cndmask_b32 v31, v31, v28, vcc')
        A(f'buffer_load_dwordx4 {vr(vD,4)}, v30, {srd(SSM)}, 0 offen {fl}')
        A(f'buffer_load_dwordx2 {vr(vD+4,2)}, v31, {srd(SSM)}, 0 offen {fl}')
        A(f'buffer_load_dwordx4 {vr(vD+6,4)}, v29, {srd(SSM)}, 0 offen {fl}')
        A(f'buffer_load_dwordx2 {vr(vD+10,2)}, v29, {srd(SSM)}, 0 offen offset:16 {fl}')
        A(f'buffer_load_dwordx4 {vr(vD+12,4)}, v29, {srd(SSM)}, 0 offen offset:1024 {fl}')
        A(f'buffer_load_dwordx2 {vr(vD+16,2)}, v29, {srd(SSM)}, 0 offen offset:1040 {fl}')
        return o
    def copies_build(self):
        o = []; A = lambda t, **k: o.append(I(t, **k))
        A(f's_lshl_b32 s6, s{sW}, 14'); A(f's_add_u32 s6, s6, {L_C}'); A(f'v_add_u32 v{vU1}, s6, v{vL16}')
        for p in range(3):
            d = vD + 6 * p
            for i in range(4): A(f'v_alignbyte_b32 v{vCT+i}, v{d+i+1}, v{d+i}, 2')
            for i in range(4): A(f'v_mov_b32 v{vCT+4+i}, v{d+i+1}')
            for i in range(4): A(f'v_alignbyte_b32 v{vCT+8+i}, v{d+i+2}, v{d+i+1}, 2')
            w = [I(f'ds_write_b128 v{vU1}, {vr(vCT+4*c,4)} offset:{c*CSTR + 1024*p}') for c in range(3)]
            w.append(I(f'ds_write_b128 v{vU1}, {vr(d+2,4)} offset:{3*CSTR + 1024*p}'))
            if p < 2: o += w
            else: o.append([I('s_mov_b64 exec, 0xff')] + w + [I('s_mov_b64 exec, -1')])
        return o
    def kv_poll_addr(self):
        return [I(f's_lshr_b32 s14, s{sCP}, 5'), I(f'v_and_b32 v{vFl}, 3, v{vL}'), I(f'v_sub_u32 v{vFl}, s14, v{vFl}'), I(f'v_and_b32 v{vFl}, 7, v{vFl}'),
                I(f'v_lshlrev_b32 v{vFl}, 7, v{vFl}'), I(f's_lshl_b32 s14, s{sW}, 10'), I(f's_add_u32 s14, s14, {FL_KV}')]
    def kv_loads(self):
        o = []; A = lambda t, **k: o.append(I(t, **k))
        A(f's_lshr_b32 s5, s{sW}, 1'); A(f's_lshl_b32 s6, s{sCP}, 1'); A('s_add_u32 s5, s5, s6'); A('s_lshl_b32 s5, s5, 12'); A(f's_add_u32 s5, s5, {WS_KVT}')
        for i in range(4): A(f'buffer_load_dwordx4 {vr(vKV+4*i,4)}, v{vL16}, {srd(SWS)}, s5 offen offset:{1024*i} sc1')
        return o
    def u_writes(self):
        o = []; A = lambda t, **k: o.append(I(t, **k))
        A(f's_and_b32 s5, s{sW}, 1'); A('s_mul_i32 s7, s5, 2304')
        A(f's_lshl_b32 s6, s{sW}, 14'); A(f's_add_u32 s6, s6, {L_C + UOFF + 15*144}'); A('s_add_u32 s6, s6, s7')
        A(f'v_lshrrev_b32 v30, 3, v{vL}'); A('v_mul_u32_u24 v30, 144, v30'); A(f'v_and_b32 v31, 7, v{vL}'); A('v_lshl_add_u32 v30, v31, 4, v30')
        A(f'v_add_u32 v{vU0}, s6, v30'); A('s_sub_u32 s7, 2304, s7'); A(f'v_add_u32 v{vU1}, s7, v{vU0}')
        for i in (2, 3): A(f'ds_write_b128 v{vU1}, {vr(vKV+4*i,4)} offset:{1152*(i-2)}')
        for i in (0, 1): A(f'ds_write_b128 v{vU0}, {vr(vKV+4*i,4)} offset:{1152*i}')
        return o
    def wd_touch(self, part):
        o = []; A = lambda t, **k: o.append(I(t, **k))
        mode = self.o['wdtouch']
        A('s_lshr_b32 s5, s2, 3'); A('s_lshl_b32 s5, s5, 2'); A(f's_add_u32 s5, s5, s{sW}')
        if mode == 1:
            A('s_mul_i32 s5, s5, 14'); A(f'v_min_u32 v28, 13, v{vL}'); A('v_add_u32 v28, s5, v28'); A('v_lshlrev_b32 v28, 10, v28'); A('v_add_u32 v28, 384, v28')
        else:
            A('s_mul_i32 s5, s5, 112'); A(f's_add_u32 s5, s5, {56*part}'); A(f'v_min_u32 v28, 55, v{vL}'); A('v_add_u32 v28, s5, v28'); A('v_lshlrev_b32 v28, 7, v28')
        A(f'global_load_dword v126, v28, {sp(P_WD)}')
        return o
    def stage_setup(self):
        o = []; A = lambda t, **k: o.append(I(t, **k))
        o += self.mk_srd(SWD, P_WD, 1792 * 1024)
        A(f'v_lshrrev_b32 v28, 3, v{vL}'); A(f'v_bfe_u32 v29, v{vL}, 4, 1'); A('v_lshlrev_b32 v29, 2, v29'); A(f'v_and_b32 v30, 7, v{vL}'); A('v_xor_b32 v29, v29, v30')
        A('v_lshlrev_b32 v28, 10, v28'); A('v_lshl_add_u32 v28, v29, 4, v28'); A(f's_lshl_b32 s5, s{sDB}, 7'); A(f'v_add_u32 v{vS}, s5, v28')
        A(f's_lshl_b32 s5, s{sW}, 13'); A(f's_add_u32 s{sSB}, s5, {L_S}')
        A(f'v_lshrrev_b32 v28, 5, v{vL}'); A(f'v_bfe_u32 v29, v{vL}, 2, 2'); A('v_lshl_or_b32 v28, v28, 2, v29'); A('v_lshlrev_b32 v28, 7, v28'); A(f'v_add_u32 v28, s{sSB}, v28')
        A(f'v_and_b32 v29, 1, v{vL}'); A('v_lshl_add_u32 v28, v29, 3, v28')
        A(f'v_bfe_u32 v29, v{vL}, 4, 1'); A(f'v_bfe_u32 v30, v{vL}, 1, 1'); A('v_lshl_or_b32 v29, v29, 1, v30')
        A(f'v_bfe_u32 v30, v{vL}, 3, 1'); A('v_lshl_or_b32 v29, v30, 2, v29')
        A(f's_and_b32 s5, s{sW}, 1'); A('s_lshl_b32 s5, s5, 2'); A(f's_and_b32 s6, s{sW}, 2'); A('s_or_b32 s5, s5, s6'); A('v_xor_b32 v29, s5, v29')
        A(f'v_lshl_add_u32 v{vR0}, v29, 4, v28'); A('v_xor_b32 v29, 4, v29'); A(f'v_lshl_add_u32 v{vR1}, v29, 4, v28')
        return o
    def slot(self, k):
        upper = k < KG or (((k - KG) >> 2) & 1) == 1
        return (k & 3) * 2048 + (32768 if upper else 0)
    def wd_dma(self, k, slot=None):
        fl = self.o['ldwd']
        o = []
        prev = k - 4 if k < KG else (None if k < KG + 4 else k - 8)
        if slot is None:
            slot = self.slot(k)
            if prev is not None and prev >= 0: o.append(NEED(regs('a', aWD + 8 * prev, 8)))
        o.append(I(f's_lshl_b32 s{sSO}, s{sG+(k>>1)}, 3') if k % 2 == 0 else I(f's_add_u32 s{sSO}, s{sSO}, {16384 - 7168}'))
        o.append(I(f's_add_u32 m0, s{sSB}, {slot}') if slot >= 0 else I(f's_sub_u32 m0, s{sSB}, {-slot}'))
        L = [I(f'buffer_load_dwordx4 v{vS}, {srd(SWD)}, s{sSO} offen offset:{1024*j} {fl} lds', tag=f'sd{k}') for j in range(2)]
        return [o + [L[0], I(f's_add_u32 s{sSO}, s{sSO}, 7168'), L[1]]]
    def wd_read(self, k, slot=None, base=vR0):
        if slot is None: slot = self.slot(k)
        return [WAITVM(f'sd{k}')] + [I(f'ds_read_b64_tr_b16 {ar(aWD+8*k+4*dt+2*j,2)}, v{base+dt} offset:{slot + 1024*j}', tag=f'wd{k}_{dt}') for dt in range(2) for j in range(2)]

    def gemm1(self):
        O = self.o; E = O['E']
        o = self.gemm_prologue()
        flat = lambda L: [y for x in L for y in (x if isinstance(x, list) else [x])]
        if O.get('ptouch') and O.get('ptfirst'): o += self.page_touch()
        o += flat(self.dma_x(0, range(4), sXo)) + flat(self.dma_w(0, range(4), sWo)) + self.off_w(1, sWo) + flat(self.dma_w(1, range(4), sWo))
        if O['codepf']: o += self.code_prefetch()
        if O.get('ptouch') and not O.get('ptfirst'): o += self.page_touch()
        if E:
            o += self.off_x(1, 4) + flat(self.dma_x(1, [0], 4))
            for U in range(2, 2 + E): o += self.off_w(U, 3) + flat(self.dma_w(U, [0], 3))
        o += self.stamp(0)
        o += self.gemm_addr()
        o += self.mk_srd(SHS, P_WS, WS_SIZE)
        o += [WAITVM(['x0', 'w0']), I('s_barrier')] + self.stamp(1) + self.frag_reads(0)
        W = Weave()
        for S in range(32):
            st = S & 1
            for i in range(8):
                a, b = i >> 1, i & 1
                acc = ACC1 + 32 * a + 16 * b
                c = '0' if S == 0 else vr(acc, 16)
                m = I(f'v_mfma_f32_32x32x16_bf16 {vr(acc,16)}, {vr(FA[st]+4*a,4)}, {vr(FB[st]+4*b,4)}, {c}',
                      expect=[(regs('v', FA[st]+4*a, 4), f'A{S}_{a}'), (regs('v', FB[st]+4*b, 4), f'B{S}_{b}')])
                pre = []
                if i == 0 and st == 1:
                    H = (S + 1) >> 1
                    pre = [WAITLGKM0(), WAITVM([f'w{H}', f'x{H>>1}']), I('s_barrier')]
                W.mfma(m, pre)
        for S in range(31): W.place(self.frag_reads(S + 1), 8 * S, per_gap=2)
        pstart = lambda H: max(0, 8 * (2 * H - 1))
        late = [1, 2, 3] if E else [0, 1, 2, 3]
        g = 0
        for H in range(14):
            items = []
            if H % 2 == 0 and H // 2 + 1 < 8: items += [[x] for x in self.off_x(H // 2 + 1, sXo)] + self.dma_x(H // 2 + 1, late, sXo)
            items += [[x] for x in self.off_w(H + 2, sWo)] + self.dma_w(H + 2, late, sWo)
            nlate = len(items)
            if E and H + 2 + E < 16: items += [[x] for x in self.off_w(H + 2 + E, 3)] + self.dma_w(H + 2 + E, [0], 3)
            if E and H % 2 == 0 and H // 2 + 2 < 8: items += [[x] for x in self.off_x(H // 2 + 2, 4)] + self.dma_x(H // 2 + 2, [0], 4)
            stream('dma', items)
            g = max(g, pstart(H))
            for it in items:
                isd = any(x.kind == 'vmem' for x in it)
                g = W.place([it], g)
                if any(x.tag == 'x7' for x in it): gx = g
                if isd and H > 0: g += O['dma_gap']
            assert g <= pstart(H + 2), (H, g)
        gd = g
        g = 2; sx = O.get('setupx', 16)
        if O.get('wdtouch'): g = W.place(stream('wt', self.wd_touch(0)), g, extra=sx)
        g = W.place(stream('late', self.late_a() + self.late_b()), g, extra=sx)
        g = W.place(stream('stg', self.stage_setup()), g, extra=sx)
        p0 = O['p0']
        assert g < pstart(p0) + 10, g
        W.place(stream('late', self.late_c()), pstart(5) + 12)
        W.place(stream('nonce', [self.nonce_issue()]), pstart(O['p_nonce']) + 13)
        W.place(stream('nonce', [self.nonce_check()]), pstart(O['p_nonce'] + 2) + 5)
        W.place(stream('ssm', self.ssm_loads()), pstart(O['p_ssm']) + 13)
        g = 0
        ev = [(pstart(p0) + 10 + k * O['gstep'], 1, k) for k in range(KG)] + [(min(pstart(p0) + 5 + k * O['gstep'] + 48, 250), 0, k) for k in range(O['kr'])]
        ev.sort()
        for pos, kind, k in ev:
            g = W.place(stream('wd', self.wd_dma(k) if kind else self.wd_read(k)), max(g, pos), extra=8)
        pk = O['p_kv']
        g = W.place(stream('kvp', self.kv_poll_addr() + [self.poll_issue(14, 'kvp')]), pstart(pk - 1) + O['kvoff'], extra=8)
        assert g < pstart(pk)
        W.spine[pstart(pk)][0][0:0] = stream('kvp', self.poll_check(14))
        g = W.place(stream('kvp', self.kv_loads()), pstart(pk), extra=8)
        g = W.place(stream('late', self.late_d()), pstart(13) + 4)
        g = W.place(stream('zero', self.zero_fill()), max(g, pstart(14)))
        g = W.place(stream('cop', self.copies_build()), g, extra=4)
        g = W.place(stream('gate', self.gate_loads()), g, extra=8)
        g = W.place(stream('uw', self.u_writes()), max(g, 8 * 31 + 3), extra=20)
        for k in range(8): W.gaps[32 * k] += self.stamp(k, 'g1')
        o += W.flatten()
        o += self.stamp(2)
        return o

    def page_touch(self):
        o = []; A = lambda t, **k: o.append(I(t, **k))
        sk = self.lab('pt')
        A(f's_cmp_lg_u32 s{sW}, {self.o["ptouch"] - 1}'); A(f's_cbranch_scc1 {sk}')
        A(f'v_min_u32 v28, 6, v{vL}'); A('v_lshlrev_b32 v28, 21, v28'); A('v_mov_b32 v29, 0')
        t = ['s_mov_b64 exec, 0x7f', f'global_load_dword v126, v28, {sp(P_WS)}', 's_mov_b64 exec, 1']
        for p in (P_OUT, P_WD, P_SSM, P_D, P_GW, P_DBG): t.append(f'global_load_dword v126, v29, {sp(p)}')
        t.append('s_mov_b64 exec, -1')
        o.append(RAW('\n'.join(t)))
        A(f'{sk}:')
        return o

    def code_prefetch(self):
        o = []; A = lambda t, **k: o.append(I(t, **k))
        sk = self.lab('pf'); pc = self.lab('pc')
        A(f's_cmp_lg_u32 s{sW}, 3'); A(f's_cbranch_scc1 {sk}')
        A('s_getpc_b64 s[6:7]'); A(f'{pc}:')
        A(f's_sub_u32 s6, s6, {pc}-{NAME}_kernel'); A('s_subb_u32 s7, s7, 0')
        A('s_lshr_b32 s3, s2, 3'); A('s_and_b32 s3, s3, 7'); A('s_mul_i32 s3, s3, 5120')
        A(f'v_min_u32 v28, 39, v{vL}'); A('v_lshlrev_b32 v28, 7, v28'); A('v_add_u32 v28, s3, v28')
        A(f'v_min_u32 v28, L_codeend-{NAME}_kernel-4, v28')
        o.append(RAW('global_load_dword v127, v28, s[6:7]'))
        A(f'{sk}:')
        return o

    def conv(self, W):
        O = self.o
        pre = []
        def ra(sg):
            d = CA + 4 * (sg % 6)
            return [I(f'ds_read_b64 {vr(d+2*j,2)}, v{vCA} offset:{32*sg + 8*j}', tag=f'cA{sg}') for j in range(2)]
        def rb(st):
            d = CBR + 4 * (st % 4)
            return I(f'ds_read_b128 {vr(d,4)}, v{vCB} offset:{(15-(st>>2))*144 + 32*(3-(st&3))}', tag=f'cB{st}')
        pre += ra(0) + [rb(0)] + ra(2) + ra(1) + [rb(1)] + ra(3)
        base = len(W.spine)
        for st in range(64):
            for m in range(2):
                sg = st + 2 * m
                acc = aCV + 16 * m
                c = '0' if st == 0 else ar(acc, 16)
                W.mfma(I(f'v_mfma_f32_32x32x16_bf16 {ar(acc,16)}, {vr(CA+4*(sg%6),4)}, {vr(CBR+4*(st%4),4)}, {c}',
                         expect=[(regs('v', CA+4*(sg%6), 4), f'cA{sg}'), (regs('v', CBR+4*(st%4), 4), f'cB{st}')]), pre if (st == 0 and m == 0) else None)
        for st in range(64):
            it = []
            if st + 2 < 64: it.append(rb(st + 2))
            if st + 4 < 66: it += ra(st + 4)
            W.place(it[:2], base + 2 * st); W.place(it[2:], base + 2 * st + 1)
        return base

    def h_epilogue(self):
        o = []
        for a in range(4):
            for b in range(2):
                R = ACC1 + 32 * a + 16 * b
                for h in (0, 8):
                    for i in range(4): o.append(I(f'v_max_f32 v{R+h+i}, 0, v{R+h+i}'))
                    for i in range(4): o.append(I(f'v_mul_f32 v{R+h+i}, v{R+h+i}, v{R+h+4+i}'))
                for q, src in enumerate((0, 2, 8, 10)): o.append(I(f'v_cvt_pk_bf16_f32 v{R+4+q}, v{R+src}, v{R+src+1}'))
                so = sHo0
                if a == 2 and b == 0: o.append(I(f's_add_u32 s{sHo0}, s{sHo0}, 4096'))
                if self.o.get('nohst'): continue
                o.append(I(f'buffer_store_dwordx4 {vr(R+4,4)}, v{vL16}, {srd(SHS)}, s{so} offen offset:{(a&1)*2048 + b*1024} {self.o.get("sth", "sc1")}', tag='hst'))
        return o
    def h_load(self, i):
        p, s = divmod(i, 28)
        return I(f'buffer_load_dwordx4 {vr(HR+4*(i%NHR),4)}, v{vHl}, {srd(SWS)}, s{sG+(s>>1)} offen offset:{(s&1)*2048 + p*1024} {self.o.get("ldh", "sc1")}', tag=f'h{i}')
    def h_poll_addr(self):
        return [I(f'v_min_u32 v{vFl}, 6, v{vL}'), I(f'v_lshlrev_b32 v{vFl}, 7, v{vFl}'),
                I(f's_mul_i32 s14, s{sTB}, {28*128}'), I(f's_mul_i32 s15, s{sW}, {7*128}'), I('s_add_u32 s14, s14, s15'), I(f's_add_u32 s14, s14, {FL_H}')]

    def h_touch(self):
        o = []; A = lambda t, **k: o.append(I(t, **k))
        A(f's_mul_i32 s5, s{sTB}, {112*2048}'); A(f's_mul_i32 s6, s{sW}, {28*2048}'); A('s_add_u32 s5, s5, s6'); A(f's_mul_i32 s6, s{sDB}, {56*128}'); A('s_add_u32 s5, s5, s6')
        A(f'v_min_u32 v28, 55, v{vL}'); A('v_lshlrev_b32 v28, 7, v28')
        A(f'buffer_load_dword v{vP}, v28, {srd(SWS)}, s5 offen sc1', tag='ht')
        return o

    def conv_epilogue(self):
        a = []; A = lambda t, **k: a.append(I(t, **k))
        A(f's_lshl_b32 s6, s{sW}, 14'); A(f's_add_u32 s6, s6, {L_C}')
        A(f'v_and_b32 v30, 31, v{vL}'); A('v_mul_u32_u24 v30, 272, v30'); A(f'v_lshrrev_b32 v31, 5, v{vL}'); A('v_lshl_add_u32 v30, v31, 4, v30'); A('v_add_u32 v30, s6, v30')
        addr = a; a = []
        for m in range(2):
            for g in range(4): A(f'ds_write_b128 v30, {ar(aCV+16*m+4*g,4)} offset:{(32*m+8*g)*4}')
        wr = a; a = []
        A(f's_and_b32 s5, s{sW}, 2'); A('s_lshl_b32 s5, s5, 14'); A(f's_add_u32 s5, s5, {L_C}')
        A(f's_and_b32 s7, s{sW}, 1'); A('s_lshl_b32 s7, s7, 4')
        A(f'v_lshrrev_b32 v28, 3, v{vL}'); A('v_add_u32 v28, s7, v28'); A(f'v_and_b32 v29, 7, v{vL}')
        A('v_mul_u32_u24 v31, 272, v28'); A('v_lshl_add_u32 v31, v29, 5, v31'); A(f'v_add_u32 v{vGG}, s5, v31')
        A('v_mul_u32_u24 v31, 144, v28'); A('v_lshl_add_u32 v31, v29, 4, v31'); A(f's_add_u32 s5, s5, {UOFF + 15*144}'); A(f'v_add_u32 v{vGG+1}, s5, v31')
        A(f's_lshr_b32 s5, s{sW}, 1'); A(f's_lshl_b32 s6, s{sCP}, 1'); A('s_add_u32 s5, s5, s6')
        A(f's_and_b32 s7, s{sW}, 1'); A('s_lshl_b32 s12, s5, 12'); A('s_lshl_b32 s8, s7, 11'); A('s_add_u32 s12, s12, s8'); A(f's_add_u32 s12, s12, {WS_YT}')
        A('s_lshr_b32 s8, s5, 6'); A('s_lshl_b32 s8, s8, 1'); A('s_add_u32 s8, s8, s7'); A('s_lshl_b32 s8, s8, 13'); A('s_and_b32 s11, s5, 63'); A('s_lshl_b32 s11, s11, 7')
        A('s_add_u32 s11, s11, s8'); A(f's_add_u32 s11, s11, {FL_Y}')
        addr2 = a; a = []
        P0 = vXR; P1 = vXR + 8; U = vXR + 16; T = vXR + 20; Y = vXR + 24
        for rho in range(2):
            for x in range(2): A(f'ds_read_b128 {vr(P0+4*x,4)}, v{vGG} offset:{rho*2176 + 16*x}')
            for x in range(2): A(f'ds_read_b128 {vr(P1+4*x,4)}, v{vGG} offset:{16384 + rho*2176 + 16*x}')
            A(f'ds_read_b128 {vr(U,4)}, v{vGG+1} offset:{rho*1152}')
            for e in range(8): A(f'v_add_f32 v{P0+e}, v{P0+e}, v{P1+e}')
            for q in range(4):
                A(f'v_lshlrev_b32 v{T}, 16, v{U+q}'); A(f'v_and_b32 v{T+1}, s{sMASK}, v{U+q}')
                A(f'v_fmac_f32 v{P0+7-2*q}, s{sD}, v{T}'); A(f'v_fmac_f32 v{P0+6-2*q}, s{sD}, v{T+1}')
            for q in range(4): A(f'v_cvt_pk_bf16_f32 v{Y+4*rho+q}, v{P0+2*q}, v{P0+2*q+1}')
            A(f'buffer_store_dwordx4 {vr(Y+4*rho,4)}, v{vL16}, {srd(SWS)}, s12 offen offset:{1024*rho} sc1', tag='yst')
        return addr, wr, addr2, a

    def exch_write(self, p):
        o = []
        for j, (dt, gp, m) in enumerate(((0, 1, 2), (1, 0, 1), (1, 1, 3))):
            R = ACC2 + 32 * p + 16 * dt + 8 * gp
            for x in range(2): o.append(I(f'ds_write_b128 v{vE+j}, {vr(R+4*x,4)} offset:{(L_X1 if p else L_X0) + j*2048 + 1024*x}'))
        return o
    def exch_read(self, p):
        return [I(f'ds_read_b128 {vr(vXR+8*j+4*x,4)}, v{vE+3} offset:{(L_X1 if p else L_X0) + j*2048 + 1024*x}') for j in range(3) for x in range(2)]
    def exch_sum(self, p, dst):
        o = []; R = ACC2 + 32 * p
        for e in range(8): o.append(I(f'v_add_f32 v{vXR+e}, v{vXR+e}, v{vXR+8+e}'))
        for e in range(8): o.append(I(f'v_add_f32 v{dst+e}, v{R+e}, v{vXR+16+e}'))
        for e in range(8): o.append(I(f'v_add_f32 v{dst+e}, v{dst+e}, v{vXR+e}'))
        return o
    def final_addr(self):
        o = []; A = lambda t, **k: o.append(I(t, **k))
        for j, m in enumerate((2, 1, 3)):
            A(f's_xor_b32 s5, s{sW}, {m}'); A('s_mul_i32 s5, s5, 6144'); A(f'v_add_u32 v{vE+j}, s5, v{vL16}')
        A(f's_mul_i32 s5, s{sW}, 6144'); A(f'v_add_u32 v{vE+3}, s5, v{vL16}')
        return o
    def q_dma(self):
        o = []; A = lambda t, **k: o.append(I(t, **k))
        A(f'v_lshrrev_b32 v28, 3, v{vL}'); A('v_lshlrev_b32 v28, 10, v28'); A(f'v_and_b32 v29, 7, v{vL}'); A(f'v_lshrrev_b32 v30, 4, v{vL}'); A('v_xor_b32 v29, v29, v30')
        A(f'v_lshl_add_u32 v{vQ}, v29, 4, v28'); A(f'v_xor_b32 v{vQ+1}, 64, v{vQ}'); A(f'v_add_u32 v{vQ+1}, 7168, v{vQ+1}')
        A(f's_lshl_b32 s5, s{sTB}, 16'); A(f's_lshl_b32 s6, s{sW}, 14'); A('s_add_u32 s5, s5, s6'); A(f's_lshl_b32 s6, s{sDB}, 7'); A('s_add_u32 s5, s5, s6')
        A(f's_lshl_b32 s6, s{sW}, 11'); A(f's_add_u32 m0, s6, {L_Q}')
        for n in range(2): A(f'buffer_load_dwordx4 v{vQ+n}, {srd(SX)}, s5 offen offset:{1024*n} lds', tag='q')
        return o[:-3] + [o[-3:]]
    def y_poll_addr(self):
        o = []; A = lambda t, **k: o.append(I(t, **k))
        A(f's_and_b32 s10, s{sW}, 1'); A('s_lshl_b32 s10, s10, 1'); A(f's_lshr_b32 s15, s{sW}, 1'); A('s_add_u32 s10, s10, s15')
        A(f'v_and_b32 v{vFl}, 15, v{vL}'); A(f'v_lshlrev_b32 v{vFl}, 7, v{vFl}')
        A(f's_lshl_b32 s14, s{sDB}, 1'); A(f's_lshr_b32 s15, s{sTB}, 4'); A('s_add_u32 s14, s14, s15'); A('s_lshl_b32 s14, s14, 13')
        A('s_lshl_b32 s15, s10, 11'); A('s_add_u32 s14, s14, s15'); A(f's_add_u32 s14, s14, {FL_Y}')
        return o
    def y_dma(self):
        o = []; A = lambda t, **k: o.append(I(t, **k))
        A(f'v_lshrrev_b32 v28, 3, v{vL}'); A('v_lshlrev_b32 v28, 12, v28'); A(f'v_and_b32 v29, 7, v{vL}'); A('v_lshl_add_u32 v28, v29, 4, v28')
        A(f'v_add_u32 v29, {8*4096 - 1024}, v28')
        A(f's_lshl_b32 s5, s{sDB}, 18'); A('s_lshl_b32 s6, s10, 16'); A('s_add_u32 s5, s5, s6'); A(f's_lshl_b32 s6, s{sTB}, 7'); A('s_add_u32 s5, s5, s6'); A(f's_add_u32 s5, s5, {WS_YT}')
        A('s_lshl_b32 s6, s10, 11'); A(f's_add_u32 m0, s6, {L_Y}')
        for n in range(2): A(f'buffer_load_dwordx4 v{28+n}, {srd(SWS)}, s5 offen offset:{1024*n} sc1 lds', tag='y')
        return o[:-3] + [o[-3:]]
    def gate_loads(self):
        o = []; A = lambda t, **k: o.append(I(t, **k))
        A(f's_lshl_b32 s5, s{sTB}, 3'); A(f's_add_u32 s5, s5, s{sDB}'); A('s_lshl_b32 s5, s5, 2'); A(f's_add_u32 s5, s5, s{sW}'); A('s_lshl_b32 s5, s5, 11')
        A(f'global_load_dwordx4 {vr(vGW,4)}, v{vL16}, {sp(P_GW)}')
        for i in range(2): A(f'buffer_load_dwordx4 {vr(vGX+4*i,4)}, v{vL16}, {srd(SX)}, s5 offen offset:{1024*i}')
        return o
    def gate_compute(self):
        o = []; A = lambda t, **k: o.append(I(t, **k))
        Z = vGX
        for i in range(2):
            R = vGX + 4 * i
            A(f'v_dot2_f32_bf16 v{R}, v{R}, v{vGW}, 0')
            for m in range(1, 4): A(f'v_dot2_f32_bf16 v{R}, v{R+m}, v{vGW+m}, v{R}')
        A(f'v_permlane32_swap_b32 v{Z}, v{Z+4}'); A(f'v_add_f32 v{Z}, v{Z}, v{Z+4}')
        A(f'v_mov_b32 v{Z+1}, v{Z}'); A(f'v_permlane16_swap_b32 v{Z}, v{Z+1}'); A(f'v_add_f32 v{Z}, v{Z}, v{Z+1}')
        for sh in (8, 4, 2, 1): A(f'v_add_f32_dpp v{Z}, v{Z}, v{Z} row_ror:{sh} row_mask:0xf bank_mask:0xf')
        A(f'v_cvt_pk_bf16_f32 v{Z}, v{Z}, v{Z}'); A(f'v_and_b32 v{Z}, s{sMASK}, v{Z}')
        A(f'v_mul_f32 v{Z}, 0xbfb8aa3b, v{Z}'); A(f'v_exp_f32 v{Z}, v{Z}'); A(f'v_add_f32 v{Z}, 1.0, v{Z}'); A(f'v_rcp_f32 v{Z}, v{Z}')
        A(f'v_cvt_pk_bf16_f32 v{Z}, v{Z}, v{Z}'); A(f'v_and_b32 v{Z}, s{sMASK}, v{Z}'); A(f'v_sub_f32 v{Z+1}, 1.0, v{Z}'); A(f'v_cvt_pk_bf16_f32 v{Z}, v{Z}, v{Z+1}')
        A(f'v_mov_b32 v{Z+1}, s{sN}')
        A(f'v_lshrrev_b32 v{Z+2}, 5, v{vL}'); A(f'v_lshlrev_b32 v{Z+2}, 3, v{Z+2}')
        A(f's_lshl_b32 s5, s{sTB}, 3'); A(f's_add_u32 s5, s5, s{sDB}'); A('s_lshl_b32 s5, s5, 2'); A(f's_add_u32 s5, s5, s{sW}'); A('s_lshl_b32 s5, s5, 4'); A(f's_add_u32 s5, s5, {WS_G}')
        o.append([I('s_mov_b32 exec_lo, 1'), I('s_mov_b32 exec_hi, 1'), I(f'buffer_store_dwordx2 {vr(Z,2)}, v{Z+2}, {srd(SWS)}, s5 offen sc1'), I('s_mov_b64 exec, -1')])
        return o
    def g_issue(self):
        o = []; A = lambda t, **k: o.append(I(t, **k))
        A(f'v_and_b32 v{vFl}, 31, v{vL}'); A(f'v_lshlrev_b32 v{vFl}, 3, v{vFl}'); A(f's_lshl_b32 s14, s{sTB}, 9'); A(f's_add_u32 s14, s14, {WS_G}')
        for p in range(2): A(f'buffer_load_dwordx2 {vr(vGL+2*p,2)}, v{vFl}, {srd(SWS)}, s14 offen offset:{256*p} sc1')
        return o
    def g_check(self):
        ok = self.lab('gok'); lp = self.lab('glp')
        cmpx = f'v_cmp_eq_u32 vcc, s{sN}, v{vGL+1}\nv_cmp_eq_u32 s[6:7], s{sN}, v{vGL+3}\ns_add_u32 s{sSPIN}, s{sSPIN}, 1\ns_nop 1\ns_and_b64 vcc, vcc, s[6:7]'
        ld = '\n'.join(f'buffer_load_dwordx2 {vr(vGL+2*p,2)}, v{vFl}, {srd(SWS)}, s14 offen offset:{256*p} sc1' for p in range(2))
        mv = [I(f'v_mov_b32 v{vGG+p}, v{vGL+2*p}') for p in range(2)]
        if self.o.get('nopoll'): return mv
        return [[I(f'v_cmp_eq_u32 vcc, s{sN}, v{vGL+1}'), I(f'v_cmp_eq_u32 s[6:7], s{sN}, v{vGL+3}'), I('s_and_b64 vcc, vcc, s[6:7]'), I('s_cmp_eq_u64 vcc, exec'), I(f's_cbranch_scc1 {ok}'),
                RAW(f's_mov_b32 s{sSPIN}, 0\n{lp}:\n{ld}\ns_waitcnt vmcnt(0)\n{cmpx}\ns_cmp_eq_u64 vcc, exec\ns_cbranch_scc1 {ok}\n'
                    f's_sleep {self.o["sleep"]}\ns_cmp_lt_u32 s{sSPIN}, {self.o["spin"]}\ns_cbranch_scc1 {lp}', defs='vcc scc s6 s7', uses=f's14 v{vFl}'),
                I(f'{ok}:')]] + mv
    def a_part(self):
        o = []; A = lambda t, **k: o.append(I(t, **k))
        Q = vXR + 24; Yv = vXR + 28; T = vXR + 24
        A(f'v_lshrrev_b32 v28, 5, v{vL}'); A(f'v_bfe_u32 v29, v{vL}, 2, 2'); A('v_lshl_or_b32 v28, v28, 2, v29'); A('v_lshlrev_b32 v28, 7, v28')
        A(f'v_bfe_u32 v29, v{vL}, 4, 1'); A('v_lshl_or_b32 v28, v29, 5, v28'); A(f'v_and_b32 v29, 3, v{vL}'); A('v_lshl_or_b32 v28, v29, 3, v28')
        A('s_lshl_b32 s6, s10, 11'); A(f's_add_u32 s6, s6, {L_Y}'); A('v_add_u32 v28, s6, v28')
        A(f'v_bfe_u32 v29, v{vL}, 1, 3'); A('s_lshl_b32 s6, s10, 1'); A('v_xor_b32 v29, s6, v29')
        A(f'v_and_b32 v30, 31, v{vL}'); A('v_lshlrev_b32 v30, 7, v30'); A(f'v_lshrrev_b32 v31, 5, v{vL}'); A('v_lshl_or_b32 v30, v31, 3, v30'); A(f'v_add_u32 v30, {L_Q}, v30')
        A('v_xor_b32 v31, 1, v29'); A('v_lshl_add_u32 v29, v29, 4, v30'); A('v_lshl_add_u32 v30, v31, 4, v30')
        o.append(WAITVM('y'))
        QY = 120
        GF = 31
        for p in range(2):
            for gq in range(2):
                A(f'ds_read_b64 {vr(QY+2*gq,2)}, v{29+gq} offset:{4096*p}')
                A(f'ds_read_b64_tr_b16 {vr(QY+4+2*gq,2)}, v28 offset:{1024*gq + 64*p}')
            A(f'v_lshlrev_b32 v{GF}, 16, v{vGG+p}'); A(f'v_and_b32 v{vGG+p}, s{sMASK}, v{vGG+p}')
            for gq in range(2):
                for h in range(2):
                    d = vGA + 8 * p + 4 * gq + 2 * h
                    q, y = QY + 2 * gq + h, QY + 4 + 2 * gq + h
                    A(f'v_lshlrev_b32 v{d}, 16, v{q}'); A(f'v_and_b32 v{d+1}, s{sMASK}, v{q}')
                    A(f'v_lshlrev_b32 v{q}, 16, v{y}'); A(f'v_and_b32 v{y}, s{sMASK}, v{y}')
                    A(f'v_mul_f32 v{d}, v{d}, v{q}'); A(f'v_mul_f32 v{d+1}, v{d+1}, v{y}')
                    A(f'v_mul_f32 v{d}, v{d}, v{GF}'); A(f'v_mul_f32 v{d+1}, v{d+1}, v{GF}')
        return o
    def out_addr(self):
        o = []; A = lambda t, **k: o.append(I(t, **k))
        A(f'v_and_b32 v28, 31, v{vL}'); A('v_lshlrev_b32 v28, 10, v28'); A(f'v_lshrrev_b32 v29, 5, v{vL}'); A(f'v_lshl_or_b32 v{vE+4}, v29, 4, v28')
        A(f's_lshl_b32 s15, s{sTB}, 16'); A(f's_lshl_b32 s5, s{sDB}, 7'); A('s_add_u32 s15, s15, s5'); A('s_lshl_b32 s5, s10, 5'); A('s_add_u32 s15, s15, s5')
        A('s_add_u32 s9, s15, 32768')
        return o
    def out_store(self, p, B):
        o = []; A = lambda t, **k: o.append(I(t, **k))
        G = vGA + 8 * p
        for e in range(8): A(f'v_fmac_f32 v{G+e}, v{vGG+p}, v{B+e}')
        for q in range(4): A(f'v_cvt_pk_bf16_f32 v{B+q}, v{G+2*q}, v{G+2*q+1}')
        A(f'v_permlane32_swap_b32 v{B}, v{B+2}'); A(f'v_permlane32_swap_b32 v{B+1}, v{B+3}')
        A(f'buffer_store_dwordx4 {vr(B,4)}, v{vE+4}, {srd(SOUT)}, s{15 if p == 0 else 9} offen {self.o.get("stout", "")}')
        return o

    def tail(self):
        O = self.o
        W = Weave()
        for i in range(O['nA']): W.mfma(None)
        cb = self.conv(W)
        gb = len(W.spine)
        for i in range(56):
            p, s = divmod(i, 28)
            for dt in range(2):
                acc = ACC2 + 32 * p + 16 * dt
                c = '0' if s == 0 else vr(acc, 16)
                W.mfma(I(f'v_mfma_f32_32x32x16_bf16 {vr(acc,16)}, {ar(aWD+8*s+4*dt,4)}, {vr(HR+4*(i%NHR),4)}, {c}',
                         expect=[(regs('a', aWD+8*s+4*dt, 4), f'wd{s}_{dt}'), (regs('v', HR+4*(i%NHR), 4), f'h{i}')]))
        cg = lambda st: cb + 2 * st
        ge = W.place(self.h_epilogue(), O['epi0'], extra=O['epix'])
        dpos = lambda k: cb + O['b0'] + ((k - KG) * O['b1']) // 2
        rpos = lambda k: cb + 2 + 4 * (k - O['kr']) if k < KG else max(dpos(k) + O['lag'], cb + O['c0'] + 3 * (k - KG))
        ev = [(rpos(k), 0, k) for k in range(O['kr'], 28)]
        for k in range(KG, 28): ev.append((max(dpos(k), rpos(k - 8) if k >= KG + 4 and k - 8 >= O['kr'] else 0), 1, k))
        ev.sort()
        g = 0; gl = {}
        for pos, kind, k in ev:
            if kind == 0: g = max(g, W.place(stream('wd', self.wd_read(k)), max(g, pos), per_gap=3, extra=12))
            else: g = W.place(stream('wd', self.wd_dma(k)), max(g, pos), extra=12); gl[k] = g
        gwd = g
        assert g < gb + 12, (g, gb)
        W.place(stream('as', self.after_staging()), gl[27] + 1, extra=12)
        g = W.place(stream('gate', self.gate_compute()), ge + 1)
        g = W.place(stream('hfl', [self.flag_store('hst', 13, SHS)]), max(g, cb + O['hflag']), extra=12)
        assert g < cg(O['hpoll']), g
        g = W.place(stream('fa', self.final_addr()), g + 1)
        addr, wr, addr2, post = [stream('ce', z) for z in self.conv_epilogue()]
        g2 = W.place(addr + addr2, g + 1)
        assert g2 < gb
        g = W.place(stream('hp', self.h_poll_addr() + [self.poll_issue(14, 'hp')]), cg(O['hpoll']), extra=12)
        g = W.place(stream('hp', [self.poll_check(14)]), max(g + 1, cg(O['hcheck'])), extra=12)
        if O.get('htouch'): g = W.place(stream('hp', self.h_touch()), g, extra=12)
        npre = 0; g = max(g + 1, gl[27] + 4, cg(O.get('hstart', 0)))
        while g < gb and npre < NHR:
            W.place([self.h_load(npre)], g, extra=12); npre += 1; g += O['hrate']
        for i in range(npre, 56):
            earliest = gb + 2 * (i - NHR) + 1 if i >= NHR else gb
            pos = max(earliest, gb + 2 * (i - npre))
            W.place([self.h_load(i)], pos)
        g = W.place(wr, gb + 1)
        g = W.place([[WAITLGKM0(), I('s_barrier')]], max(g + 2, gwd + 1))
        g = W.place(post, g)
        W.place(self.stamp(5), g)
        g = W.place(stream('fa', self.q_dma()), g)
        g = W.place(stream('gp', self.g_issue()), max(g, gb + O['gpoll']))
        g = W.place(stream('ce', [self.flag_store('yst', 11)]), g + O['yflag'])
        g = W.place(stream('gp', self.g_check()), g + 1)
        g = W.place(stream('y', self.y_poll_addr() + [self.poll_issue(14, 'yp')]), max(g, gb + O['ypoll']))
        g = W.place(self.exch_write(0), max(g, gb + 56 + 3))
        g = W.place([[WAITLGKM0(), WAITVM('q'), I('s_barrier')]], g + 3)
        g = W.place(self.exch_read(0), g)
        g = W.place(self.exch_sum(0, vBS), g + 2)
        g = W.place(stream('y', [self.poll_check(14)] + self.y_dma()), max(g, gb + O['ycheck']))
        g = W.place(stream('y', self.out_addr()), g)
        g = W.place(stream('y', self.a_part()), max(g + 10, gb + O['apart']))
        W.gaps[cb] += self.stamp(3); W.gaps[gb] += self.stamp(4)
        for k in range(8):
            W.gaps[cb + 16 * k] += self.stamp(k, 'conv'); W.gaps[gb + 14 * k] += self.stamp(k, 'g2')
        o = W.flatten()
        o += self.stamp(6)
        o += self.exch_write(1) + stream('y', self.out_store(0, vBS)) + [WAITLGKM0(), I('s_barrier')] + self.exch_read(1) + self.exch_sum(1, vBS) + stream('y', self.out_store(1, vBS))
        if O.get('fixend'):
            o += [RAW(f's_or_b32 s3, s2, s{sW}\ns_cmp_lg_u32 s3, 0\ns_cbranch_scc1 L_fe2\ns_add_u32 s0, s0, {O["fixend"]}\nL_fe:\ns_memrealtime s[6:7]\ns_waitcnt lgkmcnt(0)\ns_sub_u32 s6, s6, s0\ns_cmp_lt_i32 s6, 0\ns_cbranch_scc1 L_fe\nL_fe2:')]
        if O['prof']:
            o += self.stamp(7) + [DRAIN()] + self.stamp(8) + [I('s_waitcnt lgkmcnt(0)')]
            o += [I('s_lshl_b32 s5, s2, 2'), I(f's_add_u32 s5, s5, s{sW}'), I('s_lshl_b32 s5, s5, 6'), I(f's_add_u32 s5, s5, {WS_PROF}'), I('v_mov_b32 v28, 0'), I('s_mov_b64 exec, 1')]
            for k, r in enumerate(self.stamps()):
                o += [I(f'v_mov_b32 v29, s{r}'), I(f'buffer_store_dword v29, v28, {srd(SWS)}, s5 offen offset:{4*k}')]
            o += [I('s_memrealtime s[6:7]'), I('s_waitcnt lgkmcnt(0)'), I('v_mov_b32 v29, s6'), I(f'buffer_store_dword v29, v28, {srd(SWS)}, s5 offen offset:40')]
            if O.get('dbgtime'):
                o += [I('v_not_b32 v30, s0'), I(f'global_atomic_umax v28, v30, {sp(P_DBG)} offset:16'), I(f'global_atomic_umax v28, v29, {sp(P_DBG)} offset:20')]
                for k, r in enumerate(STAMPS[:8]):
                    o += [I(f's_sub_u32 s6, s{r}, s1'), I('v_mov_b32 v31, s6'), I(f'global_atomic_umax v28, v31, {sp(P_DBG)} offset:{24+4*k}')]
            o += [I('v_mov_b32 v30, s0'), I(f'buffer_store_dword v30, v28, {srd(SWS)}, s5 offen offset:36'), I('v_mov_b32 v31, s1'), I(f'buffer_store_dword v31, v28, {srd(SWS)}, s5 offen offset:44')]
        return o

    def helper(self):
        O = self.o
        o = []; A = lambda t, **k: o.append(I(t, **k))
        A('L_helper:')
        A('s_and_b32 s8, s2, 7'); A('s_lshr_b32 s9, s2, 3')
        VB = 68 * 1088
        A(f'v_lshrrev_b32 v28, 3, v{vL}'); A(f'v_and_b32 v29, 7, v{vL}'); A('v_lshlrev_b32 v30, 10, v28'); A('v_lshl_add_u32 v32, v29, 4, v30')
        A('s_lshl_b32 s11, s9, 19'); A(f's_lshl_b32 s12, s{sW}, 15'); A('s_add_u32 s12, s12, s11')
        A(f's_mul_i32 s10, s{sW}, {4*1088}')
        A('v_bfrev_b32 v31, 1'); A('v_cmp_gt_u32 vcc, 5, v28'); A('v_cndmask_b32 v33, v32, v31, vcc')
        A('s_cmp_eq_u32 s9, 0'); A('s_cselect_b32 s13, 0x80000000, 0'); A('v_or_b32 v37, s13, v33')
        A('s_cselect_b32 s13, 0, 8192'); A('s_sub_u32 s13, s11, s13')
        A('v_lshlrev_b32 v30, 6, v28'); A(f's_and_b32 s14, s{sW}, 1'); A('s_lshl_b32 s14, s14, 5'); A('v_add_u32 v30, s14, v30')
        A('s_waitcnt lgkmcnt(0)')
        o += self.ws_base()
        if self.o['prof']: A('s_mov_b32 s0, s74'); A('s_mov_b32 s1, s76')
        o += self.mk_srd(SA, P_K, 0x200000) + self.mk_srd(SB, P_V, 0x200000)
        fl = O['ldkv']
        def col(sg, d): return [I(f's_add_u32 s{d}, s8, {sg}'), I(f's_and_b32 s{d}, s{d}, 7')]
        def dmas(sg):
            r = [col(sg, 15) + [I('s_lshl_b32 s15, s15, 7')]]
            sk = self.lab('h0')
            ho = f's_add_u32 s14, s13, s15' if sg == 0 else f's_add_u32 s14, s11, s15\ns_add_u32 s14, s14, {sg*131072 - 8192}'
            r.append([RAW(f's_cmp_lg_u32 s{sW}, 0\ns_cbranch_scc1 {sk}\n{ho}\ns_mov_b32 m0, {sg*17*1088}\ns_nop 0\n'
                          f'buffer_load_dwordx4 v{37 if sg == 0 else 33}, {srd(SA)}, s14 offen {fl} lds\n{sk}:', defs='s14 scc m0', uses='s15'),
                      I('s_add_u32 s15, s15, s12')])
            for j in range(4):
                r.append([I(f's_add_u32 m0, s10, {(17*sg + 1 + j)*1088}'), I(f's_add_u32 s14, s15, {sg*131072 + j*8192}'),
                          I(f'buffer_load_dwordx4 v32, {srd(SA)}, s14 offen {fl} lds', tag=f'kv{sg}')])
                r.append([I(f's_add_u32 m0, s10, {VB + (16*sg + j)*1088}'), I(f'buffer_load_dwordx4 v32, {srd(SB)}, s14 offen {fl} lds', tag=f'kv{sg}')])
            return r
        flat = lambda L: [y for x in L for y in (x if isinstance(x, list) else [x])]
        SKR = 56
        def skload(sg):
            return col(sg, 5) + [I('s_lshl_b32 s5, s5, 9'), I('v_add_u32 v31, s5, v30')] + [I(f'global_load_dwordx4 {vr(SKR+8*sg+4*i,4)}, v31, {sp(P_SK)} offset:{16*i}') for i in range(2)]
        o += flat(dmas(0)) + skload(0)
        o += self.mk_srd(SWS, P_WS, WS_SIZE) + self.mk_srd(SX, P_Q, 0x200000)
        sk = self.lab('np')
        A(f's_or_b32 s3, s2, s{sW}'); A('s_cmp_lg_u32 s3, 0'); A(f's_cbranch_scc1 {sk}')
        o.append(RAW(f'v_mov_b32 v28, {FL_KV}\nbuffer_load_dwordx2 v[24:25], v28, {srd(SWS)}, 0 offen sc1\ns_waitcnt vmcnt(0)\n'
                     'v_add_u32 v24, 0x9E3779B8, v24\nv_or_b32 v24, 1, v24\nv_add_u32 v25, 0x7F4A7C15, v25\nv_mov_b32 v28, 0\n'
                     f's_mov_b64 exec, 1\nglobal_store_dwordx2 v28, v[24:25], {sp(P_DBG)} sc1\ns_mov_b64 exec, -1'))
        A(f'{sk}:')
        o += flat(dmas(1)) + skload(1) + skload(2) + skload(3)
        if O['codepf']: o += stream('pf', self.code_prefetch())
        o += self.stamp(0)
        A(f'v_lshrrev_b32 v28, 3, v{vL}'); A(f'v_and_b32 v29, 7, v{vL}')
        A(f's_lshr_b32 s3, s{sW}, 1'); A(f's_and_b32 s4, s{sW}, 1'); A('s_mul_i32 s5, s3, 8704'); A('s_lshl_b32 s6, s4, 3'); A('s_add_u32 s5, s5, s6')
        A('v_mul_u32_u24 v31, 1088, v29'); A('v_lshl_add_u32 v31, v28, 4, v31'); A('v_add_u32 v34, s5, v31'); A(f'v_add_u32 v35, {VB}, v34')
        A('v_lshlrev_b32 v30, 15, v28'); A('v_lshl_add_u32 v30, v29, 4, v30'); A('s_lshl_b32 s5, s4, 14'); A('s_lshl_b32 s6, s3, 7'); A('s_add_u32 s5, s5, s6'); A('v_add_u32 v36, s5, v30')
        A('s_lshl_b32 s4, s9, 10'); A(f's_add_u32 s4, s4, {WS_KVT}')
        S0 = 40; KR = 128; VR = 150; KF = 168; VF = 184; RS = 188; PO = 196
        for sg in range(4):
            o += [WAITVM(f'kv{sg}'), I('s_barrier')]
            c = []; C = lambda t, **k: c.append(I(t, **k))
            for i in range(-3, 8):
                off = (17*sg + 1) * 1088 + i * 128 if i >= 0 else 17*sg * 1088 + (8 + i) * 128
                C(f'ds_read_b64 {vr(KR+2*(i+3),2)}, v34 offset:{off}')
                if i >= 0: C(f'ds_read_b64 {vr(VR+2*i,2)}, v35 offset:{16*sg*1088 + i*128}')
            for e in range(4):
                for j in range(4):
                    src = SKR + 8 * sg + 2 * e + (j >> 1)
                    if j & 1: C(f'v_and_b32 v{S0+4*j+e}, s{sMASK}, v{src}')
                    else: C(f'v_lshlrev_b32 v{S0+4*j+e}, 16, v{src}')
            def unpackk(i):
                for m in range(2):
                    d = KF + 4 * ((i + 4) & 3) + 2 * m
                    C(f'v_lshlrev_b32 v{d}, 16, v{KR+2*(i+3)+m}'); C(f'v_and_b32 v{d+1}, s{sMASK}, v{KR+2*(i+3)+m}')
            for i in range(-3, 0): unpackk(i)
            for i in range(8):
                unpackk(i)
                for m in range(2):
                    C(f'v_lshlrev_b32 v{VF+2*m}, 16, v{VR+2*i+m}'); C(f'v_and_b32 v{VF+2*m+1}, s{sMASK}, v{VR+2*i+m}')
                R = RS + 4 * (i & 1)
                kf = lambda j, m: vr(KF + 4 * ((i - j + 4) & 3) + 2 * m, 2)
                for m in range(2): C(f'v_pk_mul_f32 {vr(R+2*m,2)}, {kf(3,m)}, {vr(S0+12+2*m,2)}')
                for j in (2, 1, 0):
                    for m in range(2): C(f'v_pk_fma_f32 {vr(R+2*m,2)}, {kf(j,m)}, {vr(S0+4*j+2*m,2)}, {vr(R+2*m,2)}')
                for m in range(2): C(f'v_pk_mul_f32 {vr(R+2*m,2)}, {vr(R+2*m,2)}, {vr(VF+2*m,2)}')
                if i & 1:
                    q = (7 - i) // 2
                    for e in range(4): C(f'v_cvt_pk_bf16_f32 v{PO+4*e+q}, v{RS+4+e}, v{RS+e}')
            c += col(sg, 7); C('s_lshl_b32 s7, s7, 18'); C('s_add_u32 s7, s7, s4')
            for e in range(4):
                C(f's_add_u32 s6, s7, {e*4096 + 256*sg}')
                C(f'buffer_store_dwordx4 {vr(PO+4*e,4)}, v36, {srd(SWS)}, s6 offen sc1', tag='kvst')
            ld = dmas(sg + 2) if sg < 2 else []
            body = c[:19]; rest = c[19:]
            step = max(1, (len(rest) - 14) // max(1, len(ld)))
            k = 0
            for n, x in enumerate(rest):
                if n % step == 0 and k < len(ld): body += ld[k]; k += 1
                body.append(x)
            assert k == len(ld)
            o += body
            if sg == 0: o += stream('nonce', self.nonce_issue())
            if sg == 1: o += stream('nonce', self.nonce_check())
        o += self.stamp(1)
        A('s_lshl_b32 s13, s2, 7'); A(f's_add_u32 s13, s13, {FL_KV}')
        o += stream('late', self.late_a()) + stream('ssm', self.ssm_loads()) + stream('late', self.late_b())
        o += [WAITVM('kvst'), WAITLGKM0(), I('s_barrier')]
        sk = self.lab('kf')
        o.append(RAW(f's_cmp_lg_u32 s{sW}, 0\ns_cbranch_scc1 {sk}\nv_mov_b32 v{vT}, 0\ns_mov_b64 exec, 1\n'
                     f'buffer_store_dwordx2 {vr(vN,2)}, v{vT}, {srd(SWS)}, s13 offen sc1\ns_mov_b64 exec, -1\n{sk}:', defs=f'scc v{vT}'))
        o += self.stamp(2)
        o += stream('late', self.late_c() + self.late_d())
        o += stream('stg', self.stage_setup())
        kr = O['kr']
        used = {self.slot(k) for k in range(kr, KG)}
        free = [x for x in [32768 + 2048 * i for i in range(4)] + [2048 * i for i in range(4)] if x not in used] + [-L_S + 2048 * i for i in range(4)]
        place = {k: (free[k] if k < kr else self.slot(k)) for k in range(KG)}
        for k in range(min(4, KG)): o += flat(stream('wd', self.wd_dma(k, place[k])))
        o += stream('kvp', self.kv_poll_addr() + [self.poll_issue(14, 'kvp')])
        for k in range(4, KG): o += flat(stream('wd', self.wd_dma(k, place[k])))
        o += stream('zero', self.zero_fill()) + stream('cop', self.copies_build())
        o += stream('kvp', self.poll_check(14) + [I('s_barrier')] + self.kv_loads()) + stream('gate', self.gate_loads())
        A(f'v_subrev_u32 v38, {L_S}, v{vR0}'); A(f'v_subrev_u32 v39, {L_S}, v{vR1}')
        for k in range(kr):
            o += stream('wd', self.wd_read(k, place[k]) if place[k] >= 0 else self.wd_read(k, place[k] + L_S, 38))
        o += stream('uw', self.u_writes())
        o += self.mk_srd(SHS, P_WS, 0)
        A(f's_mov_b32 s{sHo0}, 0'); A('s_mov_b32 s13, 0')
        o += [DRAIN(), I('s_nop 7'), I('s_branch L_join')]
        return flat(o)

    def build(self):
        flat = lambda L: [y for x in L for y in (x if isinstance(x, list) else [x])]
        main = self.prologue() + flat(self.gemm1()) + [I('L_join:')] + self.tail() + [I('L_end:'), I('s_endpgm')]
        main = flat(main)
        hel = [RESET()] + self.helper()
        allc = main + hel
        def after_sd0(L, stop):
            i = next(n for n, x in enumerate(L) if x.tag == 'sd0'); r = []
            for x in L[i:]:
                if stop(x): break
                if x.kind == 'vmem' or (x.pseudo == 'raw' and ('load' in x.text or 'store' in x.text)): r.append(x.text)
            return r
        check_tags(allc)
        temps = set(regs('s', 3, 13)) | set(regs('v', 28, 4)) | {('scc', 0), ('vcc_lo', 0), ('m0', 0), ('v', vFl), ('v', vP), ('v', vP+1), ('v', vU0), ('v', vU1)}
        check_streams(allc, temps, allow={(None, 'hfl'), (None, 'dma'), (None, 'fl')})
        allc = insert_nops(insert_waits(allc))
        self.ins = allc
        hdr = open('cdna_kernels/' + NAME + '.s.ref').read().split('\n')
        head = [l for l in hdr if l.startswith(';') and '@launch' not in l and 'Override launch' not in l and 'grid=ceil' not in l]
        txt = '\n'.join(head) + '\n' + f'; @launch grid=(256,1,1) block=(256,1,1) lds={LDS_BYTES}\n'
        txt += f'.amdgcn_target "amdgcn-amd-amdhsa--gfx950"\n.text\n.globl {NAME}_kernel\n.p2align 12\n{".fill " + str(self.o["pad"]) + ", 4, 0xbf800000" if self.o.get("pad") else ""}\n.p2align 8\n.type {NAME}_kernel,@function\n{NAME}_kernel:\n'
        txt += render(allc) + 'L_codeend:\n'
        txt += f'''.section .rodata,"a"
.p2align 6
.amdhsa_kernel {NAME}_kernel
  .amdhsa_next_free_vgpr 512
  .amdhsa_next_free_sgpr 102
  .amdhsa_accum_offset 256
  .amdhsa_group_segment_fixed_size 0
  .amdhsa_kernarg_size 112
  .amdhsa_user_sgpr_count 2
  .amdhsa_user_sgpr_kernarg_segment_ptr 1
  .amdhsa_system_sgpr_workgroup_id_x 1
  .amdhsa_float_denorm_mode_32 3
.end_amdhsa_kernel
'''
        return txt

if __name__ == '__main__':
    out = sys.argv[1]
    kw = {}
    for a in sys.argv[2:]:
        k, v = a.split('=')
        try: v = int(v)
        except ValueError: pass
        kw[k] = v
    txt = Gen(**kw).build()
    open(out, 'w').write(txt)
```
